```python
import torch

def _softmax(x, axis=-1):
    return torch.softmax(x, dim=axis)
def _gelu(x):
    return torch.nn.functional.gelu(x, approximate="tanh")
def _silu(x):
    return torch.nn.functional.silu(x)
def _sigmoid(x):
    return torch.sigmoid(x)
def _layernorm(x, axis=-1, eps=1e-5):
    m = x.mean(dim=axis, keepdim=True)
    v = x.var(dim=axis, keepdim=True, unbiased=False)
    return (x - m) / torch.sqrt(v + eps)
def _scatter_add(tgt, idx, src, axis=0):
    return tgt.clone().index_add_(axis, idx, src)
def _segment_sum(src, seg, n):
    out = torch.zeros((n,) + src.shape[1:], dtype=src.dtype)
    return out.index_add_(0, seg, src)
def _pad(x, pw):
    flat = tuple(v for pair in reversed(pw) for v in pair)
    return torch.nn.functional.pad(x, flat)

kernel_name = 'gated_mix__spectral_gfnet__ssm_conv_s5__prompt'

def setup_inputs():

    _w = (lambda a: (lambda t: t.to(torch.bfloat16) if t.is_floating_point() else t)(torch.as_tensor(a)))
    def _A_setup():
        B, S, D = 1, 2048, 640
        Df = D // 2 + 1
        return {
            "x": _w((lambda *s: torch.randn(*s, dtype=torch.bfloat16) * 0.05)(B, S, D)),
            "w_r": _w((lambda *s: torch.randn(*s, dtype=torch.bfloat16) * 0.8)(S, Df) * 0.02),
            "w_i": _w((lambda *s: torch.randn(*s, dtype=torch.bfloat16) * 0.8)(S, Df) * 0.02),
        }
    _A_in = _A_setup()

    def _B_setup():
        B, S, D = 1, 2048, 640
        P = D
        Lambda_re = -0.5 * (lambda _x: torch.exp(torch.as_tensor(_x)))((lambda *s: torch.randn(*s, dtype=torch.bfloat16) * 0.2)(P))
        Lambda_im = (lambda *s: torch.randn(*s, dtype=torch.bfloat16) * 0.2)(P) * 1.0
        B_re = (lambda *s: torch.randn(*s, dtype=torch.bfloat16) * 0.2)(P, D) * (D ** -0.5)
        B_im = (lambda *s: torch.randn(*s, dtype=torch.bfloat16) * 0.2)(P, D) * (D ** -0.5)
        C_re = (lambda *s: torch.randn(*s, dtype=torch.bfloat16) * 0.2)(D, P) * (P ** -0.5)
        C_im = (lambda *s: torch.randn(*s, dtype=torch.bfloat16) * 0.2)(D, P) * (P ** -0.5)
        log_dt = (lambda *s: torch.randn(*s, dtype=torch.bfloat16) * 0.2)(P) * 0.3 - 2.0
        Dskip = (lambda *s: torch.randn(*s, dtype=torch.bfloat16) * 0.05)(D)
        return {
            "x": _w((lambda *s: torch.randn(*s, dtype=torch.bfloat16) * 0.05)(B, S, D)),
            "Lambda_re": _w(Lambda_re),
            "Lambda_im": _w(Lambda_im),
            "B_re": _w(B_re),
            "B_im": _w(B_im),
            "C_re": _w(C_re),
            "C_im": _w(C_im),
            "log_dt": _w(log_dt),
            "Dskip": _w(Dskip),
        }
    _B_in = _B_setup()

    return {
        "A_x": _A_in["x"],
        "A_w_r": _A_in["w_r"],
        "A_w_i": _A_in["w_i"],
        "B_x": _B_in["x"],
        "B_Lambda_re": _B_in["Lambda_re"],
        "B_Lambda_im": _B_in["Lambda_im"],
        "B_B_re": _B_in["B_re"],
        "B_B_im": _B_in["B_im"],
        "B_C_re": _B_in["C_re"],
        "B_C_im": _B_in["C_im"],
        "B_log_dt": _B_in["log_dt"],
        "B_Dskip": _B_in["Dskip"],
        "gate_w": _w((lambda *s: torch.randn(*s, dtype=torch.bfloat16) * 0.05)(640) * 16.0),
    }

def reference(A_x, A_w_r, A_w_i, B_x, B_Lambda_re, B_Lambda_im, B_B_re, B_B_im, B_C_re, B_C_im, B_log_dt, B_Dskip, gate_w):
    def _A_ref(x, w_r, w_i):
        B, S, D = x.shape
        X = (lambda x, axes=(-2,-1): torch.fft.rfft2(x.float(), dim=axes))(x, axes=(-2, -1))
        W = w_r + 1j * w_i
        X = X * W
        y = (lambda x, s, axes=(-2,-1): torch.fft.irfft2(x, s=s, dim=axes).to(torch.bfloat16))(X, (S, D), axes=(-2, -1))
        return y

    def _B_ref(x, Lambda_re, Lambda_im, B_re, B_im, C_re, C_im, log_dt, Dskip):
        Bsz, L, H = x.shape
        Lam = Lambda_re + 1j * Lambda_im
        Bmat = B_re + 1j * B_im
        Cmat = C_re + 1j * C_im
        dt = torch.exp(log_dt)
        Lam_bar = torch.exp(dt * Lam)
        B_bar = ((Lam_bar - 1.0) / Lam)[:, None] * Bmat
        Bu = torch.einsum("bld,pd->blp", x + 0j, B_bar)
        h = torch.zeros_like(Bu[:, 0, :])
        hs = []
        for t in range(L):
            h = Lam_bar[None, :] * h + Bu[:, t, :]
            hs.append(h)
        hseq = torch.stack(hs, 1)
        y = 2.0 * torch.einsum("blp,dp->bld", hseq, Cmat).real + x * Dskip[None, None, :]
        return y

    x = A_x
    g = _sigmoid((x * gate_w).sum(-1, keepdims=True))
    a = _A_ref(x, A_w_r, A_w_i)
    b = _B_ref(x, B_Lambda_re, B_Lambda_im, B_B_re, B_B_im, B_C_re, B_C_im, B_log_dt, B_Dskip)
    return g * a + (1 - g) * b
```

```python
from dsl import *
import math
WS_BU = 0
WS_UU = 5242880
WS_UP = WS_UU + 160 * 16384
WS_CP = WS_UP + 161 * 16384
WS_GG = WS_CP + 1638400
WS_END = WS_GG + 8192
WS_SIZE = 268435456

C1, C2 = math.cos(2 * math.pi / 5), math.cos(4 * math.pi / 5)
N1, N2 = math.sin(2 * math.pi / 5), math.sin(4 * math.pi / 5)

def srd(k, d, ptr, nbytes):
    k("s_mov_b32", s(d), s(ptr)); k("s_mov_b32", s(d + 1), s(ptr + 1))
    k("s_mov_b32", s(d + 2), str(nbytes)); k("s_mov_b32", s(d + 3), "0x20000")

class VM:
    def __init__(self): self.tags = []
    def issue(self, tag): self.tags.append(tag)
    def n_after(self, *need):
        last = max(i for i, t in enumerate(self.tags) if t in need)
        return len(self.tags) - 1 - last
```

```python
import re

_REG = re.compile(r"^(-|\|)?(abs\()?([vas])(?:(\d+)|\[(\d+):(\d+)\])\)?\|?$")

def regs_of(op):
    op = op.strip()
    if op == "vcc": return {("s", 106), ("s", 107)}
    if op == "exec": return {("s", 126), ("s", 127)}
    if op == "m0": return {("s", 124)}
    m = _REG.match(op)
    if not m: return set()
    k = m.group(3)
    if m.group(4) is not None:
        return {(k, int(m.group(4)))}
    return {(k, i) for i in range(int(m.group(5)), int(m.group(6)) + 1)}

TRANS = ("v_exp_f32", "v_log_f32", "v_rcp_f32", "v_rsq_f32", "v_sqrt_f32", "v_sin_f32", "v_cos_f32")

class Ins:
    __slots__ = ("op", "ops", "mods", "text", "dst", "src", "kind", "a", "b", "c", "passes", "states")
    def __init__(self, op, ops, mods):
        self.op, self.ops, self.mods = op, list(ops), mods
        self.text = op + (" " + ", ".join(ops) if ops else "") + (" " + mods if mods else "")
        self.dst, self.src = set(), set()
        self.a = self.b = self.c = set()
        self.passes = 0
        self.states = 1
        R = [regs_of(o) for o in ops]
        U = lambda l: set().union(*l) if l else set()
        if op.startswith("v_mfma"):
            self.kind = "mfma"
            self.dst = R[0]; self.a, self.b, self.c = R[1], R[2], R[3]
            self.src = R[1] | R[2] | R[3]
            self.passes = 8 if "32x32" in op else 4
        elif op.startswith("v_"):
            self.kind = "valu"
            nd = 1
            if re.match(r"v_(add|sub|subrev|addc|subb)_co_", op) or op.startswith("v_mad_u64") or op.startswith("v_div_scale"): nd = 2
            if op == "v_nop": nd = 0
            self.dst = U(R[:nd]); self.src = U(R[nd:])
            if op.startswith(("v_fmac", "v_pk_fmac", "v_dot2c", "v_mac")) or "dpp" in op or "quad_perm" in mods or "row_" in mods:
                self.src |= R[0]
            if op.startswith("v_permlane") and "swap" in op:
                self.dst = R[0] | R[1]; self.src = R[0] | R[1]
            if op.startswith("v_cmpx"): self.dst |= regs_of("exec")
            if op.startswith("v_cndmask") and len(ops) == 3: self.src |= regs_of("vcc")
        elif op.startswith("ds_"):
            self.kind = "ds"
            if op.startswith(("ds_read", "ds_bpermute", "ds_permute", "ds_swizzle")):
                self.dst = R[0]; self.src = U(R[1:])
            else:
                self.src = U(R)
        elif op.startswith(("buffer_", "global_")):
            self.kind = "vmem"
            if "_load" in op and " lds" not in (" " + mods) and "_lds_" not in op:
                self.dst = R[0]; self.src = U(R[1:])
                if "d16" in op: self.src |= R[0]
            else:
                self.src = U(R)
                if " lds" in (" " + mods) or "_lds_" in op: self.src |= regs_of("m0")
        elif op.startswith("s_"):
            self.kind = "salu"
            if op == "s_nop":
                self.states = int(ops[0], 0) + 1
            elif op.startswith(("s_cmp", "s_cbranch", "s_branch", "s_barrier", "s_waitcnt", "s_endpgm", "s_setprio", "s_sleep", "s_bitcmp")):
                self.src = U(R)
            else:
                self.dst = R[0] if R else set(); self.src = U(R[1:])
                if "saveexec" in op: self.dst |= regs_of("exec")
        else:
            raise ValueError("unknown op " + op)

def is_v(rs): return {r for r in rs if r[0] in "va"}
def is_s(rs): return {r for r in rs if r[0] == "s"}

def need(p, c):
    n = 0
    pv, ps = is_v(p.dst), is_s(p.dst)
    if p.kind == "valu":
        if c.kind == "mfma" and pv & c.src: n = max(n, 2)
        if c.kind == "mfma" and regs_of("exec") & p.dst: n = max(n, 4)
        if c.kind == "valu":
            dpp = "dpp" in c.op or "quad_perm" in c.mods or "row_" in c.mods
            if dpp and pv & c.src: n = max(n, 2)
            if dpp and regs_of("exec") & p.dst: n = max(n, 5)
            if c.op.startswith("v_permlane") and pv & c.src: n = max(n, 2)
            if c.op.startswith(("v_readlane", "v_readfirstlane")) and pv & c.src: n = max(n, 1)
            if c.op.startswith(("v_readlane", "v_writelane")) and ps & c.src: n = max(n, 4)
            if c.op.startswith(("v_readlane", "v_readfirstlane", "v_writelane", "v_permlane")) and regs_of("exec") & p.dst: n = max(n, 4)
            if ps & c.src: n = max(n, 2)
            if p.op.startswith(TRANS) and not c.op.startswith(TRANS) and pv & c.src: n = max(n, 1)
            if ("op_sel" in p.mods and not p.op.startswith("v_pk_")) or "sdwa" in p.op:
                if pv & (c.src | c.dst): n = max(n, 1)
            if c.op.startswith("v_div_fmas") and regs_of("vcc") & p.dst: n = max(n, 4)
        if p.op.startswith("v_dot") and c.op != p.op and pv & (c.src | c.dst): n = max(n, 3)
        if p.op.startswith(TRANS) and c.kind in ("vmem", "ds") and pv & c.src: n = max(n, 1)
        if c.kind == "vmem" and ps & c.src: n = max(n, 5)
        if c.kind == "salu" and ps & c.src: n = max(n, 1)
    elif p.kind == "mfma":
        far = {4: 8, 8: 12}[p.passes]
        if c.kind == "mfma":
            if p.dst & (c.a | c.b): n = max(n, far)
            if p.dst & c.c:
                if p.dst == c.c and p.passes == c.passes: pass
                else: n = max(n, far - 2)
            elif p.dst & c.dst: n = max(n, far)
        elif c.kind in ("valu", "vmem", "ds"):
            if p.dst & (c.src | c.dst): n = max(n, far)
            if c.kind == "valu" and p.c & c.dst: n = max(n, {4: 3, 8: 7}[p.passes])
            if c.kind != "valu" and p.c & c.dst: n = max(n, {4: 3, 8: 7}[p.passes])
    elif p.kind == "salu":
        if regs_of("m0") & p.dst and c.kind == "vmem" and regs_of("m0") & c.src: n = max(n, 1)
    elif p.kind == "vmem":
        if "store" in p.op and ("x4" in p.op or "x3" in p.op):
            data = regs_of(p.ops[0]) if p.op.startswith("buffer_") else regs_of(p.ops[1])
            if data & c.dst: n = max(n, 2)
    return n

class Kern:
    def __init__(self, name):
        self.name = name
        self.items = []
        self.maxv = -1; self.maxa = -1; self.maxs = -1
    def __call__(self, op, *ops, m=""):
        ops = [str(o) for o in ops]
        ins = Ins(op, ops, m)
        for (k, i) in ins.dst | ins.src:
            if k == "v": self.maxv = max(self.maxv, i)
            elif k == "a": self.maxa = max(self.maxa, i)
            elif k == "s" and i < 102: self.maxs = max(self.maxs, i)
        self.items.append(ins)
        return ins
    def label(self, n): self.items.append(("label", n))
    def comment(self, t): self.items.append(("raw", "; " + t))
    def render(self):
        out = []
        hist = []
        def pad(n):
            while n > 0:
                k = min(n, 16)
                out.append("    s_nop %d" % (k - 1))
                for h in hist: h[1] += k
                n -= k
        WINDOW = 20
        for it in self.items:
            if isinstance(it, tuple):
                if it[0] == "label":
                    mx = 0
                    for p, d in hist:
                        w = {"mfma": {4: 8, 8: 12}.get(p.passes, 0), "valu": 5, "salu": 1, "vmem": 2, "ds": 0}[p.kind]
                        mx = max(mx, w - d)
                    pad(mx); hist = []
                    out.append(it[1] + ":")
                else:
                    out.append("    " + it[1])
                continue
            req = 0
            for p, d in hist:
                req = max(req, need(p, it) - d)
            if it.op.startswith(("s_cbranch", "s_branch")):
                for p, d in hist:
                    w = {"mfma": {4: 8, 8: 12}.get(p.passes, 0), "valu": 5, "salu": 1, "vmem": 2, "ds": 0}[p.kind]
                    req = max(req, w - d - 1)
            pad(req)
            out.append("    " + it.text)
            for h in hist: h[1] += it.states
            hist.append([it, 0])
            hist = [h for h in hist if h[1] < WINDOW]
        return out

def v(i, n=1): return "v%d" % i if n == 1 else "v[%d:%d]" % (i, i + n - 1)
def a(i, n=1): return "a%d" % i if n == 1 else "a[%d:%d]" % (i, i + n - 1)
def s(i, n=1): return "s%d" % i if n == 1 else "s[%d:%d]" % (i, i + n - 1)

import struct
def f32(x): return "0x%08x" % struct.unpack("<I", struct.pack("<f", x))[0]

def build_file(header_lines, kernels, launches):
    L = list(header_lines)
    for (n, g, b, lds) in launches:
        L.append("; @launch kernel=%s grid=(%d,1,1) block=(%d,1,1) lds=%d" % (n, g, b, lds))
    L += ['.amdgcn_target "amdgcn-amd-amdhsa--gfx950"', ".text"]
    for k in kernels:
        L += [".globl %s" % k.name, ".p2align 8", ".type %s,@function" % k.name, "%s:" % k.name]
        L += k.render()
    L += ['.section .rodata,"a"']
    for k in kernels:
        acc = max(4, (k.maxv + 1 + 3) // 4 * 4)
        nfv = acc + k.maxa + 1 if k.maxa >= 0 else k.maxv + 1
        nfv = max(nfv, getattr(k, "min_vgpr", 0))
        L += [".p2align 6", ".amdhsa_kernel %s" % k.name,
              "  .amdhsa_next_free_vgpr %d" % nfv, "  .amdhsa_next_free_sgpr %d" % (k.maxs + 1),
              "  .amdhsa_accum_offset %d" % acc, "  .amdhsa_group_segment_fixed_size 0", "  .amdhsa_kernarg_size 128",
              "  .amdhsa_user_sgpr_count 2", "  .amdhsa_user_sgpr_kernarg_segment_ptr 1",
              "  .amdhsa_system_sgpr_workgroup_id_x 1", "  .amdhsa_float_denorm_mode_32 3", ".end_amdhsa_kernel"]
    return "\n".join(L) + "\n"

class Cap:
    def __init__(self): self.q = []
    def __call__(self, op, *ops, m=""): self.q.append((op, ops, m))
    def cost(self, it):
        return 8 if it[0].startswith(TRANS) else 4
    def drain(self, k, budget=None):
        spent = 0
        while self.q:
            c = self.cost(self.q[0])
            if budget is not None and spent + c > budget: break
            op, ops, m = self.q.pop(0)
            k(op, *ops, m=m); spent += c
```

```python
from common import *

def gen_p1():
    k = Kern("p1_kernel")
    WT, AR, XR = 0, 102400, 112640
    LDS = XR + 4 * 12288
    X, BW, WS = 8, 12, 16
    k("s_cmp_ge_u32", "s2", "256"); k("s_cbranch_scc1", "P1_END")
    k("s_load_dwordx2", s(4, 2), s(0, 2), "0")
    k("s_load_dwordx4", s(24, 4), s(0, 2), "48")
    k("s_load_dwordx2", s(6, 2), s(0, 2), "120")
    LANE, WV = 1, 2
    k("v_and_b32", v(LANE), "63", "v0")
    k("v_lshrrev_b32", v(WV), "6", "v0")
    sW, sPAIR, sJ, sROT, sT0, sT1 = 30, 31, 32, 33, 34, 35
    k("v_readfirstlane_b32", s(sW), v(WV))
    k("s_and_b32", s(sT0), "s2", "7")
    k("s_lshr_b32", s(sT1), "s2", "6")
    k("s_lshr_b32", s(sPAIR), s(sT0), "1"); k("s_lshl_b32", s(sPAIR), s(sPAIR), "2"); k("s_add_u32", s(sPAIR), s(sPAIR), s(sT1))
    k("s_bfe_u32", s(36), "s2", "0x30003")
    k("s_and_b32", s(sJ), s(sT0), "1"); k("s_lshl_b32", s(sJ), s(sJ), "3"); k("s_add_u32", s(sJ), s(sJ), s(36))
    k("s_add_u32", s(sROT), s(sT1), s(36))
    for _ in range(2):
        k("s_cmp_ge_u32", s(sROT), "5"); k("s_cselect_b32", s(37), "5", "0"); k("s_sub_u32", s(sROT), s(sROT), s(37))
    sSC = 40
    k("s_lshl_b32", s(sSC), s(sROT), "8")
    for i in range(1, 5):
        k("s_add_u32", s(sSC + i), s(sSC + i - 1), "256")
        k("s_cmp_ge_u32", s(sSC + i), "1280"); k("s_cselect_b32", s(37), "1280", "0"); k("s_sub_u32", s(sSC + i), s(sSC + i), s(37))
    sSLO, sXB, sWB, sAB, sXL, sWL, sSA, sJ8 = 46, 47, 48, 49, 50, 51, 52, 53
    k("s_lshr_b32", s(37), s(sW), "1")
    k("s_and_b32", s(38), s(sW), "1")
    k("s_lshl_b32", s(sSLO), s(sPAIR), "1"); k("s_add_u32", s(sSLO), s(sSLO), s(37))
    k("s_lshl_b32", s(39), s(38), "10"); k("s_add_u32", s(39), s(39), s(sSLO)); k("s_mul_i32", s(sXB), s(39), "1280")
    k("s_mul_i32", s(sWB), s(sJ), str(40 * 1280)); k("s_lshl_b32", s(39), s(37), "7"); k("s_add_u32", s(sWB), s(sWB), s(39))
    k("s_mul_i32", s(sWL), s(37), "10240"); k("s_mul_i32", s(39), s(38), "5120"); k("s_add_u32", s(sWL), s(sWL), s(39))
    k("s_mul_i32", s(sXL), s(sW), "12288"); k("s_add_u32", s(sXL), s(sXL), str(XR))
    k("s_and_b32", s(sSA), s(sJ), "1"); k("s_lshl_b32", s(39), s(sPAIR), "1"); k("s_add_u32", s(sSA), s(sSA), s(39))
    k("s_lshr_b32", s(sJ8), s(sJ), "1")
    k("s_mul_i32", s(sAB), s(sSA), "1280"); k("s_mul_i32", s(39), s(38), str(32 * 40960)); k("s_add_u32", s(sAB), s(sAB), s(39))
    k("s_lshl_b32", s(39), s(37), "8"); k("s_add_u32", s(sAB), s(sAB), s(39))
    k("s_lshl_b32", s(39), s(sJ8), "5"); k("s_add_u32", s(sAB), s(sAB), s(39))
    sK40 = 54
    k("s_mov_b32", s(sK40), "40960")
    vX0, vX1, vWO, vAO, vT, vT2 = 3, 4, 5, 6, 7, 8
    k("v_lshrrev_b32", v(vT), "3", v(LANE))
    k("v_lshrrev_b32", v(vT2), "4", v(LANE))
    k("v_and_b32", v(vX0), "7", v(LANE))
    k("v_xor_b32", v(vX0), v(vX0), v(vT2))
    k("v_lshlrev_b32", v(vX0), "4", v(vX0))
    k("v_mad_u32_u24", v(vX0), v(vT), s(sK40), v(vX0))
    k("v_xor_b32", v(vX1), "64", v(vX0))
    k("v_and_b32", v(vWO), "6", v(vT))
    k("v_xor_b32", v(vWO), v(vWO), v(LANE))
    k("v_xor_b32", v(vWO), s(38), v(vWO))
    k("v_and_b32", v(vWO), "7", v(vWO))
    k("v_lshlrev_b32", v(vWO), "4", v(vWO))
    k("v_mul_u32_u24", v(vT), "1280", v(vT))
    k("v_add_u32", v(vWO), v(vWO), v(vT))
    k("v_lshrrev_b32", v(vT), "1", v(LANE))
    k("v_and_b32", v(vAO), "1", v(LANE)); k("v_lshlrev_b32", v(vAO), "4", v(vAO))
    k("v_mad_u32_u24", v(vAO), v(vT), s(sK40), v(vAO))
    k("s_waitcnt", "lgkmcnt(0)")
    srd(k, X, 4, 2621440)
    k("s_cmp_eq_u32", s(38), "0")
    k("s_cselect_b32", s(BW), s(24), s(26)); k("s_cselect_b32", s(BW + 1), s(25), s(27))
    k("s_mov_b32", s(BW + 2), "819200"); k("s_mov_b32", s(BW + 3), "0x20000")
    srd(k, WS, 6, WS_SIZE)
    vm = VM()
    sO = 56
    def dma(srdn, voff, sbase, goff, lbase, loff, tag, sc=None):
        if isinstance(lbase, int): k("s_add_u32", "m0", s(lbase), str(loff))
        else: k("s_mov_b32", "m0", str(loff))
        if sc is None:
            k("s_add_u32", s(sO), s(sbase), str(goff))
        else:
            k("s_add_u32", s(sO), s(sbase), s(sc))
            if goff: k("s_add_u32", s(sO), s(sO), str(goff))
        k("buffer_load_dwordx4", v(voff), s(srdn, 4), s(sO), m="offen lds")
        vm.issue(tag)
    sAL = 57
    k("s_lshl_b32", s(sAL), s(sW), "10"); k("s_add_u32", s(sAL), s(sAL), str(AR))
    k("s_cmp_ge_u32", s(sW), "2"); k("s_cbranch_scc1", "P1_A2")
    dma(X, vAO, sAB, 1024, sAL, 8192, "A")
    k.label("P1_A2")
    dma(X, vAO, sAB, 0, sAL, 0, "A")
    dma(X, vAO, sAB, 512, sAL, 4096, "A")
    sXC, sWC = 58, 59
    def ld_x(c):
        k("s_add_u32", s(sXC), s(sXB), s(sSC + c // 2))
        for q in range(4):
            dma(X, vX1 if q & 1 else vX0, sXC, q * 8 * 40960 + (c & 1) * 128, sXL, (c % 3) * 4096 + q * 1024, "x%d" % c)
    def ld_w(sc):
        k("s_add_u32", s(sWC), s(sWB), s(sSC + sc))
        for t in range(5):
            dma(BW, vWO, sWC, t * 8 * 1280, sWL, WT + sc * 20480 + t * 1024, "w%d" % sc)
    ld_x(0); ld_w(0); ld_x(1); ld_x(2); ld_w(1)

    vG, vI = 9, 10
    k("v_lshrrev_b32", v(vG), "4", v(LANE)); k("v_and_b32", v(vI), "15", v(LANE))
    vRW0, vRW1, vRX0, vRX1, vRA = 11, 12, 13, 14, 15
    k("v_lshrrev_b32", v(vT), "1", v(vI))
    k("v_and_b32", v(vT2), "1", v(vI))
    k("v_and_b32", v(vRW0), "6", v(vT)); k("v_xor_b32", v(vRW0), v(vRW0), v(vT2)); k("v_xor_b32", v(vRW0), v(vRW0), v(vG))
    k("v_lshlrev_b32", v(vRW0), "4", v(vRW0))
    k("v_lshl_add_u32", v(vRW0), v(vT), "7", v(vRW0))
    k("v_mul_u32_u24", v(vT2), "5120", v(vT2)); k("v_add_u32", v(vRW0), v(vRW0), v(vT2))
    k("v_xor_b32", v(vRW1), "64", v(vRW0))
    k("v_xor_b32", v(vRX0), v(vT), v(vG)); k("v_lshlrev_b32", v(vRX0), "4", v(vRX0))
    k("v_lshl_add_u32", v(vRX0), v(vI), "7", v(vRX0)); k("v_add_u32", v(vRX0), s(sXL), v(vRX0))
    k("v_xor_b32", v(vRX1), "64", v(vRX0))
    k("v_lshlrev_b32", v(vRA), "3", v(LANE)); k("v_add_u32", v(vRA), str(AR), v(vRA))

    vMF, vBS = 16, 17
    FA = 20
    k("s_lshl_b32", s(39), s(sW), "3")
    k("v_add_u32", v(vMF), s(39), v(vT))
    k("v_and_b32", v(vT2), "1", v(vI))
    k("v_cvt_f32_u32", v(vBS), v(vT2)); k("v_mul_f32", v(vBS), "0.25" if False else f32(0.25), v(vBS))
    k("v_lshl_add_u32", v(vT2), v(vMF), "1", v(vT2))
    k("v_cmp_eq_u32", "vcc", "1", v(vT2))
    k("v_cndmask_b32", v(vMF), v(vMF), "32", "vcc")
    k("v_cndmask_b32", v(vBS), v(vBS), "0", "vcc")
    k("v_cvt_f32_u32", v(vMF), v(vMF)); k("v_mul_f32", v(vMF), f32(1 / 64), v(vMF))
    k("v_cvt_f32_u32", v(vT2), v(vG)); k("v_mul_f32", v(vT2), "4.0", v(vT2))
    k("v_fmac_f32", v(vBS), v(vMF), v(vT2))
    TM = 28
    for ks in range(2):
        for e in range(8):
            const = 32 * ks + 16 * (e >> 2) + (e & 3)
            k("v_fmamk_f32", v(TM + 8 * ks + e), v(vMF), f32(const), v(vBS))
    for e in range(16): k("v_cos_f32", v(TM + e), v(TM + e))
    for e in range(8): k("v_cvt_pk_bf16_f32", v(FA + e), v(TM + 2 * e), v(TM + 2 * e + 1))
    TW1, TW2 = 44, 46
    k("s_lshl_b32", s(39), s(sJ8), "4")
    k("v_add_u32", v(vT2), s(39), v(vI)); k("v_cvt_f32_u32", v(vT2), v(vT2))
    k("v_mul_f32", v(TW1), f32(0.2), v(vT2)); k("v_mul_f32", v(TW2), f32(0.4), v(vT2))
    k("v_sin_f32", v(TW1 + 1), v(TW1)); k("v_sin_f32", v(TW2 + 1), v(TW2))
    k("v_cos_f32", v(TW1), v(TW1)); k("v_cos_f32", v(TW2), v(TW2))
    sC1, sC2, sN1, sN2 = 60, 62, 64, 66
    for r, val in ((sC1, C1), (sC2, C2), (sN1, N1), (sN2, N2)):
        k("s_mov_b32", s(r), f32(val)); k("s_mov_b32", s(r + 1), f32(val))
    sSP = 68
    k("s_cmp_eq_u32", s(sW), "0"); k("s_cselect_b32", s(sSP), "0xffff", "0"); k("s_mov_b32", s(sSP + 1), "0")

    k("s_waitcnt", "vmcnt(%d)" % vm.n_after("A")); k("s_barrier")
    XT = 48
    AC = 88
    for dh in range(5):
        for ks in range(2):
            for hf in range(2):
                k("ds_read_b64_tr_b16", v(XT + 8 * dh + 4 * ks + 2 * hf, 2), v(vRA), m="offset:%d" % (dh * 2048 + ks * 1024 + hf * 512))
        if dh == 2: k("s_waitcnt", "lgkmcnt(4)")
    k("s_waitcnt", "lgkmcnt(0)")
    for ks in range(2):
        for dh in range(5):
            k("v_mfma_f32_16x16x32_bf16", v(AC + 4 * dh, 4), v(FA + 4 * ks, 4), v(XT + 8 * dh + 4 * ks, 4), "0" if ks == 0 else v(AC + 4 * dh, 4))
    UO = 108
    R = 48
    for vv in range(2):
        T = lambda dh: v(AC + 4 * dh + 2 * vv, 2)
        b = R + 20 * vv
        S1, D1, S2, D2, A1, A2, B1, B2, U0, Z = [b + 2 * i for i in range(10)]
        P = lambda r: v(r, 2)
        k("v_pk_add_f32", P(S1), T(1), T(4)); k("v_pk_add_f32", P(D1), T(1), T(4), m="neg_lo:[0,1] neg_hi:[0,1]")
        k("v_pk_add_f32", P(S2), T(2), T(3)); k("v_pk_add_f32", P(D2), T(2), T(3), m="neg_lo:[0,1] neg_hi:[0,1]")
        k("v_pk_add_f32", P(U0), T(0), P(S1))
        k("v_pk_fma_f32", P(A1), P(S1), s(sC1, 2), T(0)); k("v_pk_fma_f32", P(A2), P(S1), s(sC2, 2), T(0))
        k("v_pk_mul_f32", P(B1), P(D1), s(sN1, 2)); k("v_pk_mul_f32", P(B2), P(D1), s(sN2, 2))
        k("v_pk_add_f32", P(U0), P(U0), P(S2))
        k("v_pk_fma_f32", P(A1), P(S2), s(sC2, 2), P(A1)); k("v_pk_fma_f32", P(A2), P(S2), s(sC1, 2), P(A2))
        k("v_pk_fma_f32", P(B1), P(D2), s(sN2, 2), P(B1)); k("v_pk_fma_f32", P(B2), P(D2), s(sN1, 2), P(B2), m="neg_lo:[1,0,0] neg_hi:[1,0,0]")
        k("v_pk_add_f32", P(S1), P(A1), P(B1), m="op_sel:[0,1] op_sel_hi:[1,0] neg_hi:[0,1]")
        k("v_pk_add_f32", P(D1), P(A1), P(B1), m="op_sel:[0,1] op_sel_hi:[1,0] neg_lo:[0,1]")
        k("v_pk_add_f32", P(S2), P(A2), P(B2), m="op_sel:[0,1] op_sel_hi:[1,0] neg_hi:[0,1]")
        k("v_pk_add_f32", P(D2), P(A2), P(B2), m="op_sel:[0,1] op_sel_hi:[1,0] neg_lo:[0,1]")
        if vv == 0:
            sp = s(sSP, 2)
            k("v_cndmask_b32", v(S1), v(S1), v(A1), sp); k("v_cndmask_b32", v(S1 + 1), v(S1 + 1), "-" + v(B1), sp)
            k("v_cndmask_b32", v(D1), v(D1), v(A1 + 1), sp); k("v_cndmask_b32", v(D1 + 1), v(D1 + 1), v(B1 + 1), sp)
            k("v_cndmask_b32", v(S2), v(S2), v(A2 + 1), sp); k("v_cndmask_b32", v(S2 + 1), v(S2 + 1), "-" + v(B2 + 1), sp)
            k("v_cndmask_b32", v(D2), v(D2), v(A2), sp); k("v_cndmask_b32", v(D2 + 1), v(D2 + 1), v(B2), sp)
        k("v_cvt_pk_bf16_f32", v(UO + 5 * vv), v(U0), v(U0 + 1))
        for q, src, tw, cj, dst in ((1, D2, TW1, False, A1), (2, S1, TW2, False, A2), (3, D1, TW2, True, B1), (4, S2, TW1, True, B2)):
            k("v_pk_mul_f32", P(dst), P(src), P(tw), m="op_sel:[0,0] op_sel_hi:[1,0]")
            k("v_pk_fma_f32", P(dst), P(src), P(tw), P(dst), m="op_sel:[1,1,0] op_sel_hi:[0,1,1] " + ("neg_lo:[0,1,0]" if cj else "neg_hi:[0,1,0]"))
        for q, dst in ((1, A1), (2, A2), (3, B1), (4, B2)):
            k("v_cvt_pk_bf16_f32", v(UO + 5 * vv + q), v(dst), v(dst + 1))
    vSEL = 18
    k("v_and_b32", v(vT2), "1", v(vI)); k("v_cmp_eq_u32", "vcc", "1", v(vT2))
    k("v_mov_b32", v(vSEL), "0x05040100"); k("v_mov_b32", v(vT), "0x03020706")
    k("v_cndmask_b32", v(vSEL), v(vSEL), v(vT), "vcc")
    for n in range(10):
        k("v_mov_b32_dpp", v(R + n), v(UO + n), m="quad_perm:[1,0,3,2] row_mask:0xf bank_mask:0xf")
    for n in range(10):
        k("v_perm_b32", v(UO + n), v(R + n), v(UO + n), v(vSEL))

    ACC = 120
    FX0, FW0 = 48, 56
    FX1 = [76, 160]; FW1 = [84, 168]
    first = {}
    def mm(fx, fw, lst=None):
        for t in range(5):
            for nt in range(2):
                acc = v(ACC + 8 * t + 4 * nt, 4)
                c = acc if first.get((t, nt)) else "0"
                first[(t, nt)] = True
                k("v_mfma_f32_16x16x32_bf16", acc, v(fw + 4 * t, 4), v(fx + 4 * nt, 4), c)
    for c in range(10):
        needs = ["x%d" % c] + (["w%d" % (c // 2)] if c % 2 == 0 else [])
        k("s_waitcnt", "vmcnt(%d) lgkmcnt(0)" % vm.n_after(*needs))
        if c % 2 == 0: k("s_barrier")
        if c == 5:
            k("v_add_u32", v(vRW0), "51200", v(vRW0)); k("v_add_u32", v(vRW1), "51200", v(vRW1))
        wo = (c % 5) * 10240
        xo = (c % 3) * 4096
        p = c & 1
        for nt in range(2): k("ds_read_b128", v(FX0 + 4 * nt, 4), v(vRX0), m="offset:%d" % (xo + nt * 2048))
        for nt in range(2): k("ds_read_b128", v(FX1[p] + 4 * nt, 4), v(vRX1), m="offset:%d" % (xo + nt * 2048))
        for t in range(5): k("ds_read_b128", v(FW0 + 4 * t, 4), v(vRW0), m="offset:%d" % (wo + t * 1024))
        for t in range(5): k("ds_read_b128", v(FW1[p] + 4 * t, 4), v(vRW1), m="offset:%d" % (wo + t * 1024))
        if c > 0: mm(FX1[1 - p], FW1[1 - p])
        k("s_waitcnt", "lgkmcnt(10)")
        if c + 3 < 10: ld_x(c + 3)
        if c % 2 == 1 and (c + 3) // 2 < 5: ld_w((c + 3) // 2)
        k("s_waitcnt", "lgkmcnt(5)")
        mm(FX0, FW0)
    k("s_waitcnt", "lgkmcnt(0)")
    mm(FX1[1], FW1[1])
    vUO, vBO = 3, 4
    k("v_mul_u32_u24", v(vUO), str(2 * 5), v(vG)); k("v_lshlrev_b32", v(vUO), "14", v(vUO))
    k("v_and_b32", v(vT), "1", v(vI)); k("v_lshl_add_u32", v(vUO), v(vT), "13", v(vUO))
    k("v_bfe_u32", v(vT), v(vI), "2", "1"); k("v_lshl_add_u32", v(vUO), v(vT), "4", v(vUO))
    k("v_lshrrev_b32", v(vT), "3", v(vI)); k("v_lshl_add_u32", v(vUO), v(vT), "3", v(vUO))
    k("v_and_b32", v(vT), "2", v(vI)); k("v_lshl_add_u32", v(vUO), v(vT), "1", v(vUO))
    sUB = 58
    k("s_mul_i32", s(sUB), s(sW), str(8 * 81920)); k("s_lshl_b32", s(39), s(sJ8), "10"); k("s_add_u32", s(sUB), s(sUB), s(39))
    k("s_lshl_b32", s(39), s(sSA), "5"); k("s_add_u32", s(sUB), s(sUB), s(39))
    for vv in range(2):
        for q in range(5):
            k("s_add_u32", s(sO), s(sUB), str(WS_UU + vv * 81920 + q * 16384))
            k("buffer_store_dword", v(UO + 5 * vv + q), v(vUO), s(WS, 4), s(sO), m="offen")
    k("v_lshrrev_b32", v(vBO), "1", v(vG)); k("v_lshlrev_b32", v(vBO), "12", v(vBO))
    k("v_lshl_add_u32", v(vBO), v(vI), "4", v(vBO))
    k("v_and_b32", v(vT), "1", v(vG)); k("v_lshl_add_u32", v(vBO), v(vT), "3", v(vBO))
    sBB, sTT = 59, 57
    k("s_mul_i32", s(sBB), s(sSLO), "163840"); k("s_lshl_b32", s(39), s(38), "11"); k("s_add_u32", s(sBB), s(sBB), s(39))
    k("s_mul_i32", s(sTT), s(sJ), "5")
    for t in range(5):
        k("s_add_u32", s(39), s(sTT), str(t))
        k("s_lshr_b32", s(sO), s(39), "2"); k("s_lshl_b32", s(sO), s(sO), "13")
        k("s_and_b32", s(39), s(39), "3"); k("s_lshl_b32", s(39), s(39), "8")
        k("s_add_u32", s(sO), s(sO), s(39)); k("s_add_u32", s(sO), s(sO), s(sBB))
        for nt in range(2):
            r = ACC + 8 * t + 4 * nt
            o = 48 + 4 * t + 2 * nt
            k("v_cvt_pk_bf16_f32", v(o), v(r), v(r + 1)); k("v_cvt_pk_bf16_f32", v(o + 1), v(r + 2), v(r + 3))
            k("buffer_store_dwordx2", v(o, 2), v(vBO), s(WS, 4), s(sO), m="offen offset:%d" % (WS_BU + nt * 1024))
    k.label("P1_END")
    k("s_endpgm")
    return k, ("p1_kernel", 256, 256, LDS)
```

```python
from common import *
LOG2E = 1.4426950408889634
INV2PI = 0.15915494309189535
N_A, N_SCAN, N_PREP, N_GATE = 161, 80, 100, 32

def lam_calc(k, lre, lim, ldt, zr, zi, t0):
    k("v_mul_f32", v(t0), f32(LOG2E), v(ldt))
    k("v_exp_f32", v(t0), v(t0))
    k("v_cvt_pk_bf16_f32", v(t0), v(t0), v(t0))
    k("v_and_b32", v(t0), "0xffff0000", v(t0))
    k("v_mul_f32", v(zr), v(t0), v(lre)); k("v_mul_f32", v(zi), v(t0), v(lim))
    k("v_mul_f32", v(zr), f32(LOG2E), v(zr)); k("v_mul_f32", v(zi), f32(INV2PI), v(zi))

def cexp(k, dst, zr, zi, t0):
    k("v_fract_f32", v(t0), v(zi))
    k("v_exp_f32", v(t0 + 1), v(zr))
    k("v_cos_f32", v(dst), v(t0)); k("v_sin_f32", v(dst + 1), v(t0))
    k("v_mul_f32", v(dst), v(dst), v(t0 + 1)); k("v_mul_f32", v(dst + 1), v(dst + 1), v(t0 + 1))

def cmac(k, dst, l, h, u, tmp=None):
    t = dst if tmp is None else tmp
    k("v_pk_fma_f32", v(t, 2), v(h, 2), v(l, 2), v(u, 2), m="op_sel:[0,0,0] op_sel_hi:[1,0,1]")
    k("v_pk_fma_f32", v(dst, 2), v(h, 2), v(l, 2), v(t, 2), m="op_sel:[1,1,0] op_sel_hi:[0,1,1] neg_lo:[0,1,0]")

def csq(k, dst, a, tmp):
    k("v_pk_mul_f32", v(tmp, 2), v(a, 2), v(a, 2), m="op_sel:[0,0] op_sel_hi:[1,0]")
    k("v_pk_fma_f32", v(dst, 2), v(a, 2), v(a, 2), v(tmp, 2), m="op_sel:[1,1,0] op_sel_hi:[0,1,1] neg_lo:[0,1,0]")

def gen16(k, step, base, oc, os_, on, tmp):
    for q in range(2):
        for e in range(8):
            k("v_fmamk_f32", v(tmp + e), v(step), f32(16 * q + 8 * (e >> 2) + (e & 3)), v(base))
        for e in range(8): k("v_cos_f32", v(tmp + 8 + e), v(tmp + e))
        for e in range(8): k("v_sin_f32", v(tmp + e), v(tmp + e))
        for e in range(4): k("v_cvt_pk_bf16_f32", v(oc + 4 * q + e), v(tmp + 8 + 2 * e), v(tmp + 9 + 2 * e))
        for e in range(4): k("v_cvt_pk_bf16_f32", v(os_ + 4 * q + e), v(tmp + 2 * e), v(tmp + 1 + 2 * e))
        if on is not None:
            for e in range(4): k("v_cvt_pk_bf16_f32", v(on + 4 * q + e), "-" + v(tmp + 2 * e), "-" + v(tmp + 1 + 2 * e))

def role_a(k):
    WS, WR_, WI_ = 8, 12, 16
    MM = "v_mfma_f32_32x32x16_bf16"
    k("s_load_dwordx4", s(24, 4), s(0, 2), "8")
    k("s_load_dwordx2", s(6, 2), s(0, 2), "120")
    LANE, vH, vL5, vT, vT2 = 1, 2, 3, 4, 5
    sW, sM, sQ, sU, sP0, sP1, sO = 30, 31, 32, 33, 34, 35, 36
    k("v_lshrrev_b32", v(vT), "6", "v0")
    k("v_and_b32", v(LANE), "63", "v0")
    k("v_readfirstlane_b32", s(sW), v(vT))
    k("v_lshrrev_b32", v(vH), "5", v(LANE)); k("v_and_b32", v(vL5), "31", v(LANE))
    k("s_lshr_b32", s(37), "s2", "3")
    k("s_mul_i32", s(38), s(37), "52"); k("s_lshr_b32", s(38), s(38), "8")
    k("s_mul_i32", s(39), s(38), "5"); k("s_sub_u32", s(sQ), s(37), s(39))
    k("s_and_b32", s(sM), "s2", "7"); k("s_lshl_b32", s(38), s(38), "3"); k("s_add_u32", s(sM), s(sM), s(38))
    k("s_mul_i32", s(sU), s(sM), "5"); k("s_add_u32", s(sU), s(sU), s(sQ))
    k("s_lshl_b32", s(sP0), s(sU), "14"); k("s_add_u32", s(sP0), s(sP0), str(WS_UU))
    k("s_add_u32", s(sP1), s(sP0), "8192")
    k("s_cmp_eq_u32", s(sU), "0"); k("s_cselect_b32", s(sP1), "0x40000000", s(sP1))
    k("s_cmp_eq_u32", s(sU), "160"); k("s_cselect_b32", s(sP1), "0x40000000", s(sP1)); k("s_cselect_b32", s(sP0), str(WS_UU + 8192), s(sP0))
    k("s_sub_u32", s(37), s(sU), "3"); k("s_cmp_lt_u32", s(37), "2"); k("s_cselect_b32", s(sM), "32", s(sM))
    vUO = 6
    k("v_lshlrev_b32", v(vUO), "5", v(vL5)); k("v_lshl_add_u32", v(vUO), v(vH), "4", v(vUO))
    k("s_lshl_b32", s(37), s(sW), "11")
    k("s_add_u32", s(sP0), s(sP0), s(37)); k("s_add_u32", s(sP1), s(sP1), s(37))
    k("s_lshl_b32", s(38), s(sW), "12")
    k("s_waitcnt", "lgkmcnt(0)")
    srd(k, WS, 6, WS_SIZE)
    vm = VM()
    for kk in range(2):
        for pl in range(2):
            k("s_add_u32", "m0", s(38), str(kk * 2048 + pl * 1024))
            k("s_add_u32", s(sO), s(sP1 if pl else sP0), str(kk * 1024))
            k("buffer_load_dwordx4", v(vUO), s(WS, 4), s(sO), m="offen lds"); vm.issue("U")
    srd(k, WR_, 24, 1314816 + 4); srd(k, WI_, 26, 1314816 + 4)
    GC, GS, OP, P0, P1, P2 = 16, 48, 80, 112, 128, 144
    FC, FS, FN, F2C, F2S, F2N, WR, WI, TMP = 160, 168, 176, 184, 192, 200, 208, 224, 240
    vN0, vK2, vO0, vST, vSG = 7, 8, 9, 10, 11
    k("s_lshl_b32", s(37), s(sW), "5")
    k("v_add_u32", v(vN0), s(37), v(vL5))
    k("s_lshl_b32", s(39), s(sQ), "7")
    k("v_mul_u32_u24", v(vK2), "5", v(vN0)); k("v_add_u32", v(vK2), s(39), v(vK2))
    k("v_subrev_u32", v(vT), "640", v(vK2)); k("v_min_u32", v(vK2), v(vK2), v(vT))
    k("v_cmp_lt_u32", "vcc", "320", v(vK2))
    k("v_sub_u32", v(vT), "640", v(vK2))
    k("v_cndmask_b32", v(vK2), v(vK2), v(vT), "vcc")
    k("v_lshlrev_b32", v(vT), "8", v(vH)); k("v_add_u32", v(vT), s(sM), v(vT))
    k("v_sub_u32", v(vT2), "2048", v(vT))
    k("v_cndmask_b32", v(vT), v(vT), v(vT2), "vcc")
    k("v_mov_b32", v(vST), "41088"); k("v_mov_b32", v(vT2), "-41088")
    k("v_cndmask_b32", v(vST), v(vST), v(vT2), "vcc")
    k("v_mov_b32", v(vSG), "0"); k("v_bfrev_b32", v(vT2), "1")
    k("v_cndmask_b32", v(vSG), v(vSG), v(vT2), "vcc")
    k("v_lshlrev_b32", v(vK2), "1", v(vK2))
    k("s_movk_i32", s(40), "642")
    k("v_mad_u32_u24", v(vO0), v(vT), s(40), v(vK2))
    k("v_and_b32", v(vT), "2047", v(vT))
    k("v_mad_u32_u24", v(TMP), v(vT), s(40), v(vK2))
    for r in range(32): k("v_mov_b32", v(WR + r), "0")
    for rho in range(16):
        rp = 8 * (rho >> 2) + (rho & 3)
        ad = TMP + (rho & 3)
        if rho: k("v_mad_i32_i24", v(ad), v(vST), str(rp), v(vO0))
        k("buffer_load_short_d16_hi", v(WR + rho), v(ad), s(WR_, 4), "0", m="offen"); vm.issue("W")
        k("buffer_load_short_d16_hi", v(WI + rho), v(ad), s(WI_, 4), "0", m="offen"); vm.issue("W")
    vSR, vSI, vMR, vMI = 12, 13, 14, 15
    k("v_and_b32", v(vT), "12", v(LANE)); k("v_lshlrev_b32", v(vT), "1", v(vT))
    k("v_and_b32", v(vT2), "3", v(LANE)); k("v_add_u32", v(vT), v(vT), v(vT2))
    k("v_lshl_add_u32", v(vT), v(vH), "2", v(vT))
    k("v_lshlrev_b32", v(vT), "6", v(vT)); k("v_add_u32", v(vT), s(sM), v(vT))
    k("v_sub_u32", v(vT2), "2048", v(vT)); k("v_and_b32", v(vT2), "2047", v(vT2))
    k("v_mul_u32_u24", v(vT), "642", v(vT)); k("v_mul_u32_u24", v(vT2), "642", v(vT2))
    k("s_and_b32", s(41), s(sW), "2"); k("s_mul_i32", s(41), s(41), "320")
    k("buffer_load_ushort", v(vSR), v(vT), s(WR_, 4), s(41), m="offen"); vm.issue("W")
    k("buffer_load_ushort", v(vSI), v(vT), s(WI_, 4), s(41), m="offen"); vm.issue("W")
    k("buffer_load_ushort", v(vMR), v(vT2), s(WR_, 4), s(41), m="offen"); vm.issue("W")
    k("buffer_load_ushort", v(vMI), v(vT2), s(WI_, 4), s(41), m="offen"); vm.issue("W")
    vSTP, vBS = 8, 9
    k("v_cvt_f32_u32", v(vSTP), v(vN0)); k("v_mul_f32", v(vSTP), f32(1 / 128), v(vSTP))
    vH4 = 10
    k("v_cvt_f32_u32", v(vH4), v(vH)); k("v_mul_f32", v(vH4), "4.0", v(vH4))
    k("v_mul_f32", v(vBS), v(vSTP), v(vH4))
    gen16(k, vSTP, vBS, GC, GS, None, TMP)
    vODD, vMC, vMS, vM64 = TMP, TMP + 1, TMP + 2, TMP + 3
    k("s_mov_b32", s(42), "0x80008000")
    k("v_bfe_i32", v(vODD), v(vN0), "0", "1")
    k("v_and_b32", v(vM64), s(42), v(vODD))
    k("v_bfe_i32", v(vMS), v(vN0), "1", "1"); k("v_and_b32", v(vMS), s(42), v(vMS))
    k("v_xor_b32", v(vMC), v(vMS), v(vM64))
    for r in range(8):
        k("v_bfi_b32", v(GC + 8 + r), v(vODD), v(GS + r), v(GC + r))
        k("v_bfi_b32", v(GS + 8 + r), v(vODD), v(GC + r), v(GS + r))
    for r in range(8):
        k("v_xor_b32", v(GC + 8 + r), v(vMC), v(GC + 8 + r))
        k("v_xor_b32", v(GS + 8 + r), v(vMS), v(GS + 8 + r))
    for r in range(16):
        k("v_xor_b32", v(GC + 16 + r), v(vM64), v(GC + r))
        k("v_xor_b32", v(GS + 16 + r), v(vM64), v(GS + r))
    cap = Cap()
    cap("v_lshlrev_b32", v(vT), "6", v(vL5)); cap("v_add_u32", v(vT), s(sM), v(vT))
    cap("v_cvt_f32_u32", v(vSTP), v(vT)); cap("v_mul_f32", v(vSTP), f32(1 / 2048), v(vSTP))
    cap("v_mul_f32", v(vBS), v(vSTP), v(vH4))
    gen16(cap, vSTP, vBS, FC, FS, FN, TMP)
    cap("v_cvt_f32_u32", v(vSTP), v(vL5)); cap("v_mul_f32", v(vSTP), f32(1 / 32), v(vSTP))
    cap("v_cvt_f32_u32", v(vT), s(sM)); cap("v_fmamk_f32", v(vT), v(vT), f32(1 / 64), v(vH4))
    cap("v_mul_f32", v(vBS), v(vSTP), v(vT))
    gen16(cap, vSTP, vBS, F2C, F2S, F2N, TMP)
    vRD = 6
    k("v_lshlrev_b32", v(vRD), "4", v(LANE))
    k("s_waitcnt", "vmcnt(%d)" % vm.n_after("U")); k("s_barrier")
    def big_stage(base, first_is_A, cap):
        def rd(ks):
            for pl in range(2):
                k("ds_read_b128", v(OP + 8 * (ks & 3) + 4 * pl, 4), v(vRD), m="offset:%d" % (base + ks * 2048 + pl * 1024))
        for ks in range(4): rd(ks)
        for ks in range(8):
            out = min(7, ks + 3) - ks
            k("s_waitcnt", "lgkmcnt(%d)" % (2 * out))
            re, im = v(OP + 8 * (ks & 3), 4), v(OP + 8 * (ks & 3) + 4, 4)
            gc, gs = v(GC + 4 * ks, 4), v(GS + 4 * ks, 4)
            z = ks == 0
            if first_is_A:
                seq = [(P0, re, gc, z), (P1, im, gc, z), (P2, re, gs, z), (P0, im, gs, False)]
            else:
                seq = [(P0, gc, re, z), (P1, gc, im, z), (P2, gs, im, z), (P1, gs, re, False)]
            for (d, a_, b_, zz) in seq:
                k(MM, v(d, 16), a_, b_, "0" if zz else v(d, 16))
                if cap is not None: cap.drain(k, 24)
            if ks + 4 < 8: rd(ks + 4)
    big_stage(0, True, cap)
    cap.drain(k)
    k("s_waitcnt", "vmcnt(0)")
    for r in range(16): k("v_xor_b32", v(WI + r), v(vSG), v(WI + r))
    VR, VI, YR, YI = 80, 88, 96, 104
    for r in range(0, 16, 2):
        k("v_pk_add_f32", v(P1 + r, 2), v(P1 + r, 2), v(P2 + r, 2), m="neg_lo:[0,1] neg_hi:[0,1]")
    for r in range(8): k("v_cvt_pk_bf16_f32", v(VR + r), v(P0 + 2 * r), v(P0 + 2 * r + 1))
    for r in range(8): k("v_cvt_pk_bf16_f32", v(VI + r), v(P1 + 2 * r), v(P1 + 2 * r + 1))
    for q in range(2):
        k(MM, v(P0, 16), v(FC + 4 * q, 4), v(VR + 4 * q, 4), "0" if q == 0 else v(P0, 16))
        k(MM, v(P1, 16), v(FN + 4 * q, 4), v(VR + 4 * q, 4), "0" if q == 0 else v(P1, 16))
    for q in range(2):
        k(MM, v(P0, 16), v(FS + 4 * q, 4), v(VI + 4 * q, 4), v(P0, 16))
        k(MM, v(P1, 16), v(FC + 4 * q, 4), v(VI + 4 * q, 4), v(P1, 16))
    k("s_and_b32", s(37), s(sW), "1"); k("s_add_u32", s(37), s(37), s(sQ)); k("s_cmp_lg_u32", s(37), "0")
    k("s_cbranch_scc1", "P2A_NOSP")
    for r in (vSR, vSI, vMR, vMI): k("v_lshlrev_b32", v(r), "16", v(r))
    k("v_add_f32", v(vSR), v(vSR), v(vMR)); k("v_sub_f32", v(vSI), v(vSI), v(vMI))
    k("v_mul_f32", v(vSR), "0.5", v(vSR)); k("v_mul_f32", v(vSI), "0.5", v(vSI))
    k("v_cmp_ne_u32", "vcc", "0", v(vL5))
    for r in range(16):
        k("v_cndmask_b32_dpp", v(WR + r), v(vSR), v(WR + r), "vcc", m="row_newbcast:%d row_mask:0xf bank_mask:0xf" % r)
        k("v_cndmask_b32_dpp", v(WI + r), v(vSI), v(WI + r), "vcc", m="row_newbcast:%d row_mask:0xf bank_mask:0xf" % r)
    k.label("P2A_NOSP")
    for r in range(0, 16, 2):
        k("v_pk_mul_f32", v(P2 + r, 2), v(P0 + r, 2), v(WR + r, 2))
        k("v_pk_mul_f32", v(P0 + r, 2), v(P0 + r, 2), v(WI + r, 2))
    for r in range(0, 16, 2):
        k("v_pk_fma_f32", v(P2 + r, 2), v(P1 + r, 2), v(WI + r, 2), v(P2 + r, 2), m="neg_lo:[1,0,0] neg_hi:[1,0,0]")
        k("v_pk_fma_f32", v(P0 + r, 2), v(P1 + r, 2), v(WR + r, 2), v(P0 + r, 2))
    for r in range(8): k("v_cvt_pk_bf16_f32", v(YR + r), v(P2 + 2 * r), v(P2 + 2 * r + 1))
    for r in range(8): k("v_cvt_pk_bf16_f32", v(YI + r), v(P0 + 2 * r), v(P0 + 2 * r + 1))
    for q in range(2):
        k(MM, v(P0, 16), v(YR + 4 * q, 4), v(F2C + 4 * q, 4), "0" if q == 0 else v(P0, 16))
        k(MM, v(P1, 16), v(YR + 4 * q, 4), v(F2S + 4 * q, 4), "0" if q == 0 else v(P1, 16))
    for q in range(2):
        k(MM, v(P0, 16), v(YI + 4 * q, 4), v(F2N + 4 * q, 4), v(P0, 16))
        k(MM, v(P1, 16), v(YI + 4 * q, 4), v(F2C + 4 * q, 4), v(P1, 16))
    vWA = 7
    k("v_add_u32", v(vWA), s(38), v(vRD))
    for r in range(8): k("v_cvt_pk_bf16_f32", v(VR + r), v(P0 + 2 * r), v(P0 + 2 * r + 1))
    for q in range(2): k("ds_write_b128", v(vWA), v(VR + 4 * q, 4), m="offset:%d" % (16384 + q * 2048))
    for r in range(8): k("v_cvt_pk_bf16_f32", v(VI + r), v(P1 + 2 * r), v(P1 + 2 * r + 1))
    for q in range(2): k("ds_write_b128", v(vWA), v(VI + 4 * q, 4), m="offset:%d" % (16384 + q * 2048 + 1024))
    k("s_waitcnt", "lgkmcnt(0)"); k("s_barrier")
    big_stage(16384, False, None)
    vOA = 7
    k("v_lshlrev_b32", v(vOA), "9", v(vL5)); k("v_lshl_add_u32", v(vOA), v(vH), "4", v(vOA))
    k("s_lshl_b32", s(sO), s(sU), "14"); k("s_lshl_b32", s(37), s(sW), "7"); k("s_add_u32", s(sO), s(sO), s(37))
    k("s_add_u32", s(sO), s(sO), str(WS_UP))
    for r in range(0, 16, 2):
        k("v_pk_add_f32", v(P0 + r, 2), v(P0 + r, 2), v(P2 + r, 2), m="neg_lo:[0,1] neg_hi:[0,1]")
    for jj in range(4):
        for r in range(4): k("v_cvt_pk_bf16_f32", v(OP + 4 * jj + r), v(P0 + 4 * jj + r), v(P1 + 4 * jj + r))
        k("buffer_store_dwordx4", v(OP + 4 * jj, 4), v(vOA), s(WS, 4), s(sO), m="offen offset:%d" % (jj * 32))
    k("s_endpgm")

def role_scan(k):
    WS, LR, LI, LD = 8, 12, 16, 20
    k("s_load_dwordx4", s(24, 4), s(0, 2), "32")
    k("s_load_dwordx2", s(28, 2), s(0, 2), "80")
    k("s_load_dwordx2", s(6, 2), s(0, 2), "120")
    LANE, vR, vI, vT, vO = 1, 2, 3, 4, 5
    sW, sT, sB, sO = 30, 31, 32, 33
    k("v_lshrrev_b32", v(vT), "6", "v0"); k("v_and_b32", v(LANE), "63", "v0")
    k("v_readfirstlane_b32", s(sW), v(vT))
    k("v_lshrrev_b32", v(vR), "4", v(LANE)); k("v_and_b32", v(vI), "15", v(LANE))
    k("s_sub_u32", s(sT), "s2", str(N_A))
    k("s_lshr_b32", s(sB), s(sT), "2"); k("s_lshl_b32", s(sB), s(sB), "13")
    k("s_and_b32", s(34), s(sT), "3"); k("s_lshl_b32", s(34), s(34), "8"); k("s_add_u32", s(sB), s(sB), s(34))
    k("s_lshl_b32", s(34), s(sW), "10"); k("s_add_u32", s(sB), s(sB), s(34))
    k("v_lshrrev_b32", v(vO), "1", v(vR)); k("v_lshlrev_b32", v(vO), "12", v(vO))
    k("v_lshl_add_u32", v(vO), v(vI), "4", v(vO))
    k("v_and_b32", v(vT), "1", v(vR)); k("v_lshl_add_u32", v(vO), v(vT), "3", v(vO))
    vP = 6
    k("v_lshlrev_b32", v(vP), "2", v(vR)); k("s_lshl_b32", s(35), s(sT), "4")
    k("s_waitcnt", "lgkmcnt(0)")
    srd(k, WS, 6, WS_SIZE); srd(k, LR, 24, 1280); srd(k, LI, 26, 1280); srd(k, LD, 28, 1280)
    vm = VM()
    k("buffer_load_dword", v(8), v(vP), s(LR, 4), s(35), m="offen"); vm.issue("p")
    k("buffer_load_dword", v(9), v(vP), s(LI, 4), s(35), m="offen"); vm.issue("p")
    k("buffer_load_dword", v(10), v(vP), s(LD, 4), s(35), m="offen"); vm.issue("p")
    D, UN = 64, 128
    for t in range(32):
        k("s_add_u32", s(sO), s(sB), str(WS_BU + t * 163840))
        k("buffer_load_dwordx2", v(D + 2 * t, 2), v(vO), s(WS, 4), s(sO), m="offen"); vm.issue("d%d" % t)
    vLA = 7
    k("v_lshlrev_b32", v(vLA), "4", "v0")
    for r in range(4): k("v_mov_b32", v(12 + r), "0")
    k("ds_write_b128", v(vLA), v(12, 4))
    k("s_waitcnt", "vmcnt(%d)" % vm.n_after("p"))
    L = [16, 18]; PW = [20, 22]; M = [[24 + 4 * j, 26 + 4 * j] for j in range(5)]
    ZR, ZI, T0 = 44, 45, 46
    k("v_cvt_f32_u32", v(50), v(vI)); k("v_mul_f32", v(50), f32(32.0), v(50))
    for c in range(2):
        for src, dst in ((8, 51), (9, 52), (10, 53)):
            if c == 0: k("v_lshlrev_b32", v(dst), "16", v(src))
            else: k("v_and_b32", v(dst), "0xffff0000", v(src))
        lam_calc(k, 51, 52, 53, ZR, ZI, T0)
        cexp(k, L[c], ZR, ZI, T0)
        k("v_mul_f32", v(48), v(50), v(ZR)); k("v_mul_f32", v(49), v(50), v(ZI))
        cexp(k, PW[c], 48, 49, T0)
        k("v_mul_f32", v(48), f32(32.0), v(ZR)); k("v_mul_f32", v(49), f32(32.0), v(ZI))
        cexp(k, M[0][c], 48, 49, T0)
        for j in range(1, 5): csq(k, M[j][c], M[j - 1][c], T0)
    E = [56, 58]; TT = [60, 62]
    for t in range(32):
        k("s_waitcnt", "vmcnt(%d)" % vm.n_after("d%d" % t))
        for c in range(2):
            u = UN + 4 * t + 2 * c
            k("v_lshlrev_b32", v(u), "16", v(D + 2 * t + c)); k("v_and_b32", v(u + 1), "0xffff0000", v(D + 2 * t + c))
        if t == 0: continue
        prev = lambda c: (UN + 2 * c) if t == 1 else E[c]
        for c in range(2):
            k("v_pk_fma_f32", v(TT[c], 2), v(prev(c), 2), v(L[c], 2), v(UN + 4 * t + 2 * c, 2), m="op_sel:[0,0,0] op_sel_hi:[1,0,1]")
        for c in range(2):
            k("v_pk_fma_f32", v(E[c], 2), v(prev(c), 2), v(L[c], 2), v(TT[c], 2), m="op_sel:[1,1,0] op_sel_hi:[0,1,1] neg_lo:[0,1,0]")
    SH = [44, 46]
    for j in range(4):
        for c in range(2):
            for e in range(2):
                k("v_mov_b32_dpp", v(SH[c] + e), v(E[c] + e), m="row_shr:%d row_mask:0xf bank_mask:0xf bound_ctrl:0" % (1 << j))
        for c in range(2): cmac(k, E[c], M[j][c], SH[c], E[c])
    k("ds_write_b128", v(vLA), v(56, 4), m="offset:4096")
    for c in range(2):
        for e in range(2):
            k("v_mov_b32_dpp", v(SH[c] + e), v(E[c] + e), m="row_shr:1 row_mask:0xf bank_mask:0xf bound_ctrl:0")
    k("v_or_b32", v(vLA), "240", v(vLA))
    k("s_waitcnt", "lgkmcnt(0)"); k("s_barrier")
    for dl in (3, 2, 1):
        k("ds_read_b128", v(24 + 4 * (3 - dl), 4), v(vLA), m="offset:%d" % (4096 - dl * 1024))
    k("s_waitcnt", "lgkmcnt(0)")
    for c in range(2): cmac(k, 28 + 2 * c, M[4][c], 24 + 2 * c, 28 + 2 * c)
    for c in range(2): cmac(k, 32 + 2 * c, M[4][c], 28 + 2 * c, 32 + 2 * c)
    for c in range(2): cmac(k, SH[c], PW[c], 32 + 2 * c, SH[c])
    for t in range(32):
        prev = lambda c: SH[c] if t == 0 else UN + 4 * (t - 1) + 2 * c
        for c in range(2):
            u = UN + 4 * t + 2 * c
            k("v_pk_fma_f32", v(u, 2), v(prev(c), 2), v(L[c], 2), v(u, 2), m="op_sel:[0,0,0] op_sel_hi:[1,0,1]")
        for c in range(2):
            u = UN + 4 * t + 2 * c
            k("v_pk_fma_f32", v(u, 2), v(prev(c), 2), v(L[c], 2), v(u, 2), m="op_sel:[1,1,0] op_sel_hi:[0,1,1] neg_lo:[0,1,0]")
        if t > 0:
            tt = t - 1
            for c in range(2): k("v_cvt_pk_bf16_f32", v(D + 2 * tt + c), v(UN + 4 * tt + 2 * c), v(UN + 4 * tt + 2 * c + 1))
            k("s_add_u32", s(sO), s(sB), str(WS_BU + tt * 163840))
            k("buffer_store_dwordx2", v(D + 2 * tt, 2), v(vO), s(WS, 4), s(sO), m="offen")
    tt = 31
    for c in range(2): k("v_cvt_pk_bf16_f32", v(D + 2 * tt + c), v(UN + 4 * tt + 2 * c), v(UN + 4 * tt + 2 * c + 1))
    k("s_add_u32", s(sO), s(sB), str(WS_BU + tt * 163840))
    k("buffer_store_dwordx2", v(D + 2 * tt, 2), v(vO), s(WS, 4), s(sO), m="offen")
    k("s_endpgm")

def role_prep(k):
    WS, LR, LI, LD, CR, CI = 8, 12, 16, 20, 40, 44
    k("s_load_dwordx4", s(24, 4), s(0, 2), "32")
    k("s_load_dwordx2", s(28, 2), s(0, 2), "80")
    k("s_load_dwordx4", s(36, 4), s(0, 2), "64")
    k("s_load_dwordx2", s(6, 2), s(0, 2), "120")
    LANE, vG, vI, vT, vO, vP = 1, 2, 3, 4, 5, 6
    sW, sT, sR2, sK, sO = 30, 31, 32, 33, 34
    k("v_lshrrev_b32", v(vT), "6", "v0"); k("v_and_b32", v(LANE), "63", "v0")
    k("v_readfirstlane_b32", s(sW), v(vT))
    k("v_lshrrev_b32", v(vG), "4", v(LANE)); k("v_and_b32", v(vI), "15", v(LANE))
    k("s_sub_u32", s(sT), "s2", str(N_A + N_SCAN))
    k("s_mul_i32", s(sR2), s(sT), "205"); k("s_lshr_b32", s(sR2), s(sR2), "10")
    k("s_mul_i32", s(35), s(sR2), "5"); k("s_sub_u32", s(sK), s(sT), s(35))
    k("s_lshl_b32", s(sK), s(sK), "2"); k("s_add_u32", s(sK), s(sK), s(sW))
    k("v_mul_u32_u24", v(vO), "1280", v(vI)); k("v_lshl_add_u32", v(vO), v(vG), "4", v(vO))
    k("v_and_b32", v(vP), "7", v(vI)); k("v_lshl_add_u32", v(vP), v(vG), "3", v(vP)); k("v_lshlrev_b32", v(vP), "1", v(vP))
    k("s_lshl_b32", s(35), s(sK), "6")
    k("s_waitcnt", "lgkmcnt(0)")
    srd(k, WS, 6, WS_SIZE); srd(k, LR, 24, 1284); srd(k, LI, 26, 1284); srd(k, LD, 28, 1284)
    srd(k, CR, 36, 819200); srd(k, CI, 38, 819200)
    k("buffer_load_ushort", v(8), v(vP), s(LR, 4), s(35), m="offen")
    k("buffer_load_ushort", v(9), v(vP), s(LI, 4), s(35), m="offen")
    k("buffer_load_ushort", v(10), v(vP), s(LD, 4), s(35), m="offen")
    k("s_mul_i32", s(sO), s(sR2), "40960"); k("s_add_u32", s(sO), s(sO), s(35))
    IN = 48
    for it in range(2):
        if it: k("s_add_u32", s(sO), s(sO), "20480")
        k("buffer_load_dwordx4", v(IN + 8 * it, 4), v(vO), s(CR, 4), s(sO), m="offen")
        k("buffer_load_dwordx4", v(IN + 8 * it + 4, 4), v(vO), s(CI, 4), s(sO), m="offen")
    k("s_waitcnt", "vmcnt(4)")
    for r in (8, 9, 10): k("v_lshlrev_b32", v(r), "16", v(r))
    lam_calc(k, 8, 9, 10, 12, 13, 14)
    cexp(k, 16, 12, 13, 14)
    k("v_add_f32", v(16), "-1.0", v(16))
    k("v_mul_f32", v(12), v(8), v(8)); k("v_fmac_f32", v(12), v(9), v(9))
    k("v_rcp_f32", v(12), v(12))
    k("v_mul_f32", v(18), v(16), v(8)); k("v_fmac_f32", v(18), v(17), v(9))
    k("v_mul_f32", v(19), v(17), v(8)); k("v_fma_f32", v(19), "-" + v(16), v(9), v(19))
    k("v_add_f32", v(12), v(12), v(12))
    k("v_mul_f32", v(18), v(18), v(12)); k("v_mul_f32", v(19), v(19), v(12))
    KK = 24
    for c in range(8):
        for e in range(2):
            k("v_mov_b32_dpp", v(KK + 2 * c + e), v(18 + e), m="row_newbcast:%d row_mask:0xf bank_mask:0xf" % c)
    vSO = 7
    k("v_lshlrev_b32", v(vSO), "4", v(LANE))
    for it in range(2):
        k("s_waitcnt", "vmcnt(%d)" % (2 if it == 0 else 2))
        OUT = 64 + 8 * it
        for c in range(8):
            t = 80 + 4 * (c & 3)
            for e in range(2):
                src = IN + 8 * it + 4 * e + (c >> 1)
                if c & 1: k("v_and_b32", v(t + e), "0xffff0000", v(src))
                else: k("v_lshlrev_b32", v(t + e), "16", v(src))
            k("v_pk_mul_f32", v(t + 2, 2), v(t, 2), v(KK + 2 * c, 2), m="op_sel:[0,0] op_sel_hi:[1,0] neg_hi:[1,0]")
            k("v_pk_fma_f32", v(t + 2, 2), v(t, 2), v(KK + 2 * c, 2), v(t + 2, 2), m="op_sel:[1,1,0] op_sel_hi:[0,1,1] neg_lo:[1,0,0] neg_hi:[1,0,0]")
            k("v_cvt_pk_bf16_f32", v(OUT + c), v(t + 2), v(t + 3))
        k("s_lshl_b32", s(35), s(sR2), "1"); k("s_add_u32", s(35), s(35), str(it))
        k("s_and_b32", s(sO), s(35), "7"); k("s_mul_i32", s(sO), s(sO), "5"); k("s_lshr_b32", s(35), s(35), "3"); k("s_add_u32", s(sO), s(sO), s(35))
        k("s_mul_i32", s(sO), s(sO), "40960"); k("s_lshl_b32", s(35), s(sK), "11"); k("s_add_u32", s(sO), s(sO), s(35))
        k("s_add_u32", s(sO), s(sO), str(WS_CP))
        for par in range(2):
            k("buffer_store_dwordx4", v(OUT + 4 * par, 4), v(vSO), s(WS, 4), s(sO), m="offen offset:%d" % (par * 1024))
    k("s_endpgm")

def role_gate(k):
    WS, X, GW = 8, 12, 16
    k("s_load_dwordx2", s(24, 2), s(0, 2), "0")
    k("s_load_dwordx2", s(26, 2), s(0, 2), "96")
    k("s_load_dwordx2", s(6, 2), s(0, 2), "120")
    LANE, vR, vI, vT, vO, vW = 1, 2, 3, 4, 5, 6
    sW, sT, sO = 30, 31, 32
    k("v_lshrrev_b32", v(vT), "6", "v0"); k("v_and_b32", v(LANE), "63", "v0")
    k("v_readfirstlane_b32", s(sW), v(vT))
    k("v_lshrrev_b32", v(vR), "4", v(LANE)); k("v_and_b32", v(vI), "15", v(LANE))
    k("s_sub_u32", s(sT), "s2", str(N_A + N_SCAN + N_PREP))
    k("s_lshl_b32", s(sT), s(sT), "2"); k("s_add_u32", s(sT), s(sT), s(sW)); k("s_lshl_b32", s(sT), s(sT), "4")
    k("v_lshlrev_b32", v(vW), "4", v(vI))
    k("v_mul_u32_u24", v(vO), "1280", v(vR)); k("v_add_u32", v(vO), v(vO), v(vW))
    k("s_mul_i32", s(sO), s(sT), "1280")
    k("s_waitcnt", "lgkmcnt(0)")
    srd(k, WS, 6, WS_SIZE); srd(k, X, 24, 2621440); srd(k, GW, 26, 1280)
    Wt, XX = 16, 40
    for n in range(5): k("buffer_load_dwordx4", v(Wt + 4 * n, 4), v(vW), s(GW, 4), "0", m="offen offset:%d" % (n * 256))
    for it in range(4):
        if it: k("s_add_u32", s(sO), s(sO), "5120")
        for n in range(5): k("buffer_load_dwordx4", v(XX + 20 * it + 4 * n, 4), v(vO), s(X, 4), s(sO), m="offen offset:%d" % (n * 256))
    for it in range(4): k("v_mov_b32", v(8 + it), "0")
    for it in range(4):
        k("s_waitcnt", "vmcnt(%d)" % (15 - 5 * it))
        for r in range(20): k("v_dot2c_f32_bf16", v(8 + it), v(XX + 20 * it + r), v(Wt + r))
    for sh in (8, 4, 2, 1):
        for it in range(4):
            k("v_add_f32_dpp", v(8 + it), v(8 + it), v(8 + it), m="row_ror:%d row_mask:0xf bank_mask:0xf" % sh)
    k("v_lshlrev_b32", v(vO), "2", v(vR))
    k("s_lshl_b32", s(sO), s(sT), "2"); k("s_add_u32", s(sO), s(sO), str(WS_GG))
    for it in range(4): k("v_mul_f32", v(8 + it), f32(-LOG2E), v(8 + it))
    for it in range(4): k("v_exp_f32", v(8 + it), v(8 + it))
    for it in range(4): k("v_add_f32", v(8 + it), "1.0", v(8 + it))
    for it in range(4): k("v_rcp_f32", v(8 + it), v(8 + it))
    for it in range(4): k("buffer_store_dword", v(8 + it), v(vO), s(WS, 4), s(sO), m="offen offset:%d" % (16 * it))
    k("s_endpgm")

def gen_p2():
    k = Kern("p2_kernel")
    tot = N_A + N_SCAN + N_PREP + N_GATE
    k("s_cmp_ge_u32", "s2", str(N_A)); k("s_cbranch_scc1", "P2_NOTA")
    role_a(k)
    k.label("P2_NOTA")
    k("s_cmp_ge_u32", "s2", str(N_A + N_SCAN)); k("s_cbranch_scc1", "P2_NOTS")
    role_scan(k)
    k.label("P2_NOTS")
    k("s_cmp_ge_u32", "s2", str(N_A + N_SCAN + N_PREP)); k("s_cbranch_scc1", "P2_NOTP")
    role_prep(k)
    k.label("P2_NOTP")
    k("s_cmp_ge_u32", "s2", str(tot)); k("s_cbranch_scc1", "P2_END")
    role_gate(k)
    k.label("P2_END")
    k("s_endpgm")
    return k, ("p2_kernel", tot, 256, 32768)
```

```python
from common import *

def gen_p3():
    k = Kern("p3_kernel")
    MM = "v_mfma_f32_16x16x32_bf16"
    RED, TP = 0, 61440
    LDS = TP + 11520
    WS, X, DS, OUT = 8, 12, 16, 20
    k("s_cmp_ge_u32", "s2", "256"); k("s_cbranch_scc1", "P3_END")
    k("s_load_dwordx2", s(6, 2), s(0, 2), "120")
    k("s_load_dwordx2", s(4, 2), s(0, 2), "0")
    k("s_load_dwordx2", s(24, 2), s(0, 2), "88")
    k("s_load_dwordx2", s(26, 2), s(0, 2), "104")
    LANE, vG, vI, vT, vT2, vF = 1, 2, 3, 4, 5, 6
    sW, sSLO, sJ8, sO, sT, sT2 = 30, 31, 32, 33, 34, 35
    k("v_lshrrev_b32", v(vT), "6", "v0"); k("v_and_b32", v(LANE), "63", "v0")
    k("v_readfirstlane_b32", s(sW), v(vT))
    k("v_lshrrev_b32", v(vG), "4", v(LANE)); k("v_and_b32", v(vI), "15", v(LANE))
    k("v_lshlrev_b32", v(vF), "4", v(LANE))
    k("s_bfe_u32", s(sSLO), "s2", "0x20001"); k("s_lshl_b32", s(sSLO), s(sSLO), "3")
    k("s_lshr_b32", s(sT), "s2", "5"); k("s_add_u32", s(sSLO), s(sSLO), s(sT))
    k("s_and_b32", s(sJ8), "s2", "1"); k("s_lshl_b32", s(sJ8), s(sJ8), "2")
    k("s_bfe_u32", s(sT2), "s2", "0x20003"); k("s_add_u32", s(sJ8), s(sJ8), s(sT2))
    sKS = 40
    k("s_mul_i32", s(sT2), s(sT2), "5"); k("s_lshr_b32", s(sT2), s(sT2), "1"); k("s_lshl_b32", s(sKS), s(sT2), "10")
    for i in range(1, 10):
        k("s_add_u32", s(sKS + i), s(sKS + i - 1), "1024")
        k("s_cmp_ge_u32", s(sKS + i), "10240"); k("s_cselect_b32", s(sKS + i), "0", s(sKS + i))
    sDH = 50
    k("s_cmp_ge_u32", s(sT), "5"); k("s_cselect_b32", s(sT2), "5", "0"); k("s_sub_u32", s(sDH), s(sT), s(sT2))
    for i in range(1, 5):
        k("s_add_u32", s(sDH + i), s(sDH + i - 1), "1")
        k("s_cmp_ge_u32", s(sDH + i), "5"); k("s_cselect_b32", s(sDH + i), "0", s(sDH + i))
    sHB, sCB, sUB = 36, 37, 38
    k("s_mul_i32", s(sHB), s(sSLO), "163840"); k("s_mul_i32", s(sT), s(sW), "40960"); k("s_add_u32", s(sHB), s(sHB), s(sT))
    k("s_mul_i32", s(sCB), s(sJ8), "204800"); k("s_mul_i32", s(sT), s(sW), "10240"); k("s_add_u32", s(sCB), s(sCB), s(sT))
    k("s_add_u32", s(sCB), s(sCB), str(WS_CP))
    k("s_lshl_b32", s(sUB), s(sSLO), "9"); k("s_lshl_b32", s(sT), s(sJ8), "6"); k("s_add_u32", s(sUB), s(sUB), s(sT))
    k("s_add_u32", s(sUB), s(sUB), str(WS_UP))
    vH = [7, 8, 9, 10]
    for mu in range(4):
        k("s_add_u32", s(sT), s(sW), str(mu)); k("s_and_b32", s(sT), s(sT), "3"); k("s_lshl_b32", s(56 + mu), s(sT), "10")
        k("v_add_u32", v(vH[mu]), s(56 + mu), v(vF))
    vU, vU2 = 11, 12
    k("v_and_b32", v(vU2), "7", "v0"); k("v_lshlrev_b32", v(vU2), "3", v(vU2))
    k("v_lshrrev_b32", v(vT), "3", "v0"); k("s_mov_b32", s(sT), "81920")
    k("v_mad_u32_u24", v(vU), v(vT), s(sT), v(vU2))
    k("s_waitcnt", "lgkmcnt(0)")
    srd(k, WS, 6, WS_SIZE)
    vm = VM()
    Z = 16
    for q in range(5):
        k("s_add_u32", s(sO), s(sUB), str(q * 16384))
        k("buffer_load_dwordx2", v(Z + 2 * q, 2), v(vU), s(WS, 4), s(sO), m="offen"); vm.issue("U")
    k("s_add_u32", s(sO), s(sUB), str(160 * 16384))
    k("buffer_load_dwordx2", v(Z + 10, 2), v(vU2), s(WS, 4), s(sO), m="offen"); vm.issue("U")
    def ld_h(kk):
        k("s_lshl_b32", s(sO), s(sKS + kk), "2"); k("s_add_u32", s(sO), s(sO), s(sHB))
        for mu in range(4):
            k("buffer_load_dwordx4", a(16 * kk + 4 * mu, 4), v(vH[mu]), s(WS, 4), s(sO), m="offen"); vm.issue("h")
    def cf(n, kk):
        return a(160 + 40 * n + 4 * kk, 4) if n < 2 else v(128 + 40 * (n - 2) + 4 * kk, 4)
    sCN = 60
    def ld_c(f):
        n, kk = divmod(f, 10)
        k("s_add_u32", s(sO), s(sCN + n), s(sKS + kk))
        k("buffer_load_dwordx4", cf(n, kk), v(vF), s(WS, 4), s(sO), m="offen"); vm.issue("c%d" % f)
    for kk in range(2): ld_h(kk)
    srd(k, X, 4, 2621440); srd(k, DS, 24, 1280); srd(k, OUT, 26, 5242880)
    for n in range(5):
        k("s_mul_i32", s(sCN + n), s(sDH + n), "40960"); k("s_add_u32", s(sCN + n), s(sCN + n), s(sCB))
    vXO, vDO, vGO = 13, 14, 15
    XV, DV, GV = 28, 38, 48
    k("s_mov_b32", s(sT), "40960")
    k("v_lshlrev_b32", v(vDO), "3", v(vG))
    k("v_mad_u32_u24", v(vXO), v(vI), s(sT), v(vDO))
    k("v_lshlrev_b32", v(vGO), "7", v(vI))
    sRB, sXB = 65, 66
    k("s_lshl_b32", s(sRB), s(sW), "9"); k("s_add_u32", s(sRB), s(sRB), s(sSLO))
    k("s_mul_i32", s(sXB), s(sRB), "1280")
    sCOL = 70
    for n in range(5):
        k("s_lshl_b32", s(sCOL + n), s(sDH + n), "8"); k("s_lshl_b32", s(sT), s(sJ8), "5"); k("s_add_u32", s(sCOL + n), s(sCOL + n), s(sT))
        k("s_add_u32", s(sO), s(sXB), s(sCOL + n))
        k("buffer_load_dwordx2", v(XV + 2 * n, 2), v(vXO), s(X, 4), s(sO), m="offen"); vm.issue("e")
        k("buffer_load_dwordx2", v(DV + 2 * n, 2), v(vDO), s(DS, 4), s(sCOL + n), m="offen"); vm.issue("e")
    k("s_lshl_b32", s(sO), s(sRB), "2"); k("s_add_u32", s(sO), s(sO), str(WS_GG))
    k("buffer_load_dword", v(GV), v(vGO), s(WS, 4), s(sO), m="offen"); vm.issue("e")
    for kk in range(2, 6): ld_h(kk)
    EF = 50
    TM = 64
    k("s_lshl_b32", s(sT), s(sW), "4")
    k("v_add_u32", v(vT), s(sT), v(vI)); k("v_cvt_f32_u32", v(vT), v(vT)); k("v_mul_f32", v(vT), f32(1 / 64), v(vT))
    k("v_cvt_f32_u32", v(vT2), v(vG)); k("v_mul_f32", v(vT2), "4.0", v(vT2)); k("v_mul_f32", v(vT2), v(vT2), v(vT))
    for e in range(8): k("v_fmamk_f32", v(TM + e), v(vT), f32(16 * (e >> 2) + (e & 3)), v(vT2))
    for e in range(8): k("v_cos_f32", v(TM + 8 + e), v(TM + e))
    for e in range(8): k("v_sin_f32", v(TM + e), v(TM + e))
    for e in range(8): k("v_cvt_pk_bf16_f32", v(EF + e), v(TM + 8 + e), "-" + v(TM + e))
    k("v_lshlrev_b32", v(vT), "31", v(vI)); k("v_or_b32", v(vT), "0x3f003f00", v(vT))
    k("v_cmp_eq_u32", "vcc", "0", v(vG))
    k("v_cndmask_b32", v(EF), v(EF), v(vT), "vcc")
    TA = 58
    k("v_and_b32", v(vT), "7", "v0")
    k("v_lshlrev_b32", v(vT2), "1", v(vT)); k("v_add_u32", v(vT2), s(sJ8), v(vT2)); k("v_mul_u32_u24", v(vT2), "3", v(vT2))
    k("v_mul_u32_u24", v(TM), "205", v(vT2)); k("v_lshrrev_b32", v(TM), "10", v(TM)); k("v_mul_u32_u24", v(TM), "5", v(TM))
    k("v_sub_u32", v(vT2), v(vT2), v(TM)); k("v_mul_u32_u24", v(TA), "2304", v(vT2))
    for e in range(1, 5):
        k("v_add_u32", v(TA + e), "4608", v(TA + e - 1)); k("v_subrev_u32", v(TM), "11520", v(TA + e)); k("v_min_u32", v(TA + e), v(TA + e), v(TM))
    k("v_mul_u32_u24", v(vT), "288", v(vT)); k("v_lshrrev_b32", v(vT2), "3", "v0"); k("v_lshl_add_u32", v(vT), v(vT2), "2", v(vT))
    for e in range(5): k("v_add_u32", v(TA + e), v(TA + e), v(vT))
    sC1, sC2, sN1, sN2 = 76, 78, 80, 82
    for r, val in ((sC1, C1), (sC2, C2), (sN1, N1), (sN2, N2)):
        k("s_mov_b32", s(r), f32(val)); k("s_mov_b32", s(r + 1), f32(val))
    k("s_waitcnt", "vmcnt(%d)" % vm.n_after("U"))
    P = lambda r: v(r, 2)
    regs = []
    for u in range(2):
        b = TM + 28 * u
        L = [b + 2 * q for q in range(5)]
        S1, D1, S2, D2, A1, A2, B1, B2, T0 = [b + 10 + 2 * i for i in range(9)]
        regs.append((L, S1, D1, S2, D2, A1, A2, B1, B2, T0))
        for q in range(5):
            k("v_lshlrev_b32", v(L[q]), "16", v(Z + 2 * q + u)); k("v_and_b32", v(L[q] + 1), "0xffff0000", v(Z + 2 * q + u))
        k("v_pk_add_f32", P(S1), P(L[1]), P(L[4])); k("v_pk_add_f32", P(D1), P(L[1]), P(L[4]), m="neg_lo:[0,1] neg_hi:[0,1]")
        k("v_pk_add_f32", P(S2), P(L[2]), P(L[3])); k("v_pk_add_f32", P(D2), P(L[2]), P(L[3]), m="neg_lo:[0,1] neg_hi:[0,1]")
    k("s_cmp_lg_u32", s(sW), "0"); k("s_cbranch_scc1", "P3_NOSP")
    k("s_mov_b64", "exec", "0xff")
    for u in range(2):
        L, S1, D1, S2, D2 = regs[u][:5]
        k("v_lshlrev_b32", v(L[0] + 1), "16", v(Z + 10 + u))
        for (S_, D_, x_, y_) in ((S1, D1, L[1], L[4]), (S2, D2, L[2], L[3])):
            k("v_add_f32", v(S_), v(x_), v(x_)); k("v_add_f32", v(S_ + 1), v(y_), v(y_))
            k("v_add_f32", v(D_), v(y_ + 1), v(y_ + 1)); k("v_add_f32", v(D_ + 1), v(x_ + 1), v(x_ + 1))
    k("s_mov_b64", "exec", "-1")
    k.label("P3_NOSP")
    ld_h(6); ld_h(7)
    for u in range(2):
        L, S1, D1, S2, D2, A1, A2, B1, B2, T0 = regs[u]
        k("v_pk_add_f32", P(T0), P(L[0]), P(S1))
        k("v_pk_fma_f32", P(A1), P(S1), s(sC1, 2), P(L[0])); k("v_pk_fma_f32", P(A2), P(S1), s(sC2, 2), P(L[0]))
        k("v_pk_mul_f32", P(B1), P(D1), s(sN1, 2)); k("v_pk_mul_f32", P(B2), P(D1), s(sN2, 2))
        k("v_pk_add_f32", P(T0), P(T0), P(S2))
        k("v_pk_fma_f32", P(A1), P(S2), s(sC2, 2), P(A1)); k("v_pk_fma_f32", P(A2), P(S2), s(sC1, 2), P(A2))
        k("v_pk_fma_f32", P(B1), P(D2), s(sN2, 2), P(B1)); k("v_pk_fma_f32", P(B2), P(D2), s(sN1, 2), P(B2), m="neg_lo:[1,0,0] neg_hi:[1,0,0]")
        k("v_pk_add_f32", P(S1), P(A1), P(B1), m="op_sel:[0,1] op_sel_hi:[1,0] neg_lo:[0,1]")
        k("v_pk_add_f32", P(D1), P(A1), P(B1), m="op_sel:[0,1] op_sel_hi:[1,0] neg_hi:[0,1]")
        k("v_pk_add_f32", P(S2), P(A2), P(B2), m="op_sel:[0,1] op_sel_hi:[1,0] neg_lo:[0,1]")
        k("v_pk_add_f32", P(D2), P(A2), P(B2), m="op_sel:[0,1] op_sel_hi:[1,0] neg_hi:[0,1]")
        for e, r in enumerate((T0, S1, S2, D2, D1)):
            k("v_cvt_pk_bf16_f32", v(L[e]), v(r), v(r + 1))
            k("ds_write_b32", v(TA + (e + 4 * u) % 5), v(L[e]), m="offset:%d" % (TP + 144 * u))
    ld_h(8); ld_h(9)
    k("v_mul_u32_u24", v(vT), "144", v(vI)); k("v_lshl_add_u32", v(vT), v(vG), "4", v(vT))
    for n in range(5):
        k("s_mul_i32", s(sT), s(sDH + n), "2304")
        k("v_add_u32", v(TA + n), s(sT), v(vT))
    k("s_waitcnt", "lgkmcnt(0)"); k("s_barrier")
    for n in range(5):
        for q in range(2):
            k("ds_read_b128", v(TM + 8 * n + 4 * q, 4), v(TA + n), m="offset:%d" % (TP + 64 * q))
    for f in range(10): ld_c(f)
    AA = 104
    k("s_waitcnt", "lgkmcnt(0)")
    for q in range(2):
        for n in range(5):
            k(MM, v(AA + 4 * n, 4), v(TM + 8 * n + 4 * q, 4), v(EF + 4 * q, 4), "0" if q == 0 else v(AA + 4 * n, 4))
    OWN = 64
    k("s_waitcnt", "vmcnt(%d)" % vm.n_after("e"))
    for n in range(5):
        for hf in range(2):
            t = 16 + 4 * hf
            k("v_lshlrev_b32", v(t), "16", v(XV + 2 * n + hf)); k("v_and_b32", v(t + 1), "0xffff0000", v(XV + 2 * n + hf))
            k("v_lshlrev_b32", v(t + 2), "16", v(DV + 2 * n + hf)); k("v_and_b32", v(t + 3), "0xffff0000", v(DV + 2 * n + hf))
            k("v_pk_mul_f32", v(OWN + 4 * n + 2 * hf, 2), v(t, 2), v(t + 2, 2))
    GS_, G1 = 50, 52
    k("v_mul_f32", v(GS_), f32(2.0 / (2048 * 640)), v(GV)); k("v_sub_f32", v(G1), "1.0", v(GV))
    for r in range(0, 20, 2):
        k("v_pk_mul_f32", v(AA + r, 2), v(AA + r, 2), v(GS_, 2), m="op_sel_hi:[1,0]")
    for f in range(10, 16): ld_c(f)
    vRW = [None, 54, 55, 56]
    for mu in range(1, 4):
        k("s_mul_i32", s(sT), s(56 + mu), "15"); k("v_add_u32", v(vRW[mu]), s(sT), v(vF))
    OTH = [84, 16]
    for n in range(5):
        o = OTH[n & 1]
        for kk in range(10):
            f = 10 * n + kk
            k("s_waitcnt", "vmcnt(%d)" % vm.n_after("c%d" % f))
            k(MM, v(OWN + 4 * n, 4), cf(n, kk), a(16 * kk, 4), v(OWN + 4 * n, 4))
            for mu in range(1, 4):
                k(MM, v(o + 4 * mu - 4, 4), cf(n, kk), a(16 * kk + 4 * mu, 4), "0" if kk == 0 else v(o + 4 * mu - 4, 4))
            if f + 16 < 50: ld_c(f + 16)
            if kk == 1 and n > 0:
                po = OTH[(n - 1) & 1]
                for mu in range(1, 4):
                    k("ds_write_b128", v(vRW[mu]), v(po + 4 * mu - 4, 4), m="offset:%d" % (RED + (n - 1) * 3072 + (mu - 1) * 1024))
    po = OTH[0]
    for mu in range(1, 4):
        k("ds_write_b128", v(vRW[mu]), v(po + 4 * mu - 4, 4), m="offset:%d" % (RED + 4 * 3072 + (mu - 1) * 1024))
    k("s_mul_i32", s(sT), s(sW), "15360"); k("v_add_u32", v(vT), s(sT), v(vF))
    k("v_lshlrev_b32", v(vXO), "1", v(vXO))
    k("s_lshl_b32", s(sXB), s(sXB), "1")
    k("s_waitcnt", "lgkmcnt(0)"); k("s_barrier")
    RD = 128
    for n in range(5):
        for mu in range(3):
            k("ds_read_b128", v(RD + 12 * n + 4 * mu, 4), v(vT), m="offset:%d" % (RED + n * 3072 + mu * 1024))
    for n in range(5):
        k("s_waitcnt", "lgkmcnt(%d)" % (12 - 3 * n))
        r = RD + 12 * n
        for hf in range(0, 4, 2):
            k("v_pk_add_f32", v(r + hf, 2), v(r + hf, 2), v(r + 4 + hf, 2))
            k("v_pk_add_f32", v(OWN + 4 * n + hf, 2), v(OWN + 4 * n + hf, 2), v(r + 8 + hf, 2))
        for hf in range(0, 4, 2):
            k("v_pk_add_f32", v(OWN + 4 * n + hf, 2), v(OWN + 4 * n + hf, 2), v(r + hf, 2))
        for hf in range(0, 4, 2):
            k("v_pk_fma_f32", v(OWN + 4 * n + hf, 2), v(OWN + 4 * n + hf, 2), v(G1, 2), v(AA + 4 * n + hf, 2), m="op_sel_hi:[1,0,1]")
        k("s_lshl_b32", s(sO), s(sCOL + n), "1"); k("s_add_u32", s(sO), s(sO), s(sXB))
        k("buffer_store_dwordx4", v(OWN + 4 * n, 4), v(vXO), s(OUT, 4), s(sO), m="offen")
    k.label("P3_END")
    k("s_endpgm")
    return k, ("p3_kernel", 256, 256, LDS)
```

```python
import sys
from common import *
from p1 import gen_p1
HDR = open("gated_mix__spectral_gfnet__ssm_conv_s5__prompt.s.ref").read().split("\n")
HDR = [l for l in HDR if l.startswith(";") and "@launch" not in l and "Override" not in l and "grid=ceil" not in l]
def main(out, which):
    ks, ls = [], []
    for g in which:
        k, l = g(); ks.append(k); ls.append(l)
    open(out, "w").write(build_file(HDR, ks, ls))
    for k in ks: print(k.name, "maxv", k.maxv, "maxa", k.maxa, "maxs", k.maxs)
if __name__ == "__main__":
    gens = [gen_p1]
    try:
        from p2 import gen_p2
        gens.append(gen_p2)
        from p3 import gen_p3
        gens.append(gen_p3)
    except ImportError as e:
        print("partial:", e)
    main(sys.argv[1] if len(sys.argv) > 1 else "k.s", gens)
```

```python
from gen import *
from p2 import gen_p2
from p3 import gen_p3
def gen_empty():
    k = Kern("e_kernel"); k("v_mov_b32", "v1", "0"); k("s_mov_b32", "s3", "0"); k("s_endpgm")
    return k, ("e_kernel", 256, 256, 0)
for n in (1, 3):
    ks, ls = [], []
    for g in (gen_p1, gen_p2, gen_p3, gen_empty):
        k, l = g(); ks.append(k); ls.append(l)
    ls = ls[:3] + [ls[3]] * n
    open("k_e%d.s" % n, "w").write(build_file(HDR, ks, ls))
ks, ls = [], []
for g in (gen_p1, gen_p2, gen_p3):
    k, l = g(); ks.append(k); ls.append(l)
open("k_x2.s", "w").write(build_file(HDR, ks, ls + ls))
```

```python
from dsl import *
import math
WS_BU = 0
WS_UU = 5242880
WS_UP = WS_UU + 160 * 16384
WS_CP = WS_UP + 161 * 16384
WS_GG = WS_CP + 1638400
WS_END = WS_GG + 8192
WS_SIZE = 268435456

C1, C2 = math.cos(2 * math.pi / 5), math.cos(4 * math.pi / 5)
N1, N2 = math.sin(2 * math.pi / 5), math.sin(4 * math.pi / 5)

def srd(k, d, ptr, nbytes):
    k("s_mov_b32", s(d), s(ptr)); k("s_mov_b32", s(d + 1), s(ptr + 1))
    k("s_mov_b32", s(d + 2), str(nbytes)); k("s_mov_b32", s(d + 3), "0x20000")

class VM:
    def __init__(self): self.tags = []
    def issue(self, tag): self.tags.append(tag)
    def n_after(self, *need):
        last = max(i for i, t in enumerate(self.tags) if t in need)
        return len(self.tags) - 1 - last

import os
STAMP = bool(int(os.environ.get("STAMP", "0")))
WS_ST = 16 << 20
def stamp(k, i, real=False):
    if not STAMP: return
    k("s_memrealtime" if real else "s_memtime", s(86 + 2 * i, 2))
    k("s_waitcnt", "lgkmcnt(0)")
def stamp_begin(k):
    if not STAMP: return
    for i in range(8): k("s_mov_b32", s(86 + 2 * i), "0")
    stamp(k, 0, True); stamp(k, 1)
def stamp_end(k, ws, kidx, sW):
    if not STAMP: return
    stamp(k, 6)
    k("s_waitcnt", "vmcnt(0)")
    stamp(k, 7, True)
    k("s_lshl_b32", s(85), "s2", "2"); k("s_add_u32", s(85), s(85), s(sW)); k("s_lshl_b32", s(85), s(85), "5")
    k("s_add_u32", s(85), s(85), str(WS_ST + kidx * 65536))
    k("v_mov_b32", "v1", "0")
    for i in range(8):
        k("v_mov_b32", "v2", s(86 + 2 * i))
        k("buffer_store_dword", "v2", "v1", s(ws, 4), s(85), m="offen offset:%d" % (4 * i))
```

```python
from common import *

def gen_p1():
    k = Kern("p1_kernel")
    WT, AR, XR = 0, 102400, 112640
    LDS = XR + 4 * 12288
    X, BW, WS = 8, 12, 16
    k("s_cmp_ge_u32", "s2", "256"); k("s_cbranch_scc1", "P1_END")
    stamp_begin(k)
    k("s_load_dwordx2", s(4, 2), s(0, 2), "0")
    k("s_load_dwordx4", s(24, 4), s(0, 2), "48")
    k("s_load_dwordx2", s(6, 2), s(0, 2), "120")
    LANE, WV = 1, 2
    k("v_and_b32", v(LANE), "63", "v0")
    k("v_lshrrev_b32", v(WV), "6", "v0")
    sW, sPAIR, sJ, sROT, sT0, sT1 = 30, 31, 32, 33, 34, 35
    k("v_readfirstlane_b32", s(sW), v(WV))
    k("s_and_b32", s(sT0), "s2", "7")
    k("s_lshr_b32", s(sT1), "s2", "6")
    k("s_lshr_b32", s(sPAIR), s(sT0), "1"); k("s_lshl_b32", s(sPAIR), s(sPAIR), "2"); k("s_add_u32", s(sPAIR), s(sPAIR), s(sT1))
    k("s_bfe_u32", s(36), "s2", "0x30003")
    k("s_and_b32", s(sJ), s(sT0), "1"); k("s_lshl_b32", s(sJ), s(sJ), "3"); k("s_add_u32", s(sJ), s(sJ), s(36))
    k("s_add_u32", s(sROT), s(sT1), s(36))
    for _ in range(2):
        k("s_cmp_ge_u32", s(sROT), "5"); k("s_cselect_b32", s(37), "5", "0"); k("s_sub_u32", s(sROT), s(sROT), s(37))
    sSC = 40
    k("s_lshl_b32", s(sSC), s(sROT), "8")
    for i in range(1, 5):
        k("s_add_u32", s(sSC + i), s(sSC + i - 1), "256")
        k("s_cmp_ge_u32", s(sSC + i), "1280"); k("s_cselect_b32", s(37), "1280", "0"); k("s_sub_u32", s(sSC + i), s(sSC + i), s(37))
    sSLO, sXB, sWB, sAB, sXL, sWL, sSA, sJ8 = 46, 47, 48, 49, 50, 51, 52, 53
    k("s_lshr_b32", s(37), s(sW), "1")
    k("s_and_b32", s(38), s(sW), "1")
    k("s_lshl_b32", s(sSLO), s(sPAIR), "1"); k("s_add_u32", s(sSLO), s(sSLO), s(37))
    k("s_lshl_b32", s(39), s(38), "10"); k("s_add_u32", s(39), s(39), s(sSLO)); k("s_mul_i32", s(sXB), s(39), "1280")
    k("s_mul_i32", s(sWB), s(sJ), str(40 * 1280)); k("s_lshl_b32", s(39), s(37), "7"); k("s_add_u32", s(sWB), s(sWB), s(39))
    k("s_mul_i32", s(sWL), s(37), "10240"); k("s_mul_i32", s(39), s(38), "5120"); k("s_add_u32", s(sWL), s(sWL), s(39))
    k("s_mul_i32", s(sXL), s(sW), "12288"); k("s_add_u32", s(sXL), s(sXL), str(XR))
    k("s_and_b32", s(sSA), s(sJ), "1"); k("s_lshl_b32", s(39), s(sPAIR), "1"); k("s_add_u32", s(sSA), s(sSA), s(39))
    k("s_lshr_b32", s(sJ8), s(sJ), "1")
    k("s_mul_i32", s(sAB), s(sSA), "1280"); k("s_mul_i32", s(39), s(38), str(32 * 40960)); k("s_add_u32", s(sAB), s(sAB), s(39))
    k("s_lshl_b32", s(39), s(37), "8"); k("s_add_u32", s(sAB), s(sAB), s(39))
    k("s_lshl_b32", s(39), s(sJ8), "5"); k("s_add_u32", s(sAB), s(sAB), s(39))
    sK40 = 54
    k("s_mov_b32", s(sK40), "40960")
    vX0, vX1, vWO, vAO, vT, vT2 = 3, 4, 5, 6, 7, 8
    k("v_lshrrev_b32", v(vT), "3", v(LANE))
    k("v_lshrrev_b32", v(vT2), "4", v(LANE))
    k("v_and_b32", v(vX0), "7", v(LANE))
    k("v_xor_b32", v(vX0), v(vX0), v(vT2))
    k("v_lshlrev_b32", v(vX0), "4", v(vX0))
    k("v_mad_u32_u24", v(vX0), v(vT), s(sK40), v(vX0))
    k("v_xor_b32", v(vX1), "64", v(vX0))
    k("v_and_b32", v(vWO), "6", v(vT))
    k("v_xor_b32", v(vWO), v(vWO), v(LANE))
    k("v_xor_b32", v(vWO), s(38), v(vWO))
    k("v_and_b32", v(vWO), "7", v(vWO))
    k("v_lshlrev_b32", v(vWO), "4", v(vWO))
    k("v_mul_u32_u24", v(vT), "1280", v(vT))
    k("v_add_u32", v(vWO), v(vWO), v(vT))
    k("v_lshrrev_b32", v(vT), "1", v(LANE))
    k("v_and_b32", v(vAO), "1", v(LANE)); k("v_lshlrev_b32", v(vAO), "4", v(vAO))
    k("v_mad_u32_u24", v(vAO), v(vT), s(sK40), v(vAO))
    k("s_waitcnt", "lgkmcnt(0)")
    srd(k, X, 4, 2621440)
    k("s_cmp_eq_u32", s(38), "0")
    k("s_cselect_b32", s(BW), s(24), s(26)); k("s_cselect_b32", s(BW + 1), s(25), s(27))
    k("s_mov_b32", s(BW + 2), "819200"); k("s_mov_b32", s(BW + 3), "0x20000")
    srd(k, WS, 6, WS_SIZE)
    vm = VM()
    sO = 56
    def dma(srdn, voff, sbase, goff, lbase, loff, tag, sc=None):
        if isinstance(lbase, int): k("s_add_u32", "m0", s(lbase), str(loff))
        else: k("s_mov_b32", "m0", str(loff))
        if sc is None:
            k("s_add_u32", s(sO), s(sbase), str(goff))
        else:
            k("s_add_u32", s(sO), s(sbase), s(sc))
            if goff: k("s_add_u32", s(sO), s(sO), str(goff))
        k("buffer_load_dwordx4", v(voff), s(srdn, 4), s(sO), m="offen lds")
        vm.issue(tag)
    sAL = 57
    k("s_lshl_b32", s(sAL), s(sW), "10"); k("s_add_u32", s(sAL), s(sAL), str(AR))
    k("s_cmp_ge_u32", s(sW), "2"); k("s_cbranch_scc1", "P1_A2")
    dma(X, vAO, sAB, 1024, sAL, 8192, "A")
    k.label("P1_A2")
    dma(X, vAO, sAB, 0, sAL, 0, "A")
    dma(X, vAO, sAB, 512, sAL, 4096, "A")
    sXC, sWC = 58, 59
    def ld_x(c):
        k("s_add_u32", s(sXC), s(sXB), s(sSC + c // 2))
        for q in range(4):
            dma(X, vX1 if q & 1 else vX0, sXC, q * 8 * 40960 + (c & 1) * 128, sXL, (c % 3) * 4096 + q * 1024, "x%d" % c)
    def ld_w(sc):
        k("s_add_u32", s(sWC), s(sWB), s(sSC + sc))
        for t in range(5):
            dma(BW, vWO, sWC, t * 8 * 1280, sWL, WT + sc * 20480 + t * 1024, "w%d" % sc)
    ld_x(0); ld_w(0); ld_x(1); ld_x(2); ld_w(1)

    stamp(k, 2)
    vG, vI = 9, 10
    k("v_lshrrev_b32", v(vG), "4", v(LANE)); k("v_and_b32", v(vI), "15", v(LANE))
    vRW0, vRW1, vRX0, vRX1, vRA = 11, 12, 13, 14, 15
    k("v_lshrrev_b32", v(vT), "1", v(vI))
    k("v_and_b32", v(vT2), "1", v(vI))
    k("v_and_b32", v(vRW0), "6", v(vT)); k("v_xor_b32", v(vRW0), v(vRW0), v(vT2)); k("v_xor_b32", v(vRW0), v(vRW0), v(vG))
    k("v_lshlrev_b32", v(vRW0), "4", v(vRW0))
    k("v_lshl_add_u32", v(vRW0), v(vT), "7", v(vRW0))
    k("v_mul_u32_u24", v(vT2), "5120", v(vT2)); k("v_add_u32", v(vRW0), v(vRW0), v(vT2))
    k("v_xor_b32", v(vRW1), "64", v(vRW0))
    k("v_xor_b32", v(vRX0), v(vT), v(vG)); k("v_lshlrev_b32", v(vRX0), "4", v(vRX0))
    k("v_lshl_add_u32", v(vRX0), v(vI), "7", v(vRX0)); k("v_add_u32", v(vRX0), s(sXL), v(vRX0))
    k("v_xor_b32", v(vRX1), "64", v(vRX0))
    k("v_lshlrev_b32", v(vRA), "3", v(LANE)); k("v_add_u32", v(vRA), str(AR), v(vRA))

    vMF, vBS = 16, 17
    FA = 20
    k("s_lshl_b32", s(39), s(sW), "3")
    k("v_add_u32", v(vMF), s(39), v(vT))
    k("v_and_b32", v(vT2), "1", v(vI))
    k("v_cvt_f32_u32", v(vBS), v(vT2)); k("v_mul_f32", v(vBS), "0.25" if False else f32(0.25), v(vBS))
    k("v_lshl_add_u32", v(vT2), v(vMF), "1", v(vT2))
    k("v_cmp_eq_u32", "vcc", "1", v(vT2))
    k("v_cndmask_b32", v(vMF), v(vMF), "32", "vcc")
    k("v_cndmask_b32", v(vBS), v(vBS), "0", "vcc")
    k("v_cvt_f32_u32", v(vMF), v(vMF)); k("v_mul_f32", v(vMF), f32(1 / 64), v(vMF))
    k("v_cvt_f32_u32", v(vT2), v(vG)); k("v_mul_f32", v(vT2), "4.0", v(vT2))
    k("v_fmac_f32", v(vBS), v(vMF), v(vT2))
    TM = 28
    for ks in range(2):
        for e in range(8):
            const = 32 * ks + 16 * (e >> 2) + (e & 3)
            k("v_fmamk_f32", v(TM + 8 * ks + e), v(vMF), f32(const), v(vBS))
    for e in range(16): k("v_cos_f32", v(TM + e), v(TM + e))
    for e in range(8): k("v_cvt_pk_bf16_f32", v(FA + e), v(TM + 2 * e), v(TM + 2 * e + 1))
    TW1, TW2 = 44, 46
    k("s_lshl_b32", s(39), s(sJ8), "4")
    k("v_add_u32", v(vT2), s(39), v(vI)); k("v_cvt_f32_u32", v(vT2), v(vT2))
    k("v_mul_f32", v(TW1), f32(0.2), v(vT2)); k("v_mul_f32", v(TW2), f32(0.4), v(vT2))
    k("v_sin_f32", v(TW1 + 1), v(TW1)); k("v_sin_f32", v(TW2 + 1), v(TW2))
    k("v_cos_f32", v(TW1), v(TW1)); k("v_cos_f32", v(TW2), v(TW2))
    sC1, sC2, sN1, sN2 = 60, 62, 64, 66
    for r, val in ((sC1, C1), (sC2, C2), (sN1, N1), (sN2, N2)):
        k("s_mov_b32", s(r), f32(val)); k("s_mov_b32", s(r + 1), f32(val))
    sSP = 68
    k("s_cmp_eq_u32", s(sW), "0"); k("s_cselect_b32", s(sSP), "0xffff", "0"); k("s_mov_b32", s(sSP + 1), "0")

    k("s_waitcnt", "vmcnt(%d)" % vm.n_after("A")); k("s_barrier")
    stamp(k, 3)
    XT = 48
    AC = 88
    for dh in range(5):
        for ks in range(2):
            for hf in range(2):
                k("ds_read_b64_tr_b16", v(XT + 8 * dh + 4 * ks + 2 * hf, 2), v(vRA), m="offset:%d" % (dh * 2048 + ks * 1024 + hf * 512))
        if dh == 2: k("s_waitcnt", "lgkmcnt(4)")
    k("s_waitcnt", "lgkmcnt(0)")
    for ks in range(2):
        for dh in range(5):
            k("v_mfma_f32_16x16x32_bf16", v(AC + 4 * dh, 4), v(FA + 4 * ks, 4), v(XT + 8 * dh + 4 * ks, 4), "0" if ks == 0 else v(AC + 4 * dh, 4))
    UO = 108
    R = 48
    for vv in range(2):
        T = lambda dh: v(AC + 4 * dh + 2 * vv, 2)
        b = R + 20 * vv
        S1, D1, S2, D2, A1, A2, B1, B2, U0, Z = [b + 2 * i for i in range(10)]
        P = lambda r: v(r, 2)
        k("v_pk_add_f32", P(S1), T(1), T(4)); k("v_pk_add_f32", P(D1), T(1), T(4), m="neg_lo:[0,1] neg_hi:[0,1]")
        k("v_pk_add_f32", P(S2), T(2), T(3)); k("v_pk_add_f32", P(D2), T(2), T(3), m="neg_lo:[0,1] neg_hi:[0,1]")
        k("v_pk_add_f32", P(U0), T(0), P(S1))
        k("v_pk_fma_f32", P(A1), P(S1), s(sC1, 2), T(0)); k("v_pk_fma_f32", P(A2), P(S1), s(sC2, 2), T(0))
        k("v_pk_mul_f32", P(B1), P(D1), s(sN1, 2)); k("v_pk_mul_f32", P(B2), P(D1), s(sN2, 2))
        k("v_pk_add_f32", P(U0), P(U0), P(S2))
        k("v_pk_fma_f32", P(A1), P(S2), s(sC2, 2), P(A1)); k("v_pk_fma_f32", P(A2), P(S2), s(sC1, 2), P(A2))
        k("v_pk_fma_f32", P(B1), P(D2), s(sN2, 2), P(B1)); k("v_pk_fma_f32", P(B2), P(D2), s(sN1, 2), P(B2), m="neg_lo:[1,0,0] neg_hi:[1,0,0]")
        k("v_pk_add_f32", P(S1), P(A1), P(B1), m="op_sel:[0,1] op_sel_hi:[1,0] neg_hi:[0,1]")
        k("v_pk_add_f32", P(D1), P(A1), P(B1), m="op_sel:[0,1] op_sel_hi:[1,0] neg_lo:[0,1]")
        k("v_pk_add_f32", P(S2), P(A2), P(B2), m="op_sel:[0,1] op_sel_hi:[1,0] neg_hi:[0,1]")
        k("v_pk_add_f32", P(D2), P(A2), P(B2), m="op_sel:[0,1] op_sel_hi:[1,0] neg_lo:[0,1]")
        if vv == 0:
            sp = s(sSP, 2)
            k("v_cndmask_b32", v(S1), v(S1), v(A1), sp); k("v_cndmask_b32", v(S1 + 1), v(S1 + 1), "-" + v(B1), sp)
            k("v_cndmask_b32", v(D1), v(D1), v(A1 + 1), sp); k("v_cndmask_b32", v(D1 + 1), v(D1 + 1), v(B1 + 1), sp)
            k("v_cndmask_b32", v(S2), v(S2), v(A2 + 1), sp); k("v_cndmask_b32", v(S2 + 1), v(S2 + 1), "-" + v(B2 + 1), sp)
            k("v_cndmask_b32", v(D2), v(D2), v(A2), sp); k("v_cndmask_b32", v(D2 + 1), v(D2 + 1), v(B2), sp)
        k("v_cvt_pk_bf16_f32", v(UO + 5 * vv), v(U0), v(U0 + 1))
        for q, src, tw, cj, dst in ((1, D2, TW1, False, A1), (2, S1, TW2, False, A2), (3, D1, TW2, True, B1), (4, S2, TW1, True, B2)):
            k("v_pk_mul_f32", P(dst), P(src), P(tw), m="op_sel:[0,0] op_sel_hi:[1,0]")
            k("v_pk_fma_f32", P(dst), P(src), P(tw), P(dst), m="op_sel:[1,1,0] op_sel_hi:[0,1,1] " + ("neg_lo:[0,1,0]" if cj else "neg_hi:[0,1,0]"))
        for q, dst in ((1, A1), (2, A2), (3, B1), (4, B2)):
            k("v_cvt_pk_bf16_f32", v(UO + 5 * vv + q), v(dst), v(dst + 1))
    vSEL = 18
    k("v_and_b32", v(vT2), "1", v(vI)); k("v_cmp_eq_u32", "vcc", "1", v(vT2))
    k("v_mov_b32", v(vSEL), "0x05040100"); k("v_mov_b32", v(vT), "0x03020706")
    k("v_cndmask_b32", v(vSEL), v(vSEL), v(vT), "vcc")
    for n in range(10):
        k("v_mov_b32_dpp", v(R + n), v(UO + n), m="quad_perm:[1,0,3,2] row_mask:0xf bank_mask:0xf")
    for n in range(10):
        k("v_perm_b32", v(UO + n), v(R + n), v(UO + n), v(vSEL))

    stamp(k, 4)
    ACC = 120
    FX0, FW0 = 48, 56
    FX1 = [76, 160]; FW1 = [84, 168]
    first = {}
    def mm(fx, fw, lst=None):
        for t in range(5):
            for nt in range(2):
                acc = v(ACC + 8 * t + 4 * nt, 4)
                c = acc if first.get((t, nt)) else "0"
                first[(t, nt)] = True
                k("v_mfma_f32_16x16x32_bf16", acc, v(fw + 4 * t, 4), v(fx + 4 * nt, 4), c)
    for c in range(10):
        needs = ["x%d" % c] + (["w%d" % (c // 2)] if c % 2 == 0 else [])
        k("s_waitcnt", "vmcnt(%d) lgkmcnt(0)" % vm.n_after(*needs))
        if c % 2 == 0: k("s_barrier")
        if c == 5:
            k("v_add_u32", v(vRW0), "51200", v(vRW0)); k("v_add_u32", v(vRW1), "51200", v(vRW1))
        wo = (c % 5) * 10240
        xo = (c % 3) * 4096
        p = c & 1
        for nt in range(2): k("ds_read_b128", v(FX0 + 4 * nt, 4), v(vRX0), m="offset:%d" % (xo + nt * 2048))
        for nt in range(2): k("ds_read_b128", v(FX1[p] + 4 * nt, 4), v(vRX1), m="offset:%d" % (xo + nt * 2048))
        for t in range(5): k("ds_read_b128", v(FW0 + 4 * t, 4), v(vRW0), m="offset:%d" % (wo + t * 1024))
        for t in range(5): k("ds_read_b128", v(FW1[p] + 4 * t, 4), v(vRW1), m="offset:%d" % (wo + t * 1024))
        if c > 0: mm(FX1[1 - p], FW1[1 - p])
        k("s_waitcnt", "lgkmcnt(10)")
        if c + 3 < 10: ld_x(c + 3)
        if c % 2 == 1 and (c + 3) // 2 < 5: ld_w((c + 3) // 2)
        k("s_waitcnt", "lgkmcnt(5)")
        mm(FX0, FW0)
    k("s_waitcnt", "lgkmcnt(0)")
    mm(FX1[1], FW1[1])
    stamp(k, 5)
    vUO, vBO = 3, 4
    k("v_mul_u32_u24", v(vUO), str(2 * 5), v(vG)); k("v_lshlrev_b32", v(vUO), "14", v(vUO))
    k("v_and_b32", v(vT), "1", v(vI)); k("v_lshl_add_u32", v(vUO), v(vT), "13", v(vUO))
    k("v_bfe_u32", v(vT), v(vI), "2", "1"); k("v_lshl_add_u32", v(vUO), v(vT), "4", v(vUO))
    k("v_lshrrev_b32", v(vT), "3", v(vI)); k("v_lshl_add_u32", v(vUO), v(vT), "3", v(vUO))
    k("v_and_b32", v(vT), "2", v(vI)); k("v_lshl_add_u32", v(vUO), v(vT), "1", v(vUO))
    sUB = 58
    k("s_mul_i32", s(sUB), s(sW), str(8 * 81920)); k("s_lshl_b32", s(39), s(sJ8), "10"); k("s_add_u32", s(sUB), s(sUB), s(39))
    k("s_lshl_b32", s(39), s(sSA), "5"); k("s_add_u32", s(sUB), s(sUB), s(39))
    for vv in range(2):
        for q in range(5):
            k("s_add_u32", s(sO), s(sUB), str(WS_UU + vv * 81920 + q * 16384))
            k("buffer_store_dword", v(UO + 5 * vv + q), v(vUO), s(WS, 4), s(sO), m="offen")
    k("v_lshrrev_b32", v(vBO), "1", v(vG)); k("v_lshlrev_b32", v(vBO), "12", v(vBO))
    k("v_lshl_add_u32", v(vBO), v(vI), "4", v(vBO))
    k("v_and_b32", v(vT), "1", v(vG)); k("v_lshl_add_u32", v(vBO), v(vT), "3", v(vBO))
    sBB, sTT = 59, 57
    k("s_mul_i32", s(sBB), s(sSLO), "163840"); k("s_lshl_b32", s(39), s(38), "11"); k("s_add_u32", s(sBB), s(sBB), s(39))
    k("s_mul_i32", s(sTT), s(sJ), "5")
    for t in range(5):
        k("s_add_u32", s(39), s(sTT), str(t))
        k("s_lshr_b32", s(sO), s(39), "2"); k("s_lshl_b32", s(sO), s(sO), "13")
        k("s_and_b32", s(39), s(39), "3"); k("s_lshl_b32", s(39), s(39), "8")
        k("s_add_u32", s(sO), s(sO), s(39)); k("s_add_u32", s(sO), s(sO), s(sBB))
        for nt in range(2):
            r = ACC + 8 * t + 4 * nt
            o = 48 + 4 * t + 2 * nt
            k("v_cvt_pk_bf16_f32", v(o), v(r), v(r + 1)); k("v_cvt_pk_bf16_f32", v(o + 1), v(r + 2), v(r + 3))
            k("buffer_store_dwordx2", v(o, 2), v(vBO), s(WS, 4), s(sO), m="offen offset:%d" % (WS_BU + nt * 1024))
    stamp_end(k, WS, 0, sW)
    k.label("P1_END")
    k("s_endpgm")
    return k, ("p1_kernel", 256, 256, LDS)
```

```python
from common import *
LOG2E = 1.4426950408889634
INV2PI = 0.15915494309189535
N_A, N_SCAN, N_PREP, N_GATE = 161, 80, 100, 32

def lam_calc(k, lre, lim, ldt, zr, zi, t0):
    k("v_mul_f32", v(t0), f32(LOG2E), v(ldt))
    k("v_exp_f32", v(t0), v(t0))
    k("v_cvt_pk_bf16_f32", v(t0), v(t0), v(t0))
    k("v_and_b32", v(t0), "0xffff0000", v(t0))
    k("v_mul_f32", v(zr), v(t0), v(lre)); k("v_mul_f32", v(zi), v(t0), v(lim))
    k("v_mul_f32", v(zr), f32(LOG2E), v(zr)); k("v_mul_f32", v(zi), f32(INV2PI), v(zi))

def cexp(k, dst, zr, zi, t0):
    k("v_fract_f32", v(t0), v(zi))
    k("v_exp_f32", v(t0 + 1), v(zr))
    k("v_cos_f32", v(dst), v(t0)); k("v_sin_f32", v(dst + 1), v(t0))
    k("v_mul_f32", v(dst), v(dst), v(t0 + 1)); k("v_mul_f32", v(dst + 1), v(dst + 1), v(t0 + 1))

def cmac(k, dst, l, h, u, tmp=None):
    t = dst if tmp is None else tmp
    k("v_pk_fma_f32", v(t, 2), v(h, 2), v(l, 2), v(u, 2), m="op_sel:[0,0,0] op_sel_hi:[1,0,1]")
    k("v_pk_fma_f32", v(dst, 2), v(h, 2), v(l, 2), v(t, 2), m="op_sel:[1,1,0] op_sel_hi:[0,1,1] neg_lo:[0,1,0]")

def csq(k, dst, a, tmp):
    k("v_pk_mul_f32", v(tmp, 2), v(a, 2), v(a, 2), m="op_sel:[0,0] op_sel_hi:[1,0]")
    k("v_pk_fma_f32", v(dst, 2), v(a, 2), v(a, 2), v(tmp, 2), m="op_sel:[1,1,0] op_sel_hi:[0,1,1] neg_lo:[0,1,0]")

def gen16(k, step, base, oc, os_, on, tmp):
    for q in range(2):
        for e in range(8):
            k("v_fmamk_f32", v(tmp + e), v(step), f32(16 * q + 8 * (e >> 2) + (e & 3)), v(base))
        for e in range(8): k("v_cos_f32", v(tmp + 8 + e), v(tmp + e))
        for e in range(8): k("v_sin_f32", v(tmp + e), v(tmp + e))
        for e in range(4): k("v_cvt_pk_bf16_f32", v(oc + 4 * q + e), v(tmp + 8 + 2 * e), v(tmp + 9 + 2 * e))
        for e in range(4): k("v_cvt_pk_bf16_f32", v(os_ + 4 * q + e), v(tmp + 2 * e), v(tmp + 1 + 2 * e))
        if on is not None:
            for e in range(4): k("v_cvt_pk_bf16_f32", v(on + 4 * q + e), "-" + v(tmp + 2 * e), "-" + v(tmp + 1 + 2 * e))

def role_a(k):
    WS, WR_, WI_ = 8, 12, 16
    MM = "v_mfma_f32_32x32x16_bf16"
    k("s_load_dwordx4", s(24, 4), s(0, 2), "8")
    k("s_load_dwordx2", s(6, 2), s(0, 2), "120")
    LANE, vH, vL5, vT, vT2 = 1, 2, 3, 4, 5
    sW, sM, sQ, sU, sP0, sP1, sO = 30, 31, 32, 33, 34, 35, 36
    k("v_lshrrev_b32", v(vT), "6", "v0")
    k("v_and_b32", v(LANE), "63", "v0")
    k("v_readfirstlane_b32", s(sW), v(vT))
    k("v_lshrrev_b32", v(vH), "5", v(LANE)); k("v_and_b32", v(vL5), "31", v(LANE))
    k("s_lshr_b32", s(37), "s2", "3")
    k("s_mul_i32", s(38), s(37), "52"); k("s_lshr_b32", s(38), s(38), "8")
    k("s_mul_i32", s(39), s(38), "5"); k("s_sub_u32", s(sQ), s(37), s(39))
    k("s_and_b32", s(sM), "s2", "7"); k("s_lshl_b32", s(38), s(38), "3"); k("s_add_u32", s(sM), s(sM), s(38))
    k("s_mul_i32", s(sU), s(sM), "5"); k("s_add_u32", s(sU), s(sU), s(sQ))
    k("s_lshl_b32", s(sP0), s(sU), "14"); k("s_add_u32", s(sP0), s(sP0), str(WS_UU))
    k("s_add_u32", s(sP1), s(sP0), "8192")
    k("s_cmp_eq_u32", s(sU), "0"); k("s_cselect_b32", s(sP1), "0x40000000", s(sP1))
    k("s_cmp_eq_u32", s(sU), "160"); k("s_cselect_b32", s(sP1), "0x40000000", s(sP1)); k("s_cselect_b32", s(sP0), str(WS_UU + 8192), s(sP0))
    k("s_sub_u32", s(37), s(sU), "3"); k("s_cmp_lt_u32", s(37), "2"); k("s_cselect_b32", s(sM), "32", s(sM))
    vUO = 6
    k("v_lshlrev_b32", v(vUO), "5", v(vL5)); k("v_lshl_add_u32", v(vUO), v(vH), "4", v(vUO))
    k("s_lshl_b32", s(37), s(sW), "11")
    k("s_add_u32", s(sP0), s(sP0), s(37)); k("s_add_u32", s(sP1), s(sP1), s(37))
    k("s_lshl_b32", s(38), s(sW), "12")
    k("s_waitcnt", "lgkmcnt(0)")
    srd(k, WS, 6, WS_SIZE)
    vm = VM()
    for kk in range(2):
        for pl in range(2):
            k("s_add_u32", "m0", s(38), str(kk * 2048 + pl * 1024))
            k("s_add_u32", s(sO), s(sP1 if pl else sP0), str(kk * 1024))
            k("buffer_load_dwordx4", v(vUO), s(WS, 4), s(sO), m="offen lds"); vm.issue("U")
    srd(k, WR_, 24, 1314816 + 4); srd(k, WI_, 26, 1314816 + 4)
    GC, GS, OP, P0, P1, P2 = 16, 48, 80, 112, 128, 144
    FC, FS, FN, F2C, F2S, F2N, WR, WI, TMP = 160, 168, 176, 184, 192, 200, 208, 224, 240
    vN0, vK2, vO0, vST, vSG = 7, 8, 9, 10, 11
    k("s_lshl_b32", s(37), s(sW), "5")
    k("v_add_u32", v(vN0), s(37), v(vL5))
    k("s_lshl_b32", s(39), s(sQ), "7")
    k("v_mul_u32_u24", v(vK2), "5", v(vN0)); k("v_add_u32", v(vK2), s(39), v(vK2))
    k("v_subrev_u32", v(vT), "640", v(vK2)); k("v_min_u32", v(vK2), v(vK2), v(vT))
    k("v_cmp_lt_u32", "vcc", "320", v(vK2))
    k("v_sub_u32", v(vT), "640", v(vK2))
    k("v_cndmask_b32", v(vK2), v(vK2), v(vT), "vcc")
    k("v_lshlrev_b32", v(vT), "8", v(vH)); k("v_add_u32", v(vT), s(sM), v(vT))
    k("v_sub_u32", v(vT2), "2048", v(vT))
    k("v_cndmask_b32", v(vT), v(vT), v(vT2), "vcc")
    k("v_mov_b32", v(vST), "41088"); k("v_mov_b32", v(vT2), "-41088")
    k("v_cndmask_b32", v(vST), v(vST), v(vT2), "vcc")
    k("v_mov_b32", v(vSG), "0"); k("v_bfrev_b32", v(vT2), "1")
    k("v_cndmask_b32", v(vSG), v(vSG), v(vT2), "vcc")
    k("v_lshlrev_b32", v(vK2), "1", v(vK2))
    k("s_movk_i32", s(40), "642")
    k("v_mad_u32_u24", v(vO0), v(vT), s(40), v(vK2))
    k("v_and_b32", v(vT), "2047", v(vT))
    k("v_mad_u32_u24", v(TMP), v(vT), s(40), v(vK2))
    for r in range(32): k("v_mov_b32", v(WR + r), "0")
    for rho in range(16):
        rp = 8 * (rho >> 2) + (rho & 3)
        ad = TMP + (rho & 3)
        if rho: k("v_mad_i32_i24", v(ad), v(vST), str(rp), v(vO0))
        k("buffer_load_short_d16_hi", v(WR + rho), v(ad), s(WR_, 4), "0", m="offen"); vm.issue("W")
        k("buffer_load_short_d16_hi", v(WI + rho), v(ad), s(WI_, 4), "0", m="offen"); vm.issue("W")
    vSR, vSI, vMR, vMI = 12, 13, 14, 15
    k("v_and_b32", v(vT), "12", v(LANE)); k("v_lshlrev_b32", v(vT), "1", v(vT))
    k("v_and_b32", v(vT2), "3", v(LANE)); k("v_add_u32", v(vT), v(vT), v(vT2))
    k("v_lshl_add_u32", v(vT), v(vH), "2", v(vT))
    k("v_lshlrev_b32", v(vT), "6", v(vT)); k("v_add_u32", v(vT), s(sM), v(vT))
    k("v_sub_u32", v(vT2), "2048", v(vT)); k("v_and_b32", v(vT2), "2047", v(vT2))
    k("v_mul_u32_u24", v(vT), "642", v(vT)); k("v_mul_u32_u24", v(vT2), "642", v(vT2))
    k("s_and_b32", s(41), s(sW), "2"); k("s_mul_i32", s(41), s(41), "320")
    k("buffer_load_ushort", v(vSR), v(vT), s(WR_, 4), s(41), m="offen"); vm.issue("W")
    k("buffer_load_ushort", v(vSI), v(vT), s(WI_, 4), s(41), m="offen"); vm.issue("W")
    k("buffer_load_ushort", v(vMR), v(vT2), s(WR_, 4), s(41), m="offen"); vm.issue("W")
    k("buffer_load_ushort", v(vMI), v(vT2), s(WI_, 4), s(41), m="offen"); vm.issue("W")
    vSTP, vBS = 8, 9
    k("v_cvt_f32_u32", v(vSTP), v(vN0)); k("v_mul_f32", v(vSTP), f32(1 / 128), v(vSTP))
    vH4 = 10
    k("v_cvt_f32_u32", v(vH4), v(vH)); k("v_mul_f32", v(vH4), "4.0", v(vH4))
    k("v_mul_f32", v(vBS), v(vSTP), v(vH4))
    gen16(k, vSTP, vBS, GC, GS, None, TMP)
    vODD, vMC, vMS, vM64 = TMP, TMP + 1, TMP + 2, TMP + 3
    k("s_mov_b32", s(42), "0x80008000")
    k("v_bfe_i32", v(vODD), v(vN0), "0", "1")
    k("v_and_b32", v(vM64), s(42), v(vODD))
    k("v_bfe_i32", v(vMS), v(vN0), "1", "1"); k("v_and_b32", v(vMS), s(42), v(vMS))
    k("v_xor_b32", v(vMC), v(vMS), v(vM64))
    for r in range(8):
        k("v_bfi_b32", v(GC + 8 + r), v(vODD), v(GS + r), v(GC + r))
        k("v_bfi_b32", v(GS + 8 + r), v(vODD), v(GC + r), v(GS + r))
    for r in range(8):
        k("v_xor_b32", v(GC + 8 + r), v(vMC), v(GC + 8 + r))
        k("v_xor_b32", v(GS + 8 + r), v(vMS), v(GS + 8 + r))
    for r in range(16):
        k("v_xor_b32", v(GC + 16 + r), v(vM64), v(GC + r))
        k("v_xor_b32", v(GS + 16 + r), v(vM64), v(GS + r))
    cap = Cap()
    cap("v_lshlrev_b32", v(vT), "6", v(vL5)); cap("v_add_u32", v(vT), s(sM), v(vT))
    cap("v_cvt_f32_u32", v(vSTP), v(vT)); cap("v_mul_f32", v(vSTP), f32(1 / 2048), v(vSTP))
    cap("v_mul_f32", v(vBS), v(vSTP), v(vH4))
    gen16(cap, vSTP, vBS, FC, FS, FN, TMP)
    cap("v_cvt_f32_u32", v(vSTP), v(vL5)); cap("v_mul_f32", v(vSTP), f32(1 / 32), v(vSTP))
    cap("v_cvt_f32_u32", v(vT), s(sM)); cap("v_fmamk_f32", v(vT), v(vT), f32(1 / 64), v(vH4))
    cap("v_mul_f32", v(vBS), v(vSTP), v(vT))
    gen16(cap, vSTP, vBS, F2C, F2S, F2N, TMP)
    vRD = 6
    k("v_lshlrev_b32", v(vRD), "4", v(LANE))
    stamp(k, 2)
    k("s_waitcnt", "vmcnt(%d)" % vm.n_after("U")); k("s_barrier")
    stamp(k, 3)
    def big_stage(base, first_is_A, cap):
        def rd(ks):
            for pl in range(2):
                k("ds_read_b128", v(OP + 8 * (ks & 3) + 4 * pl, 4), v(vRD), m="offset:%d" % (base + ks * 2048 + pl * 1024))
        for ks in range(4): rd(ks)
        for ks in range(8):
            out = min(7, ks + 3) - ks
            k("s_waitcnt", "lgkmcnt(%d)" % (2 * out))
            re, im = v(OP + 8 * (ks & 3), 4), v(OP + 8 * (ks & 3) + 4, 4)
            gc, gs = v(GC + 4 * ks, 4), v(GS + 4 * ks, 4)
            z = ks == 0
            if first_is_A:
                seq = [(P0, re, gc, z), (P1, im, gc, z), (P2, re, gs, z), (P0, im, gs, False)]
            else:
                seq = [(P0, gc, re, z), (P1, gc, im, z), (P2, gs, im, z), (P1, gs, re, False)]
            for (d, a_, b_, zz) in seq:
                k(MM, v(d, 16), a_, b_, "0" if zz else v(d, 16))
                if cap is not None: cap.drain(k, 24)
            if ks + 4 < 8: rd(ks + 4)
    big_stage(0, True, cap)
    cap.drain(k)
    stamp(k, 4)
    k("s_waitcnt", "vmcnt(0)")
    for r in range(16): k("v_xor_b32", v(WI + r), v(vSG), v(WI + r))
    VR, VI, YR, YI = 80, 88, 96, 104
    for r in range(0, 16, 2):
        k("v_pk_add_f32", v(P1 + r, 2), v(P1 + r, 2), v(P2 + r, 2), m="neg_lo:[0,1] neg_hi:[0,1]")
    for r in range(8): k("v_cvt_pk_bf16_f32", v(VR + r), v(P0 + 2 * r), v(P0 + 2 * r + 1))
    for r in range(8): k("v_cvt_pk_bf16_f32", v(VI + r), v(P1 + 2 * r), v(P1 + 2 * r + 1))
    for q in range(2):
        k(MM, v(P0, 16), v(FC + 4 * q, 4), v(VR + 4 * q, 4), "0" if q == 0 else v(P0, 16))
        k(MM, v(P1, 16), v(FN + 4 * q, 4), v(VR + 4 * q, 4), "0" if q == 0 else v(P1, 16))
    for q in range(2):
        k(MM, v(P0, 16), v(FS + 4 * q, 4), v(VI + 4 * q, 4), v(P0, 16))
        k(MM, v(P1, 16), v(FC + 4 * q, 4), v(VI + 4 * q, 4), v(P1, 16))
    k("s_and_b32", s(37), s(sW), "1"); k("s_add_u32", s(37), s(37), s(sQ)); k("s_cmp_lg_u32", s(37), "0")
    k("s_cbranch_scc1", "P2A_NOSP")
    for r in (vSR, vSI, vMR, vMI): k("v_lshlrev_b32", v(r), "16", v(r))
    k("v_add_f32", v(vSR), v(vSR), v(vMR)); k("v_sub_f32", v(vSI), v(vSI), v(vMI))
    k("v_mul_f32", v(vSR), "0.5", v(vSR)); k("v_mul_f32", v(vSI), "0.5", v(vSI))
    k("v_cmp_ne_u32", "vcc", "0", v(vL5))
    for r in range(16):
        k("v_cndmask_b32_dpp", v(WR + r), v(vSR), v(WR + r), "vcc", m="row_newbcast:%d row_mask:0xf bank_mask:0xf" % r)
        k("v_cndmask_b32_dpp", v(WI + r), v(vSI), v(WI + r), "vcc", m="row_newbcast:%d row_mask:0xf bank_mask:0xf" % r)
    k.label("P2A_NOSP")
    for r in range(0, 16, 2):
        k("v_pk_mul_f32", v(P2 + r, 2), v(P0 + r, 2), v(WR + r, 2))
        k("v_pk_mul_f32", v(P0 + r, 2), v(P0 + r, 2), v(WI + r, 2))
    for r in range(0, 16, 2):
        k("v_pk_fma_f32", v(P2 + r, 2), v(P1 + r, 2), v(WI + r, 2), v(P2 + r, 2), m="neg_lo:[1,0,0] neg_hi:[1,0,0]")
        k("v_pk_fma_f32", v(P0 + r, 2), v(P1 + r, 2), v(WR + r, 2), v(P0 + r, 2))
    for r in range(8): k("v_cvt_pk_bf16_f32", v(YR + r), v(P2 + 2 * r), v(P2 + 2 * r + 1))
    for r in range(8): k("v_cvt_pk_bf16_f32", v(YI + r), v(P0 + 2 * r), v(P0 + 2 * r + 1))
    for q in range(2):
        k(MM, v(P0, 16), v(YR + 4 * q, 4), v(F2C + 4 * q, 4), "0" if q == 0 else v(P0, 16))
        k(MM, v(P1, 16), v(YR + 4 * q, 4), v(F2S + 4 * q, 4), "0" if q == 0 else v(P1, 16))
    for q in range(2):
        k(MM, v(P0, 16), v(YI + 4 * q, 4), v(F2N + 4 * q, 4), v(P0, 16))
        k(MM, v(P1, 16), v(YI + 4 * q, 4), v(F2C + 4 * q, 4), v(P1, 16))
    vWA = 7
    k("v_add_u32", v(vWA), s(38), v(vRD))
    for r in range(8): k("v_cvt_pk_bf16_f32", v(VR + r), v(P0 + 2 * r), v(P0 + 2 * r + 1))
    for q in range(2): k("ds_write_b128", v(vWA), v(VR + 4 * q, 4), m="offset:%d" % (16384 + q * 2048))
    for r in range(8): k("v_cvt_pk_bf16_f32", v(VI + r), v(P1 + 2 * r), v(P1 + 2 * r + 1))
    for q in range(2): k("ds_write_b128", v(vWA), v(VI + 4 * q, 4), m="offset:%d" % (16384 + q * 2048 + 1024))
    k("s_waitcnt", "lgkmcnt(0)"); k("s_barrier")
    stamp(k, 5)
    big_stage(16384, False, None)
    vOA = 7
    k("v_lshlrev_b32", v(vOA), "9", v(vL5)); k("v_lshl_add_u32", v(vOA), v(vH), "4", v(vOA))
    k("s_lshl_b32", s(sO), s(sU), "14"); k("s_lshl_b32", s(37), s(sW), "7"); k("s_add_u32", s(sO), s(sO), s(37))
    k("s_add_u32", s(sO), s(sO), str(WS_UP))
    for r in range(0, 16, 2):
        k("v_pk_add_f32", v(P0 + r, 2), v(P0 + r, 2), v(P2 + r, 2), m="neg_lo:[0,1] neg_hi:[0,1]")
    for jj in range(4):
        for r in range(4): k("v_cvt_pk_bf16_f32", v(OP + 4 * jj + r), v(P0 + 4 * jj + r), v(P1 + 4 * jj + r))
        k("buffer_store_dwordx4", v(OP + 4 * jj, 4), v(vOA), s(WS, 4), s(sO), m="offen offset:%d" % (jj * 32))
    stamp_end(k, WS, 1, sW)
    k("s_endpgm")

def role_scan(k):
    WS, LR, LI, LD = 8, 12, 16, 20
    k("s_load_dwordx4", s(24, 4), s(0, 2), "32")
    k("s_load_dwordx2", s(28, 2), s(0, 2), "80")
    k("s_load_dwordx2", s(6, 2), s(0, 2), "120")
    LANE, vR, vI, vT, vO = 1, 2, 3, 4, 5
    sW, sT, sB, sO = 30, 31, 32, 33
    k("v_lshrrev_b32", v(vT), "6", "v0"); k("v_and_b32", v(LANE), "63", "v0")
    k("v_readfirstlane_b32", s(sW), v(vT))
    k("v_lshrrev_b32", v(vR), "4", v(LANE)); k("v_and_b32", v(vI), "15", v(LANE))
    k("s_sub_u32", s(sT), "s2", str(N_A))
    k("s_lshr_b32", s(sB), s(sT), "2"); k("s_lshl_b32", s(sB), s(sB), "13")
    k("s_and_b32", s(34), s(sT), "3"); k("s_lshl_b32", s(34), s(34), "8"); k("s_add_u32", s(sB), s(sB), s(34))
    k("s_lshl_b32", s(34), s(sW), "10"); k("s_add_u32", s(sB), s(sB), s(34))
    k("v_lshrrev_b32", v(vO), "1", v(vR)); k("v_lshlrev_b32", v(vO), "12", v(vO))
    k("v_lshl_add_u32", v(vO), v(vI), "4", v(vO))
    k("v_and_b32", v(vT), "1", v(vR)); k("v_lshl_add_u32", v(vO), v(vT), "3", v(vO))
    vP = 6
    k("v_lshlrev_b32", v(vP), "2", v(vR)); k("s_lshl_b32", s(35), s(sT), "4")
    k("s_waitcnt", "lgkmcnt(0)")
    srd(k, WS, 6, WS_SIZE); srd(k, LR, 24, 1280); srd(k, LI, 26, 1280); srd(k, LD, 28, 1280)
    vm = VM()
    k("buffer_load_dword", v(8), v(vP), s(LR, 4), s(35), m="offen"); vm.issue("p")
    k("buffer_load_dword", v(9), v(vP), s(LI, 4), s(35), m="offen"); vm.issue("p")
    k("buffer_load_dword", v(10), v(vP), s(LD, 4), s(35), m="offen"); vm.issue("p")
    D, UN = 64, 128
    for t in range(32):
        k("s_add_u32", s(sO), s(sB), str(WS_BU + t * 163840))
        k("buffer_load_dwordx2", v(D + 2 * t, 2), v(vO), s(WS, 4), s(sO), m="offen"); vm.issue("d%d" % t)
    vLA = 7
    k("v_lshlrev_b32", v(vLA), "4", "v0")
    for r in range(4): k("v_mov_b32", v(12 + r), "0")
    k("ds_write_b128", v(vLA), v(12, 4))
    k("s_waitcnt", "vmcnt(%d)" % vm.n_after("p"))
    L = [16, 18]; PW = [20, 22]; M = [[24 + 4 * j, 26 + 4 * j] for j in range(5)]
    ZR, ZI, T0 = 44, 45, 46
    k("v_cvt_f32_u32", v(50), v(vI)); k("v_mul_f32", v(50), f32(32.0), v(50))
    for c in range(2):
        for src, dst in ((8, 51), (9, 52), (10, 53)):
            if c == 0: k("v_lshlrev_b32", v(dst), "16", v(src))
            else: k("v_and_b32", v(dst), "0xffff0000", v(src))
        lam_calc(k, 51, 52, 53, ZR, ZI, T0)
        cexp(k, L[c], ZR, ZI, T0)
        k("v_mul_f32", v(48), v(50), v(ZR)); k("v_mul_f32", v(49), v(50), v(ZI))
        cexp(k, PW[c], 48, 49, T0)
        k("v_mul_f32", v(48), f32(32.0), v(ZR)); k("v_mul_f32", v(49), f32(32.0), v(ZI))
        cexp(k, M[0][c], 48, 49, T0)
        for j in range(1, 5): csq(k, M[j][c], M[j - 1][c], T0)
    stamp(k, 2)
    E = [56, 58]; TT = [60, 62]
    for t in range(32):
        k("s_waitcnt", "vmcnt(%d)" % vm.n_after("d%d" % t))
        for c in range(2):
            u = UN + 4 * t + 2 * c
            k("v_lshlrev_b32", v(u), "16", v(D + 2 * t + c)); k("v_and_b32", v(u + 1), "0xffff0000", v(D + 2 * t + c))
        if t == 0: continue
        prev = lambda c: (UN + 2 * c) if t == 1 else E[c]
        for c in range(2):
            k("v_pk_fma_f32", v(TT[c], 2), v(prev(c), 2), v(L[c], 2), v(UN + 4 * t + 2 * c, 2), m="op_sel:[0,0,0] op_sel_hi:[1,0,1]")
        for c in range(2):
            k("v_pk_fma_f32", v(E[c], 2), v(prev(c), 2), v(L[c], 2), v(TT[c], 2), m="op_sel:[1,1,0] op_sel_hi:[0,1,1] neg_lo:[0,1,0]")
    stamp(k, 3)
    SH = [44, 46]
    for j in range(4):
        for c in range(2):
            for e in range(2):
                k("v_mov_b32_dpp", v(SH[c] + e), v(E[c] + e), m="row_shr:%d row_mask:0xf bank_mask:0xf bound_ctrl:0" % (1 << j))
        for c in range(2): cmac(k, E[c], M[j][c], SH[c], E[c])
    k("ds_write_b128", v(vLA), v(56, 4), m="offset:4096")
    for c in range(2):
        for e in range(2):
            k("v_mov_b32_dpp", v(SH[c] + e), v(E[c] + e), m="row_shr:1 row_mask:0xf bank_mask:0xf bound_ctrl:0")
    k("v_or_b32", v(vLA), "240", v(vLA))
    k("s_waitcnt", "lgkmcnt(0)"); k("s_barrier")
    for dl in (3, 2, 1):
        k("ds_read_b128", v(24 + 4 * (3 - dl), 4), v(vLA), m="offset:%d" % (4096 - dl * 1024))
    k("s_waitcnt", "lgkmcnt(0)")
    for c in range(2): cmac(k, 28 + 2 * c, M[4][c], 24 + 2 * c, 28 + 2 * c)
    for c in range(2): cmac(k, 32 + 2 * c, M[4][c], 28 + 2 * c, 32 + 2 * c)
    for c in range(2): cmac(k, SH[c], PW[c], 32 + 2 * c, SH[c])
    stamp(k, 4)
    for t in range(32):
        prev = lambda c: SH[c] if t == 0 else UN + 4 * (t - 1) + 2 * c
        for c in range(2):
            u = UN + 4 * t + 2 * c
            k("v_pk_fma_f32", v(u, 2), v(prev(c), 2), v(L[c], 2), v(u, 2), m="op_sel:[0,0,0] op_sel_hi:[1,0,1]")
        for c in range(2):
            u = UN + 4 * t + 2 * c
            k("v_pk_fma_f32", v(u, 2), v(prev(c), 2), v(L[c], 2), v(u, 2), m="op_sel:[1,1,0] op_sel_hi:[0,1,1] neg_lo:[0,1,0]")
        if t > 0:
            tt = t - 1
            for c in range(2): k("v_cvt_pk_bf16_f32", v(D + 2 * tt + c), v(UN + 4 * tt + 2 * c), v(UN + 4 * tt + 2 * c + 1))
            k("s_add_u32", s(sO), s(sB), str(WS_BU + tt * 163840))
            k("buffer_store_dwordx2", v(D + 2 * tt, 2), v(vO), s(WS, 4), s(sO), m="offen")
    tt = 31
    for c in range(2): k("v_cvt_pk_bf16_f32", v(D + 2 * tt + c), v(UN + 4 * tt + 2 * c), v(UN + 4 * tt + 2 * c + 1))
    k("s_add_u32", s(sO), s(sB), str(WS_BU + tt * 163840))
    k("buffer_store_dwordx2", v(D + 2 * tt, 2), v(vO), s(WS, 4), s(sO), m="offen")
    stamp_end(k, WS, 1, sW)
    k("s_endpgm")

def role_prep(k):
    WS, LR, LI, LD, CR, CI = 8, 12, 16, 20, 40, 44
    k("s_load_dwordx4", s(24, 4), s(0, 2), "32")
    k("s_load_dwordx2", s(28, 2), s(0, 2), "80")
    k("s_load_dwordx4", s(36, 4), s(0, 2), "64")
    k("s_load_dwordx2", s(6, 2), s(0, 2), "120")
    LANE, vG, vI, vT, vO, vP = 1, 2, 3, 4, 5, 6
    sW, sT, sR2, sK, sO = 30, 31, 32, 33, 34
    k("v_lshrrev_b32", v(vT), "6", "v0"); k("v_and_b32", v(LANE), "63", "v0")
    k("v_readfirstlane_b32", s(sW), v(vT))
    k("v_lshrrev_b32", v(vG), "4", v(LANE)); k("v_and_b32", v(vI), "15", v(LANE))
    k("s_sub_u32", s(sT), "s2", str(N_A + N_SCAN))
    k("s_mul_i32", s(sR2), s(sT), "205"); k("s_lshr_b32", s(sR2), s(sR2), "10")
    k("s_mul_i32", s(35), s(sR2), "5"); k("s_sub_u32", s(sK), s(sT), s(35))
    k("s_lshl_b32", s(sK), s(sK), "2"); k("s_add_u32", s(sK), s(sK), s(sW))
    k("v_mul_u32_u24", v(vO), "1280", v(vI)); k("v_lshl_add_u32", v(vO), v(vG), "4", v(vO))
    k("v_and_b32", v(vP), "7", v(vI)); k("v_lshl_add_u32", v(vP), v(vG), "3", v(vP)); k("v_lshlrev_b32", v(vP), "1", v(vP))
    k("s_lshl_b32", s(35), s(sK), "6")
    k("s_waitcnt", "lgkmcnt(0)")
    srd(k, WS, 6, WS_SIZE); srd(k, LR, 24, 1284); srd(k, LI, 26, 1284); srd(k, LD, 28, 1284)
    srd(k, CR, 36, 819200); srd(k, CI, 38, 819200)
    k("buffer_load_ushort", v(8), v(vP), s(LR, 4), s(35), m="offen")
    k("buffer_load_ushort", v(9), v(vP), s(LI, 4), s(35), m="offen")
    k("buffer_load_ushort", v(10), v(vP), s(LD, 4), s(35), m="offen")
    k("s_mul_i32", s(sO), s(sR2), "40960"); k("s_add_u32", s(sO), s(sO), s(35))
    IN = 48
    for it in range(2):
        if it: k("s_add_u32", s(sO), s(sO), "20480")
        k("buffer_load_dwordx4", v(IN + 8 * it, 4), v(vO), s(CR, 4), s(sO), m="offen")
        k("buffer_load_dwordx4", v(IN + 8 * it + 4, 4), v(vO), s(CI, 4), s(sO), m="offen")
    k("s_waitcnt", "vmcnt(4)")
    for r in (8, 9, 10): k("v_lshlrev_b32", v(r), "16", v(r))
    lam_calc(k, 8, 9, 10, 12, 13, 14)
    cexp(k, 16, 12, 13, 14)
    k("v_add_f32", v(16), "-1.0", v(16))
    k("v_mul_f32", v(12), v(8), v(8)); k("v_fmac_f32", v(12), v(9), v(9))
    k("v_rcp_f32", v(12), v(12))
    k("v_mul_f32", v(18), v(16), v(8)); k("v_fmac_f32", v(18), v(17), v(9))
    k("v_mul_f32", v(19), v(17), v(8)); k("v_fma_f32", v(19), "-" + v(16), v(9), v(19))
    k("v_add_f32", v(12), v(12), v(12))
    k("v_mul_f32", v(18), v(18), v(12)); k("v_mul_f32", v(19), v(19), v(12))
    KK = 24
    for c in range(8):
        for e in range(2):
            k("v_mov_b32_dpp", v(KK + 2 * c + e), v(18 + e), m="row_newbcast:%d row_mask:0xf bank_mask:0xf" % c)
    vSO = 7
    k("v_lshlrev_b32", v(vSO), "4", v(LANE))
    for it in range(2):
        k("s_waitcnt", "vmcnt(%d)" % (2 if it == 0 else 2))
        OUT = 64 + 8 * it
        for c in range(8):
            t = 80 + 4 * (c & 3)
            for e in range(2):
                src = IN + 8 * it + 4 * e + (c >> 1)
                if c & 1: k("v_and_b32", v(t + e), "0xffff0000", v(src))
                else: k("v_lshlrev_b32", v(t + e), "16", v(src))
            k("v_pk_mul_f32", v(t + 2, 2), v(t, 2), v(KK + 2 * c, 2), m="op_sel:[0,0] op_sel_hi:[1,0] neg_hi:[1,0]")
            k("v_pk_fma_f32", v(t + 2, 2), v(t, 2), v(KK + 2 * c, 2), v(t + 2, 2), m="op_sel:[1,1,0] op_sel_hi:[0,1,1] neg_lo:[1,0,0] neg_hi:[1,0,0]")
            k("v_cvt_pk_bf16_f32", v(OUT + c), v(t + 2), v(t + 3))
        k("s_lshl_b32", s(35), s(sR2), "1"); k("s_add_u32", s(35), s(35), str(it))
        k("s_and_b32", s(sO), s(35), "7"); k("s_mul_i32", s(sO), s(sO), "5"); k("s_lshr_b32", s(35), s(35), "3"); k("s_add_u32", s(sO), s(sO), s(35))
        k("s_mul_i32", s(sO), s(sO), "40960"); k("s_lshl_b32", s(35), s(sK), "11"); k("s_add_u32", s(sO), s(sO), s(35))
        k("s_add_u32", s(sO), s(sO), str(WS_CP))
        for par in range(2):
            k("buffer_store_dwordx4", v(OUT + 4 * par, 4), v(vSO), s(WS, 4), s(sO), m="offen offset:%d" % (par * 1024))
    stamp_end(k, WS, 1, sW)
    k("s_endpgm")

def role_gate(k):
    WS, X, GW = 8, 12, 16
    k("s_load_dwordx2", s(24, 2), s(0, 2), "0")
    k("s_load_dwordx2", s(26, 2), s(0, 2), "96")
    k("s_load_dwordx2", s(6, 2), s(0, 2), "120")
    LANE, vR, vI, vT, vO, vW = 1, 2, 3, 4, 5, 6
    sW, sT, sO = 30, 31, 32
    k("v_lshrrev_b32", v(vT), "6", "v0"); k("v_and_b32", v(LANE), "63", "v0")
    k("v_readfirstlane_b32", s(sW), v(vT))
    k("v_lshrrev_b32", v(vR), "4", v(LANE)); k("v_and_b32", v(vI), "15", v(LANE))
    k("s_sub_u32", s(sT), "s2", str(N_A + N_SCAN + N_PREP))
    k("s_lshl_b32", s(sT), s(sT), "2"); k("s_add_u32", s(sT), s(sT), s(sW)); k("s_lshl_b32", s(sT), s(sT), "4")
    k("v_lshlrev_b32", v(vW), "4", v(vI))
    k("v_mul_u32_u24", v(vO), "1280", v(vR)); k("v_add_u32", v(vO), v(vO), v(vW))
    k("s_mul_i32", s(sO), s(sT), "1280")
    k("s_waitcnt", "lgkmcnt(0)")
    srd(k, WS, 6, WS_SIZE); srd(k, X, 24, 2621440); srd(k, GW, 26, 1280)
    Wt, XX = 16, 40
    for n in range(5): k("buffer_load_dwordx4", v(Wt + 4 * n, 4), v(vW), s(GW, 4), "0", m="offen offset:%d" % (n * 256))
    for it in range(4):
        if it: k("s_add_u32", s(sO), s(sO), "5120")
        for n in range(5): k("buffer_load_dwordx4", v(XX + 20 * it + 4 * n, 4), v(vO), s(X, 4), s(sO), m="offen offset:%d" % (n * 256))
    for it in range(4): k("v_mov_b32", v(8 + it), "0")
    for it in range(4):
        k("s_waitcnt", "vmcnt(%d)" % (15 - 5 * it))
        for r in range(20): k("v_dot2c_f32_bf16", v(8 + it), v(XX + 20 * it + r), v(Wt + r))
    for sh in (8, 4, 2, 1):
        for it in range(4):
            k("v_add_f32_dpp", v(8 + it), v(8 + it), v(8 + it), m="row_ror:%d row_mask:0xf bank_mask:0xf" % sh)
    k("v_lshlrev_b32", v(vO), "2", v(vR))
    k("s_lshl_b32", s(sO), s(sT), "2"); k("s_add_u32", s(sO), s(sO), str(WS_GG))
    for it in range(4): k("v_mul_f32", v(8 + it), f32(-LOG2E), v(8 + it))
    for it in range(4): k("v_exp_f32", v(8 + it), v(8 + it))
    for it in range(4): k("v_add_f32", v(8 + it), "1.0", v(8 + it))
    for it in range(4): k("v_rcp_f32", v(8 + it), v(8 + it))
    for it in range(4): k("buffer_store_dword", v(8 + it), v(vO), s(WS, 4), s(sO), m="offen offset:%d" % (16 * it))
    stamp_end(k, WS, 1, sW)
    k("s_endpgm")

def gen_p2():
    k = Kern("p2_kernel")
    tot = N_A + N_SCAN + N_PREP + N_GATE
    stamp_begin(k)
    k("s_cmp_ge_u32", "s2", str(N_A)); k("s_cbranch_scc1", "P2_NOTA")
    role_a(k)
    k.label("P2_NOTA")
    k("s_cmp_ge_u32", "s2", str(N_A + N_SCAN)); k("s_cbranch_scc1", "P2_NOTS")
    role_scan(k)
    k.label("P2_NOTS")
    k("s_cmp_ge_u32", "s2", str(N_A + N_SCAN + N_PREP)); k("s_cbranch_scc1", "P2_NOTP")
    role_prep(k)
    k.label("P2_NOTP")
    k("s_cmp_ge_u32", "s2", str(tot)); k("s_cbranch_scc1", "P2_END")
    role_gate(k)
    k.label("P2_END")
    k("s_endpgm")
    return k, ("p2_kernel", tot, 256, 32768)
```

```python
from common import *

def gen_p3():
    k = Kern("p3_kernel")
    MM = "v_mfma_f32_16x16x32_bf16"
    RED, TP = 0, 61440
    LDS = TP + 11520
    WS, X, DS, OUT = 8, 12, 16, 20
    k("s_cmp_ge_u32", "s2", "256"); k("s_cbranch_scc1", "P3_END")
    stamp_begin(k)
    k("s_load_dwordx2", s(6, 2), s(0, 2), "120")
    k("s_load_dwordx2", s(4, 2), s(0, 2), "0")
    k("s_load_dwordx2", s(24, 2), s(0, 2), "88")
    k("s_load_dwordx2", s(26, 2), s(0, 2), "104")
    LANE, vG, vI, vT, vT2, vF = 1, 2, 3, 4, 5, 6
    sW, sSLO, sJ8, sO, sT, sT2 = 30, 31, 32, 33, 34, 35
    k("v_lshrrev_b32", v(vT), "6", "v0"); k("v_and_b32", v(LANE), "63", "v0")
    k("v_readfirstlane_b32", s(sW), v(vT))
    k("v_lshrrev_b32", v(vG), "4", v(LANE)); k("v_and_b32", v(vI), "15", v(LANE))
    k("v_lshlrev_b32", v(vF), "4", v(LANE))
    k("s_bfe_u32", s(sSLO), "s2", "0x20001"); k("s_lshl_b32", s(sSLO), s(sSLO), "3")
    k("s_lshr_b32", s(sT), "s2", "5"); k("s_add_u32", s(sSLO), s(sSLO), s(sT))
    k("s_and_b32", s(sJ8), "s2", "1"); k("s_lshl_b32", s(sJ8), s(sJ8), "2")
    k("s_bfe_u32", s(sT2), "s2", "0x20003"); k("s_add_u32", s(sJ8), s(sJ8), s(sT2))
    sKS = 40
    k("s_mul_i32", s(sT2), s(sT2), "5"); k("s_lshr_b32", s(sT2), s(sT2), "1"); k("s_lshl_b32", s(sKS), s(sT2), "10")
    for i in range(1, 10):
        k("s_add_u32", s(sKS + i), s(sKS + i - 1), "1024")
        k("s_cmp_ge_u32", s(sKS + i), "10240"); k("s_cselect_b32", s(sKS + i), "0", s(sKS + i))
    sDH = 50
    k("s_cmp_ge_u32", s(sT), "5"); k("s_cselect_b32", s(sT2), "5", "0"); k("s_sub_u32", s(sDH), s(sT), s(sT2))
    for i in range(1, 5):
        k("s_add_u32", s(sDH + i), s(sDH + i - 1), "1")
        k("s_cmp_ge_u32", s(sDH + i), "5"); k("s_cselect_b32", s(sDH + i), "0", s(sDH + i))
    sHB, sCB, sUB = 36, 37, 38
    k("s_mul_i32", s(sHB), s(sSLO), "163840"); k("s_mul_i32", s(sT), s(sW), "40960"); k("s_add_u32", s(sHB), s(sHB), s(sT))
    k("s_mul_i32", s(sCB), s(sJ8), "204800"); k("s_mul_i32", s(sT), s(sW), "10240"); k("s_add_u32", s(sCB), s(sCB), s(sT))
    k("s_add_u32", s(sCB), s(sCB), str(WS_CP))
    k("s_lshl_b32", s(sUB), s(sSLO), "9"); k("s_lshl_b32", s(sT), s(sJ8), "6"); k("s_add_u32", s(sUB), s(sUB), s(sT))
    k("s_add_u32", s(sUB), s(sUB), str(WS_UP))
    vH = [7, 8, 9, 10]
    for mu in range(4):
        k("s_add_u32", s(sT), s(sW), str(mu)); k("s_and_b32", s(sT), s(sT), "3"); k("s_lshl_b32", s(56 + mu), s(sT), "10")
        k("v_add_u32", v(vH[mu]), s(56 + mu), v(vF))
    vU, vU2 = 11, 12
    k("v_and_b32", v(vU2), "7", "v0"); k("v_lshlrev_b32", v(vU2), "3", v(vU2))
    k("v_lshrrev_b32", v(vT), "3", "v0"); k("s_mov_b32", s(sT), "81920")
    k("v_mad_u32_u24", v(vU), v(vT), s(sT), v(vU2))
    k("s_waitcnt", "lgkmcnt(0)")
    srd(k, WS, 6, WS_SIZE)
    vm = VM()
    Z = 16
    for q in range(5):
        k("s_add_u32", s(sO), s(sUB), str(q * 16384))
        k("buffer_load_dwordx2", v(Z + 2 * q, 2), v(vU), s(WS, 4), s(sO), m="offen"); vm.issue("U")
    k("s_add_u32", s(sO), s(sUB), str(160 * 16384))
    k("buffer_load_dwordx2", v(Z + 10, 2), v(vU2), s(WS, 4), s(sO), m="offen"); vm.issue("U")
    def ld_h(kk):
        k("s_lshl_b32", s(sO), s(sKS + kk), "2"); k("s_add_u32", s(sO), s(sO), s(sHB))
        for mu in range(4):
            k("buffer_load_dwordx4", a(16 * kk + 4 * mu, 4), v(vH[mu]), s(WS, 4), s(sO), m="offen"); vm.issue("h")
    def cf(n, kk):
        return a(160 + 40 * n + 4 * kk, 4) if n < 2 else v(128 + 40 * (n - 2) + 4 * kk, 4)
    sCN = 60
    def ld_c(f):
        n, kk = divmod(f, 10)
        k("s_add_u32", s(sO), s(sCN + n), s(sKS + kk))
        k("buffer_load_dwordx4", cf(n, kk), v(vF), s(WS, 4), s(sO), m="offen"); vm.issue("c%d" % f)
    for kk in range(2): ld_h(kk)
    srd(k, X, 4, 2621440); srd(k, DS, 24, 1280); srd(k, OUT, 26, 5242880)
    for n in range(5):
        k("s_mul_i32", s(sCN + n), s(sDH + n), "40960"); k("s_add_u32", s(sCN + n), s(sCN + n), s(sCB))
    vXO, vDO, vGO = 13, 14, 15
    XV, DV, GV = 28, 38, 48
    k("s_mov_b32", s(sT), "40960")
    k("v_lshlrev_b32", v(vDO), "3", v(vG))
    k("v_mad_u32_u24", v(vXO), v(vI), s(sT), v(vDO))
    k("v_lshlrev_b32", v(vGO), "7", v(vI))
    sRB, sXB = 65, 66
    k("s_lshl_b32", s(sRB), s(sW), "9"); k("s_add_u32", s(sRB), s(sRB), s(sSLO))
    k("s_mul_i32", s(sXB), s(sRB), "1280")
    sCOL = 70
    for n in range(5):
        k("s_lshl_b32", s(sCOL + n), s(sDH + n), "8"); k("s_lshl_b32", s(sT), s(sJ8), "5"); k("s_add_u32", s(sCOL + n), s(sCOL + n), s(sT))
        k("s_add_u32", s(sO), s(sXB), s(sCOL + n))
        k("buffer_load_dwordx2", v(XV + 2 * n, 2), v(vXO), s(X, 4), s(sO), m="offen"); vm.issue("e")
        k("buffer_load_dwordx2", v(DV + 2 * n, 2), v(vDO), s(DS, 4), s(sCOL + n), m="offen"); vm.issue("e")
    k("s_lshl_b32", s(sO), s(sRB), "2"); k("s_add_u32", s(sO), s(sO), str(WS_GG))
    k("buffer_load_dword", v(GV), v(vGO), s(WS, 4), s(sO), m="offen"); vm.issue("e")
    for kk in range(2, 6): ld_h(kk)
    EF = 50
    TM = 64
    k("s_lshl_b32", s(sT), s(sW), "4")
    k("v_add_u32", v(vT), s(sT), v(vI)); k("v_cvt_f32_u32", v(vT), v(vT)); k("v_mul_f32", v(vT), f32(1 / 64), v(vT))
    k("v_cvt_f32_u32", v(vT2), v(vG)); k("v_mul_f32", v(vT2), "4.0", v(vT2)); k("v_mul_f32", v(vT2), v(vT2), v(vT))
    for e in range(8): k("v_fmamk_f32", v(TM + e), v(vT), f32(16 * (e >> 2) + (e & 3)), v(vT2))
    for e in range(8): k("v_cos_f32", v(TM + 8 + e), v(TM + e))
    for e in range(8): k("v_sin_f32", v(TM + e), v(TM + e))
    for e in range(8): k("v_cvt_pk_bf16_f32", v(EF + e), v(TM + 8 + e), "-" + v(TM + e))
    k("v_lshlrev_b32", v(vT), "31", v(vI)); k("v_or_b32", v(vT), "0x3f003f00", v(vT))
    k("v_cmp_eq_u32", "vcc", "0", v(vG))
    k("v_cndmask_b32", v(EF), v(EF), v(vT), "vcc")
    TA = 58
    k("v_and_b32", v(vT), "7", "v0")
    k("v_lshlrev_b32", v(vT2), "1", v(vT)); k("v_add_u32", v(vT2), s(sJ8), v(vT2)); k("v_mul_u32_u24", v(vT2), "3", v(vT2))
    k("v_mul_u32_u24", v(TM), "205", v(vT2)); k("v_lshrrev_b32", v(TM), "10", v(TM)); k("v_mul_u32_u24", v(TM), "5", v(TM))
    k("v_sub_u32", v(vT2), v(vT2), v(TM)); k("v_mul_u32_u24", v(TA), "2304", v(vT2))
    for e in range(1, 5):
        k("v_add_u32", v(TA + e), "4608", v(TA + e - 1)); k("v_subrev_u32", v(TM), "11520", v(TA + e)); k("v_min_u32", v(TA + e), v(TA + e), v(TM))
    k("v_mul_u32_u24", v(vT), "288", v(vT)); k("v_lshrrev_b32", v(vT2), "3", "v0"); k("v_lshl_add_u32", v(vT), v(vT2), "2", v(vT))
    for e in range(5): k("v_add_u32", v(TA + e), v(TA + e), v(vT))
    sC1, sC2, sN1, sN2 = 76, 78, 80, 82
    for r, val in ((sC1, C1), (sC2, C2), (sN1, N1), (sN2, N2)):
        k("s_mov_b32", s(r), f32(val)); k("s_mov_b32", s(r + 1), f32(val))
    k("s_waitcnt", "vmcnt(%d)" % vm.n_after("U"))
    stamp(k, 2)
    P = lambda r: v(r, 2)
    regs = []
    for u in range(2):
        b = TM + 28 * u
        L = [b + 2 * q for q in range(5)]
        S1, D1, S2, D2, A1, A2, B1, B2, T0 = [b + 10 + 2 * i for i in range(9)]
        regs.append((L, S1, D1, S2, D2, A1, A2, B1, B2, T0))
        for q in range(5):
            k("v_lshlrev_b32", v(L[q]), "16", v(Z + 2 * q + u)); k("v_and_b32", v(L[q] + 1), "0xffff0000", v(Z + 2 * q + u))
        k("v_pk_add_f32", P(S1), P(L[1]), P(L[4])); k("v_pk_add_f32", P(D1), P(L[1]), P(L[4]), m="neg_lo:[0,1] neg_hi:[0,1]")
        k("v_pk_add_f32", P(S2), P(L[2]), P(L[3])); k("v_pk_add_f32", P(D2), P(L[2]), P(L[3]), m="neg_lo:[0,1] neg_hi:[0,1]")
    k("s_cmp_lg_u32", s(sW), "0"); k("s_cbranch_scc1", "P3_NOSP")
    k("s_mov_b64", "exec", "0xff")
    for u in range(2):
        L, S1, D1, S2, D2 = regs[u][:5]
        k("v_lshlrev_b32", v(L[0] + 1), "16", v(Z + 10 + u))
        for (S_, D_, x_, y_) in ((S1, D1, L[1], L[4]), (S2, D2, L[2], L[3])):
            k("v_add_f32", v(S_), v(x_), v(x_)); k("v_add_f32", v(S_ + 1), v(y_), v(y_))
            k("v_add_f32", v(D_), v(y_ + 1), v(y_ + 1)); k("v_add_f32", v(D_ + 1), v(x_ + 1), v(x_ + 1))
    k("s_mov_b64", "exec", "-1")
    k.label("P3_NOSP")
    ld_h(6); ld_h(7)
    for u in range(2):
        L, S1, D1, S2, D2, A1, A2, B1, B2, T0 = regs[u]
        k("v_pk_add_f32", P(T0), P(L[0]), P(S1))
        k("v_pk_fma_f32", P(A1), P(S1), s(sC1, 2), P(L[0])); k("v_pk_fma_f32", P(A2), P(S1), s(sC2, 2), P(L[0]))
        k("v_pk_mul_f32", P(B1), P(D1), s(sN1, 2)); k("v_pk_mul_f32", P(B2), P(D1), s(sN2, 2))
        k("v_pk_add_f32", P(T0), P(T0), P(S2))
        k("v_pk_fma_f32", P(A1), P(S2), s(sC2, 2), P(A1)); k("v_pk_fma_f32", P(A2), P(S2), s(sC1, 2), P(A2))
        k("v_pk_fma_f32", P(B1), P(D2), s(sN2, 2), P(B1)); k("v_pk_fma_f32", P(B2), P(D2), s(sN1, 2), P(B2), m="neg_lo:[1,0,0] neg_hi:[1,0,0]")
        k("v_pk_add_f32", P(S1), P(A1), P(B1), m="op_sel:[0,1] op_sel_hi:[1,0] neg_lo:[0,1]")
        k("v_pk_add_f32", P(D1), P(A1), P(B1), m="op_sel:[0,1] op_sel_hi:[1,0] neg_hi:[0,1]")
        k("v_pk_add_f32", P(S2), P(A2), P(B2), m="op_sel:[0,1] op_sel_hi:[1,0] neg_lo:[0,1]")
        k("v_pk_add_f32", P(D2), P(A2), P(B2), m="op_sel:[0,1] op_sel_hi:[1,0] neg_hi:[0,1]")
        for e, r in enumerate((T0, S1, S2, D2, D1)):
            k("v_cvt_pk_bf16_f32", v(L[e]), v(r), v(r + 1))
            k("ds_write_b32", v(TA + (e + 4 * u) % 5), v(L[e]), m="offset:%d" % (TP + 144 * u))
    ld_h(8); ld_h(9)
    k("v_mul_u32_u24", v(vT), "144", v(vI)); k("v_lshl_add_u32", v(vT), v(vG), "4", v(vT))
    for n in range(5):
        k("s_mul_i32", s(sT), s(sDH + n), "2304")
        k("v_add_u32", v(TA + n), s(sT), v(vT))
    k("s_waitcnt", "lgkmcnt(0)"); k("s_barrier")
    for n in range(5):
        for q in range(2):
            k("ds_read_b128", v(TM + 8 * n + 4 * q, 4), v(TA + n), m="offset:%d" % (TP + 64 * q))
    for f in range(10): ld_c(f)
    AA = 104
    k("s_waitcnt", "lgkmcnt(0)")
    for q in range(2):
        for n in range(5):
            k(MM, v(AA + 4 * n, 4), v(TM + 8 * n + 4 * q, 4), v(EF + 4 * q, 4), "0" if q == 0 else v(AA + 4 * n, 4))
    OWN = 64
    k("s_waitcnt", "vmcnt(%d)" % vm.n_after("e"))
    for n in range(5):
        for hf in range(2):
            t = 16 + 4 * hf
            k("v_lshlrev_b32", v(t), "16", v(XV + 2 * n + hf)); k("v_and_b32", v(t + 1), "0xffff0000", v(XV + 2 * n + hf))
            k("v_lshlrev_b32", v(t + 2), "16", v(DV + 2 * n + hf)); k("v_and_b32", v(t + 3), "0xffff0000", v(DV + 2 * n + hf))
            k("v_pk_mul_f32", v(OWN + 4 * n + 2 * hf, 2), v(t, 2), v(t + 2, 2))
    GS_, G1 = 50, 52
    k("v_mul_f32", v(GS_), f32(2.0 / (2048 * 640)), v(GV)); k("v_sub_f32", v(G1), "1.0", v(GV))
    for r in range(0, 20, 2):
        k("v_pk_mul_f32", v(AA + r, 2), v(AA + r, 2), v(GS_, 2), m="op_sel_hi:[1,0]")
    for f in range(10, 16): ld_c(f)
    vRW = [None, 54, 55, 56]
    for mu in range(1, 4):
        k("s_mul_i32", s(sT), s(56 + mu), "15"); k("v_add_u32", v(vRW[mu]), s(sT), v(vF))
    stamp(k, 3)
    OTH = [84, 16]
    for n in range(5):
        o = OTH[n & 1]
        for kk in range(10):
            f = 10 * n + kk
            k("s_waitcnt", "vmcnt(%d)" % vm.n_after("c%d" % f))
            k(MM, v(OWN + 4 * n, 4), cf(n, kk), a(16 * kk, 4), v(OWN + 4 * n, 4))
            for mu in range(1, 4):
                k(MM, v(o + 4 * mu - 4, 4), cf(n, kk), a(16 * kk + 4 * mu, 4), "0" if kk == 0 else v(o + 4 * mu - 4, 4))
            if f + 16 < 50: ld_c(f + 16)
            if kk == 1 and n > 0:
                po = OTH[(n - 1) & 1]
                for mu in range(1, 4):
                    k("ds_write_b128", v(vRW[mu]), v(po + 4 * mu - 4, 4), m="offset:%d" % (RED + (n - 1) * 3072 + (mu - 1) * 1024))
    stamp(k, 4)
    po = OTH[0]
    for mu in range(1, 4):
        k("ds_write_b128", v(vRW[mu]), v(po + 4 * mu - 4, 4), m="offset:%d" % (RED + 4 * 3072 + (mu - 1) * 1024))
    k("s_mul_i32", s(sT), s(sW), "15360"); k("v_add_u32", v(vT), s(sT), v(vF))
    k("v_lshlrev_b32", v(vXO), "1", v(vXO))
    k("s_lshl_b32", s(sXB), s(sXB), "1")
    k("s_waitcnt", "lgkmcnt(0)"); k("s_barrier")
    stamp(k, 5)
    RD = 128
    for n in range(5):
        for mu in range(3):
            k("ds_read_b128", v(RD + 12 * n + 4 * mu, 4), v(vT), m="offset:%d" % (RED + n * 3072 + mu * 1024))
    for n in range(5):
        k("s_waitcnt", "lgkmcnt(%d)" % (12 - 3 * n))
        r = RD + 12 * n
        for hf in range(0, 4, 2):
            k("v_pk_add_f32", v(r + hf, 2), v(r + hf, 2), v(r + 4 + hf, 2))
            k("v_pk_add_f32", v(OWN + 4 * n + hf, 2), v(OWN + 4 * n + hf, 2), v(r + 8 + hf, 2))
        for hf in range(0, 4, 2):
            k("v_pk_add_f32", v(OWN + 4 * n + hf, 2), v(OWN + 4 * n + hf, 2), v(r + hf, 2))
        for hf in range(0, 4, 2):
            k("v_pk_fma_f32", v(OWN + 4 * n + hf, 2), v(OWN + 4 * n + hf, 2), v(G1, 2), v(AA + 4 * n + hf, 2), m="op_sel_hi:[1,0,1]")
        k("s_lshl_b32", s(sO), s(sCOL + n), "1"); k("s_add_u32", s(sO), s(sO), s(sXB))
        k("buffer_store_dwordx4", v(OWN + 4 * n, 4), v(vXO), s(OUT, 4), s(sO), m="offen")
    stamp_end(k, WS, 2, sW)
    k.label("P3_END")
    k("s_endpgm")
    return k, ("p3_kernel", 256, 256, LDS)
```

```python
from gen import *
from p2 import gen_p2
from p3 import gen_p3
def gen_empty():
    k = Kern("e_kernel"); k("v_mov_b32", "v1", "0"); k("s_mov_b32", "s3", "0"); k("s_endpgm")
    return k, ("e_kernel", 256, 256, 0)
for n in (1, 8, 24):
    ks, ls = [], []
    for g in (gen_p1, gen_p2, gen_p3, gen_empty):
        k, l = g(); ks.append(k); ls.append(l)
    ls = [ls[3]] * n + ls[:3]
    open("k_b%d.s" % n, "w").write(build_file(HDR, ks, ls))
```

```python
import os
os.environ["STAMP"] = "1"
from gen import *
from p2 import gen_p2
from p3 import gen_p3
def gen_dump():
    k = Kern("d_kernel")
    k("s_cmp_ge_u32", "s2", "1"); k("s_cbranch_scc1", "D_END")
    k("s_load_dwordx4", s(4, 4), s(0, 2), "112")
    k("s_waitcnt", "lgkmcnt(0)")
    srd(k, 8, 6, WS_SIZE); srd(k, 12, 4, 64)
    sel = [(0,0),(0,7),(1,0),(1,7),(2,0),(2,7),(0,1),(0,2),(0,5),(0,6),(1,1),(1,2),(1,6),(2,1),(2,2),(2,6)]
    k("v_mov_b32", "v1", "0")
    for j, (kk, sl) in enumerate(sel):
        k("s_mov_b32", s(20), str(WS_ST + kk * 65536 + sl * 4))
        k("buffer_load_dword", v(8 + j), "v1", s(8, 4), s(20), m="offen")
    k("s_waitcnt", "vmcnt(0)")
    for j in range(1, 6): k("v_sub_u32", v(8 + j), v(8 + j), v(8))
    for j in (7, 8, 9): k("v_sub_u32", v(8 + j), v(8 + j), v(14))
    for j in (11, 12): k("v_sub_u32", v(8 + j), v(8 + j), v(18))
    for j in (14, 15): k("v_sub_u32", v(8 + j), v(8 + j), v(21))
    for j in range(16):
        k("buffer_store_dword", v(8 + j), "v1", s(12, 4), "0", m="offen offset:%d" % (4 * j))
    k.label("D_END"); k("s_endpgm")
    return k, ("d_kernel", 1, 64, 0)
ks, ls = [], []
for g in (gen_p1, gen_p2, gen_p3, gen_dump):
    k, l = g(); ks.append(k); ls.append(l)
open("k_dbg.s", "w").write(build_file(HDR, ks, ls))
```

```python
from dsl import *
import math, os
WS_HH = 8192
WS_UU = WS_HH + 5242880
WS_UP = WS_UU + 160 * 16384
WS_CP = WS_UP + 161 * 16384
WS_GG = WS_CP + 1638400
WS_TS = WS_GG + 8192
WS_CT = WS_TS + 16 * 16 * 384
WS_END = WS_CT + 32 * 128
WS_SIZE = 268435456
OOB = 0x40000000
C1, C2 = math.cos(2 * math.pi / 5), math.cos(4 * math.pi / 5)
N1, N2 = math.sin(2 * math.pi / 5), math.sin(4 * math.pi / 5)
LOG2E = 1.4426950408889634
INV2PI = 0.15915494309189535
SPIN_MAX = 40000

def srd(k, d, ptr, nbytes):
    k("s_mov_b32", s(d), s(ptr)); k("s_mov_b32", s(d + 1), s(ptr + 1))
    k("s_mov_b32", s(d + 2), str(nbytes)); k("s_mov_b32", s(d + 3), "0x20000")

class VM:
    def __init__(self): self.tags = []
    def issue(self, tag): self.tags.append(tag)
    def n_after(self, *need):
        idx = [i for i, t in enumerate(self.tags) if t in need]
        assert idx, need
        return min(63, len(self.tags) - 1 - max(idx))

STAMP = bool(int(os.environ.get("STAMP", "0")))
WS_ST = 16 << 20
NST = 16
class Stamps:
    def __init__(self, k, ws, sW):
        self.k, self.ws, self.sW = k, ws, sW
    def mark(self, i, real=False):
        if not STAMP: return
        k = self.k
        k("s_memrealtime" if real else "s_memtime", s(98, 2)); k("s_waitcnt", "lgkmcnt(0)")
        k("v_writelane_b32", "v254", s(98), str(i))
    def flush(self):
        if not STAMP: return
        k = self.k
        k("s_lshl_b32", s(97), "s2", "2"); k("s_add_u32", s(97), s(97), s(self.sW)); k("s_lshl_b32", s(97), s(97), "6")
        k("s_add_u32", s(97), s(97), str(WS_ST))
        k("v_and_b32", "v253", "63", "v0"); k("v_lshlrev_b32", "v253", "2", "v253")
        k("s_mov_b64", "exec", "0xffff")
        k("buffer_store_dword", "v254", "v253", s(self.ws, 4), s(97), m="offen")
        k("s_mov_b64", "exec", "-1")

def lam_calc(k, lre, lim, ldt, zr, zi, t0):
    k("v_mul_f32", v(t0), f32(LOG2E), v(ldt))
    k("v_exp_f32", v(t0), v(t0))
    k("v_cvt_pk_bf16_f32", v(t0), v(t0), v(t0))
    k("v_and_b32", v(t0), "0xffff0000", v(t0))
    k("v_mul_f32", v(zr), v(t0), v(lre)); k("v_mul_f32", v(zi), v(t0), v(lim))
    k("v_mul_f32", v(zr), f32(LOG2E), v(zr)); k("v_mul_f32", v(zi), f32(INV2PI), v(zi))

def cexp(k, dst, zr, zi, t0):
    k("v_fract_f32", v(t0), v(zi))
    k("v_exp_f32", v(t0 + 1), v(zr))
    k("v_cos_f32", v(dst), v(t0)); k("v_sin_f32", v(dst + 1), v(t0))
    k("v_mul_f32", v(dst), v(dst), v(t0 + 1)); k("v_mul_f32", v(dst + 1), v(dst + 1), v(t0 + 1))

def cmac(k, dst, l, h, u):
    k("v_pk_fma_f32", v(dst, 2), v(h, 2), v(l, 2), v(u, 2), m="op_sel:[0,0,0] op_sel_hi:[1,0,1]")
    k("v_pk_fma_f32", v(dst, 2), v(h, 2), v(l, 2), v(dst, 2), m="op_sel:[1,1,0] op_sel_hi:[0,1,1] neg_lo:[0,1,0]")

def cmul(k, dst, l, h):
    k("v_pk_mul_f32", v(dst, 2), v(h, 2), v(l, 2), m="op_sel:[0,0] op_sel_hi:[1,0]")
    k("v_pk_fma_f32", v(dst, 2), v(h, 2), v(l, 2), v(dst, 2), m="op_sel:[1,1,0] op_sel_hi:[0,1,1] neg_lo:[0,1,0]")

def gen16(k, step, base, oc, os_, on, tmp):
    for q in range(2):
        for e in range(8):
            k("v_fmamk_f32", v(tmp + e), v(step), f32(16 * q + 8 * (e >> 2) + (e & 3)), v(base))
        for e in range(8): k("v_cos_f32", v(tmp + 8 + e), v(tmp + e))
        for e in range(8): k("v_sin_f32", v(tmp + e), v(tmp + e))
        for e in range(4): k("v_cvt_pk_bf16_f32", v(oc + 4 * q + e), v(tmp + 8 + 2 * e), v(tmp + 9 + 2 * e))
        for e in range(4): k("v_cvt_pk_bf16_f32", v(os_ + 4 * q + e), v(tmp + 2 * e), v(tmp + 1 + 2 * e))
        if on is not None:
            for e in range(4): k("v_cvt_pk_bf16_f32", v(on + 4 * q + e), "-" + v(tmp + 2 * e), "-" + v(tmp + 1 + 2 * e))
```

```python
from vcommon import *
KNAME = "gated_mix__spectral_gfnet__ssm_conv_s5__prompt_kernel"
M16 = "v_mfma_f32_16x16x32_bf16"
M32 = "v_mfma_f32_32x32x16_bf16"
DPPM = " row_mask:0xf bank_mask:0xf"
ROT = int(os.environ.get("ROT", "2"))

L_WT, L_AR, L_XR, L_LT = 0, 102400, 112640, 161792
LDS_TOTAL = 163840
L_UI, L_EX, L_PK = 0, 16384, 32768
L_E, L_CR = 73728, 79360
L_H1, L_H2 = 86016, 111616
L_TP = 133120
L_RED = 0

WS, SA, SB, SC, SD = 4, 8, 12, 16, 20
sW, sC, sJ, sSLO, sJ8, sM, sQ, sU, sO, sT, sT2, sIDX = range(24, 36)
pX, pWR, pWI, pLR, pLI, pBR, pBI, pCR, pCI, pLD, pDS, pGW, pOUT, pDBG, pWS = 36, 38, 40, 44, 46, 48, 50, 52, 54, 56, 58, 60, 62, 64, 66
sSC, sXB, sWB, sXL, sWL, sISA = 68, 73, 74, 75, 76, 77
sC1, sC2, sN1, sN2, sMK = 78, 80, 82, 84, 86
sHB, sCNT, sA0, sA1, sA2, sA3, sA4, sA5, sA6 = range(88, 97)
LANE, vG, vI, vT, vT2, vF, vL5, vH, vHS, vSG = range(1, 11)
vSR, vSI, vMR, vMI = 11, 12, 13, 14
GC, GS = 16, 48
FC, FS, FN, F2C, F2S, F2N = 80, 88, 96, 104, 112, 120
WR, WI = 128, 144
P0, P1, P2 = 160, 176, 192
VY = 208
L8, L32Q, WGT, XE, TG, vGA = 224, 226, 228, 236, 238, 246
L32, L64 = 238, 240
vTS = 250
ACC = 160
aXP, aDP, aOP = 200, 210, 224

def P(r): return v(r, 2)

def spin_check(k, name, reload, check):
    k("s_mov_b32", s(sCNT), "0")
    k.label(name + "_L")
    k("s_cbranch_vccz", name + "_D")
    k("s_add_u32", s(sCNT), s(sCNT), "1"); k("s_cmp_ge_u32", s(sCNT), str(SPIN_MAX)); k("s_cbranch_scc1", name + "_D")
    k("s_sleep", "2")
    reload()
    k("s_waitcnt", "vmcnt(0)")
    check()
    k("s_branch", name + "_L")
    k.label(name + "_D")

def gen_v():
    k = Kern(KNAME)
    st = Stamps(k, WS, sW)
    vm = VM()
    k("s_cmp_ge_u32", "s2", "256"); k("s_cbranch_scc1", "V_END")
    k("s_load_dwordx16", s(36, 16), s(0, 2), "0")
    k("s_load_dwordx16", s(52, 16), s(0, 2), "64")
    k("v_lshrrev_b32", v(vT), "6", "v0"); k("v_and_b32", v(LANE), "63", "v0")
    k("v_readfirstlane_b32", s(sW), v(vT))
    k("v_lshrrev_b32", v(vG), "4", v(LANE)); k("v_and_b32", v(vI), "15", v(LANE))
    k("v_lshlrev_b32", v(vF), "4", v(LANE)); k("v_and_b32", v(vL5), "31", v(LANE)); k("v_lshrrev_b32", v(vH), "5", v(LANE))
    k("s_lshr_b32", s(sIDX), "s2", "3")
    k("s_lshr_b32", s(sA0), "s2", "6")
    k("s_and_b32", s(sJ8), s(sIDX), "7")
    k("s_bfe_u32", s(sC), "s2", "0x20001"); k("s_lshl_b32", s(sC), s(sC), "2"); k("s_add_u32", s(sC), s(sC), s(sA0))
    k("s_and_b32", s(sJ), "s2", "1"); k("s_lshl_b32", s(sJ), s(sJ), "3"); k("s_add_u32", s(sJ), s(sJ), s(sJ8))
    k("s_and_b32", s(sSLO), "s2", "7"); k("s_lshl_b32", s(sSLO), s(sSLO), "2"); k("s_add_u32", s(sSLO), s(sSLO), s(sA0))
    k("s_add_u32", s(sT), s(sA0), s(sJ8))
    if ROT == 2:
        k("s_and_b32", s(sT), s(sT), "1"); k("s_mul_i32", s(sSC), s(sT), "512")
    elif ROT == 1:
        k("s_mov_b32", s(sSC), "0")
    else:
        for _ in range(2):
            k("s_cmp_ge_u32", s(sT), "5"); k("s_cselect_b32", s(sT2), "5", "0"); k("s_sub_u32", s(sT), s(sT), s(sT2))
        k("s_lshl_b32", s(sSC), s(sT), "8")
    for i in range(1, 5):
        k("s_add_u32", s(sSC + i), s(sSC + i - 1), "256")
        k("s_cmp_ge_u32", s(sSC + i), "1280"); k("s_cselect_b32", s(sSC + i), "0", s(sSC + i))
    k("s_lshr_b32", s(sA1), s(sW), "1"); k("s_and_b32", s(sA2), s(sW), "1")
    k("s_lshl_b32", s(sXB), s(sC), "2"); k("s_add_u32", s(sXB), s(sXB), s(sW)); k("s_mul_i32", s(sXB), s(sXB), str(32 * 1280))
    k("s_mul_i32", s(sWB), s(sJ), str(40 * 1280)); k("s_lshl_b32", s(sT), s(sA1), "7"); k("s_add_u32", s(sWB), s(sWB), s(sT))
    k("s_mul_i32", s(sWL), s(sA1), "10240"); k("s_mul_i32", s(sT), s(sA2), "5120"); k("s_add_u32", s(sWL), s(sWL), s(sT))
    k("s_mul_i32", s(sXL), s(sW), "12288"); k("s_add_u32", s(sXL), s(sXL), str(L_XR))
    k("s_mul_i32", s(sA3), s(sSLO), "1280"); k("s_mul_i32", s(sT), s(sA2), str(32 * 40960)); k("s_add_u32", s(sA3), s(sA3), s(sT))
    k("s_lshl_b32", s(sT), s(sA1), "8"); k("s_add_u32", s(sA3), s(sA3), s(sT))
    k("s_lshl_b32", s(sT), s(sJ8), "5"); k("s_add_u32", s(sA3), s(sA3), s(sT))
    k("s_lshl_b32", s(sA4), s(sW), "10"); k("s_add_u32", s(sA4), s(sA4), str(L_AR))
    vX = [200, 201, 202, 203]; vW = [11, 12, 13, 14, 15]; vRW0, vRW1, vRX0, vRX1 = 204, 205, 206, 207
    vAO = 80
    k("s_mov_b32", s(sT), "40960")
    k("v_lshrrev_b32", v(vT), "1", v(LANE)); k("v_and_b32", v(vAO), "1", v(LANE)); k("v_lshlrev_b32", v(vAO), "4", v(vAO))
    k("v_mad_u32_u24", v(vAO), v(vT), s(sT), v(vAO))
    k("v_bfe_u32", v(vT), v(LANE), "3", "2"); k("v_lshl_add_u32", v(vT), v(vH), "3", v(vT))
    k("v_mul_u32_u24", v(vT), "1280", v(vT))
    k("v_and_b32", v(vT2), "7", v(LANE)); k("v_xor_b32", v(vT2), v(vT2), v(vG))
    k("v_lshl_add_u32", v(vX[0]), v(vT2), "4", v(vT))
    k("v_xor_b32", v(vX[1]), "64", v(vX[0]))
    k("v_add_u32", v(vX[2]), str(4 * 1280 - 2048), v(vX[0]))
    k("v_add_u32", v(vX[3]), str(20 * 1280 - 3072), v(vX[1]))
    k("v_add_u32", v(vX[1]), str(16 * 1280 - 1024), v(vX[1]))
    k("v_lshrrev_b32", v(vT), "3", v(LANE))
    k("v_and_b32", v(vT2), "6", v(vT)); k("v_xor_b32", v(vT2), v(vT2), v(LANE)); k("v_xor_b32", v(vT2), s(sA2), v(vT2))
    k("v_and_b32", v(vT2), "7", v(vT2)); k("v_mul_u32_u24", v(vT), "1280", v(vT))
    k("v_lshl_add_u32", v(vW[0]), v(vT2), "4", v(vT))
    for t in range(1, 4): k("v_add_u32", v(vW[t]), str(t * (10240 - 1024)), v(vW[0]))
    k("v_add_u32", v(vW[4]), str(4 * 10240), v(vW[0]))
    vPC, vPP, vPO = 81, 82, 83
    k("v_lshrrev_b32", v(vPC), "2", "v0"); k("v_min_u32", v(vPC), "39", v(vPC))
    k("s_mul_i32", s(sT), s(sJ), "40"); k("v_add_lshl_u32", v(vPC), s(sT), v(vPC), "1")
    k("s_min_u32", s(sT), "s2", "199")
    k("s_mul_i32", s(sA5), s(sT), "205"); k("s_lshr_b32", s(sA5), s(sA5), "10")
    k("s_mul_i32", s(sT2), s(sA5), "5"); k("s_sub_u32", s(sA6), s(sT), s(sT2)); k("s_lshl_b32", s(sA6), s(sA6), "2"); k("s_add_u32", s(sA6), s(sA6), s(sW))
    k("v_and_b32", v(vPP), "7", v(vI)); k("v_lshl_add_u32", v(vPP), v(vG), "3", v(vPP))
    k("s_lshl_b32", s(sT), s(sA6), "5"); k("v_add_lshl_u32", v(vPP), s(sT), v(vPP), "1")
    k("v_mul_u32_u24", v(vPO), "1280", v(vI)); k("v_lshl_add_u32", v(vPO), v(vG), "4", v(vPO))
    k("s_mul_i32", s(sT), s(sA5), "20480"); k("s_lshl_b32", s(sT2), s(sA6), "6"); k("s_add_u32", s(sT), s(sT), s(sT2))
    k("v_add_u32", v(vPO), s(sT), v(vPO))
    k("s_waitcnt", "lgkmcnt(0)")
    st.mark(0, True); st.mark(1)
    srd(k, WS, pWS, WS_SIZE); srd(k, SA, pX, 2621440)
    k("s_cmp_eq_u32", s(sA2), "0")
    k("s_cselect_b32", s(SB), s(pBR), s(pBI)); k("s_cselect_b32", s(SB + 1), s(pBR + 1), s(pBI + 1))
    k("s_mov_b32", s(SB + 2), "819200"); k("s_mov_b32", s(SB + 3), "0x20000")
    vZ, vCA = 84, 85
    k("v_mov_b32", v(vZ), "0"); k("v_lshlrev_b32", v(vCA), "7", v(vL5))
    k("s_or_b32", s(sT), "s2", s(sW)); k("s_cmp_lg_u32", s(sT), "0"); k("s_cbranch_scc1", "V_NZ")
    k("s_mov_b32", s(sO), str(WS_CT))
    k("buffer_store_dword", v(vZ), v(vCA), s(WS, 4), s(sO), m="offen sc0 sc1")
    k.label("V_NZ")
    def dma(srdn, voff, soff, off, tag):
        k("buffer_load_dwordx4", v(voff), s(srdn, 4), s(soff), m="offen offset:%d lds" % off if off else "offen lds")
        vm.issue(tag)
    k("s_cmp_ge_u32", s(sW), "2"); k("s_cbranch_scc1", "V_A2")
    k("s_add_u32", "m0", s(sA4), "8192"); k("s_add_u32", s(sO), s(sA3), "1024")
    k("buffer_load_dwordx4", v(vAO), s(SA, 4), s(sO), m="offen lds")
    k.label("V_A2")
    k("s_mov_b32", "m0", s(sA4)); k("s_add_u32", s(sO), s(sA3), "512"); dma(SA, vAO, sA3, 0, "A")
    k("s_add_u32", "m0", s(sA4), "4096"); dma(SA, vAO, sO, 0, "A")
    PC, PP = 86, 89
    for base, off in ((PC, vPC), (PP, vPP)):
        for n, ptr in enumerate((pLR, pLI, pLD)):
            k("global_load_ushort", v(base + n), v(off), s(ptr, 2)); vm.issue("par")
    def x_items(c):
        it = [("s", lambda: (k("s_add_u32", "m0", s(sXL), str((c % 3) * 4096)), k("s_add_u32", s(sA0), s(sXB), s(sSC + c // 2)),
                             (k("s_add_u32", s(sA0), s(sA0), "128") if c & 1 else None)))]
        for q in range(4):
            it.append(("d", lambda q=q: dma(SA, vX[q], sA0, q * 1024, "x%d" % c)))
        return it
    def w_items(sc):
        it = [("s", lambda: (k("s_add_u32", "m0", s(sWL), str(L_WT + sc * 20480)), k("s_add_u32", s(sA1), s(sWB), s(sSC + sc))))]
        for t in range(4):
            it.append(("d", lambda t=t: dma(SB, vW[t], sA1, t * 1024, "w%d" % sc)))
        it.append(("s", lambda: k("s_add_u32", "m0", s(sWL), str(L_WT + sc * 20480 + 4096))))
        it.append(("d", lambda: dma(SB, vW[4], sA1, 0, "w%d" % sc)))
        return it
    def run(items):
        for _, f in items: f()
    run(x_items(0)); run(w_items(0))
    PIN = 92
    k("global_load_dwordx4", v(PIN, 4), v(vPO), s(pCR, 2)); vm.issue("pc")
    k("global_load_dwordx4", v(PIN + 4, 4), v(vPO), s(pCI, 2)); vm.issue("pc")
    k("s_or_b32", s(sT), "s2", s(sW)); k("s_cmp_lg_u32", s(sT), "0"); k("s_cbranch_scc1", "V_NR")
    k("s_waitcnt", "vmcnt(%d)" % (len(vm.tags) + 1))
    k("v_mov_b32", v(vT), "1")
    k("global_store_dword", v(vZ), v(vT), s(pDBG, 2), m="sc0 sc1")
    k.label("V_NR")
    run(x_items(1))
    k("s_mul_i32", s(sT), s(sIDX), "52"); k("s_lshr_b32", s(sT), s(sT), "8")
    k("s_mul_i32", s(sT2), s(sT), "5"); k("s_sub_u32", s(sQ), s(sIDX), s(sT2))
    k("s_and_b32", s(sM), "s2", "7"); k("s_lshl_b32", s(sT), s(sT), "3"); k("s_add_u32", s(sM), s(sM), s(sT))
    k("s_mul_i32", s(sU), s(sM), "5"); k("s_add_u32", s(sU), s(sU), s(sQ))
    k("s_sub_u32", s(sT), s(sU), "3"); k("s_cmp_lt_u32", s(sT), "2"); k("s_cselect_b32", s(sM), "32", s(sM))
    k("s_cmp_le_u32", "s2", "160"); k("s_cselect_b32", s(sISA), "1", "0")
    FA, TM, TW1, TW2, vMF, vBS = 100, 108, 124, 126, 128, 129
    k("v_lshrrev_b32", v(vT), "1", v(vI))
    k("s_lshl_b32", s(sT), s(sW), "3"); k("v_add_u32", v(vMF), s(sT), v(vT))
    k("v_and_b32", v(vT2), "1", v(vI))
    k("v_cvt_f32_u32", v(vBS), v(vT2)); k("v_mul_f32", v(vBS), f32(0.25), v(vBS))
    k("v_lshl_add_u32", v(vT2), v(vMF), "1", v(vT2)); k("v_cmp_eq_u32", "vcc", "1", v(vT2))
    k("v_cndmask_b32", v(vMF), v(vMF), "32", "vcc"); k("v_cndmask_b32", v(vBS), v(vBS), "0", "vcc")
    k("v_cvt_f32_u32", v(vMF), v(vMF)); k("v_mul_f32", v(vMF), f32(1 / 64), v(vMF))
    k("v_cvt_f32_u32", v(vT2), v(vG)); k("v_mul_f32", v(vT2), "4.0", v(vT2)); k("v_fmac_f32", v(vBS), v(vMF), v(vT2))
    for ks in range(2):
        for e in range(8): k("v_fmamk_f32", v(TM + 8 * ks + e), v(vMF), f32(32 * ks + 16 * (e >> 2) + (e & 3)), v(vBS))
    for e in range(16): k("v_cos_f32", v(TM + e), v(TM + e))
    for e in range(8): k("v_cvt_pk_bf16_f32", v(FA + e), v(TM + 2 * e), v(TM + 2 * e + 1))
    k("s_lshl_b32", s(sT), s(sJ8), "4")
    k("v_add_u32", v(vT2), s(sT), v(vI)); k("v_cvt_f32_u32", v(vT2), v(vT2))
    k("v_mul_f32", v(TW1), f32(0.2), v(vT2)); k("v_mul_f32", v(TW2), f32(0.4), v(vT2))
    k("v_sin_f32", v(TW1 + 1), v(TW1)); k("v_sin_f32", v(TW2 + 1), v(TW2))
    k("v_cos_f32", v(TW1), v(TW1)); k("v_cos_f32", v(TW2), v(TW2))
    for r, val in ((sC1, C1), (sC2, C2), (sN1, N1), (sN2, N2)):
        k("s_mov_b32", s(r), f32(val)); k("s_mov_b32", s(r + 1), f32(val))
    k("v_lshrrev_b32", v(vT), "1", v(vI)); k("v_and_b32", v(vT2), "1", v(vI))
    k("v_and_b32", v(vRW0), "6", v(vT)); k("v_xor_b32", v(vRW0), v(vRW0), v(vT2)); k("v_xor_b32", v(vRW0), v(vRW0), v(vG))
    k("v_lshlrev_b32", v(vRW0), "4", v(vRW0)); k("v_lshl_add_u32", v(vRW0), v(vT), "7", v(vRW0))
    k("v_mul_u32_u24", v(vT2), "5120", v(vT2)); k("v_add_u32", v(vRW0), v(vRW0), v(vT2)); k("v_xor_b32", v(vRW1), "64", v(vRW0))
    k("v_xor_b32", v(vRX0), v(vT), v(vG)); k("v_lshlrev_b32", v(vRX0), "4", v(vRX0))
    k("v_lshl_add_u32", v(vRX0), v(vI), "7", v(vRX0)); k("v_add_u32", v(vRX0), s(sXL), v(vRX0)); k("v_xor_b32", v(vRX1), "64", v(vRX0))
    def gen_G(k):
        vN0, vSTP, vB2 = 251, 252, 255
        k("s_lshl_b32", s(sT), s(sW), "5"); k("v_add_u32", v(vN0), s(sT), v(vL5))
        k("v_cvt_f32_u32", v(vSTP), v(vN0)); k("v_mul_f32", v(vSTP), f32(1 / 128), v(vSTP))
        k("v_cvt_f32_u32", v(vB2), v(vH)); k("v_mul_f32", v(vB2), "4.0", v(vB2)); k("v_mul_f32", v(vB2), v(vSTP), v(vB2))
        gen16(k, vSTP, vB2, GC, GS, None, VY)
        vODD, vMC, vMS, vM64 = VY, VY + 1, VY + 2, VY + 3
        k("v_bfe_i32", v(vODD), v(vN0), "0", "1"); k("v_and_b32", v(vM64), "0x80008000", v(vODD))
        k("v_bfe_i32", v(vMS), v(vN0), "1", "1"); k("v_and_b32", v(vMS), "0x80008000", v(vMS))
        k("v_xor_b32", v(vMC), v(vMS), v(vM64))
        for r in range(8):
            k("v_bfi_b32", v(GC + 8 + r), v(vODD), v(GS + r), v(GC + r)); k("v_bfi_b32", v(GS + 8 + r), v(vODD), v(GC + r), v(GS + r))
        for r in range(8):
            k("v_xor_b32", v(GC + 8 + r), v(vMC), v(GC + 8 + r)); k("v_xor_b32", v(GS + 8 + r), v(vMS), v(GS + 8 + r))
        for r in range(16):
            k("v_xor_b32", v(GC + 16 + r), v(vM64), v(GC + r)); k("v_xor_b32", v(GS + 16 + r), v(vM64), v(GS + r))
    gen_G(k)
    st.mark(2)
    run(x_items(2)); run(w_items(1))
    PZ = 132
    for r in range(4): k("v_mov_b32", v(PZ + r), "-1")
    k("v_lshrrev_b32", v(vT), "3", "v0"); k("s_mov_b32", s(sT), "163840")
    k("v_and_b32", v(vHS), "7", v(LANE)); k("v_lshlrev_b32", v(vHS), "4", v(vHS)); k("v_mad_u32_u24", v(vHS), v(vT), s(sT), v(vHS))
    k("s_mul_i32", s(sHB), s(sC), "10240"); k("s_mul_i32", s(sT), s(sJ), "640"); k("s_add_u32", s(sHB), s(sHB), s(sT)); k("s_add_u32", s(sHB), s(sHB), str(WS_HH))
    for t in range(5):
        k("buffer_store_dwordx4", v(PZ, 4), v(vHS), s(WS, 4), s(sHB), m="offen offset:%d sc0 sc1" % (t * 128)); vm.issue("st")
    k("s_lshl_b32", s(sO), s(sU), "14"); k("s_lshl_b32", s(sT), s(sW), "12"); k("s_add_u32", s(sO), s(sO), s(sT)); k("s_add_u32", s(sO), s(sO), str(WS_UP))
    k("s_cmp_eq_u32", s(sISA), "1"); k("s_cselect_b32", s(sO), s(sO), str(OOB))
    for n in range(4):
        k("buffer_store_dwordx4", v(PZ, 4), v(vF), s(WS, 4), s(sO), m="offen offset:%d sc0 sc1" % (n * 1024)); vm.issue("st")
    k("v_lshrrev_b32", v(vT), "2", "v0"); k("v_lshlrev_b32", v(vTS), "3", v(vT))
    k("v_cmp_gt_u32", "vcc", "40", v(vT)); k("v_and_b32", v(vT2), "3", "v0"); k("v_cmp_eq_u32", s(sMK, 2), "3", v(vT2))
    k("s_and_b64", "vcc", "vcc", s(sMK, 2)); k("v_mov_b32", v(vT2), str(OOB))
    k("v_cndmask_b32", v(vTS), v(vT2), v(vTS), "vcc")
    k("s_lshl_b32", s(sA2), s(sJ), "4"); k("s_add_u32", s(sA2), s(sA2), s(sC)); k("s_mul_i32", s(sA2), s(sA2), "384"); k("s_add_u32", s(sA2), s(sA2), str(WS_TS))
    k("v_add_u32", v(vTS), s(sA2), v(vTS))
    k("buffer_store_dwordx2", v(PZ, 2), v(vTS), s(WS, 4), "0", m="offen sc0 sc1"); vm.issue("st")
    k("s_and_b32", s(sA4), "s2", "7"); k("s_lshl_b32", s(sA4), s(sA4), "3"); k("s_add_u32", s(sA4), s(sA4), s(sIDX)); k("s_sub_u32", s(sA4), s(sA4), "24")
    k("s_lshl_b32", s(sA4), s(sA4), "2"); k("s_add_u32", s(sA4), s(sA4), s(sW)); k("s_lshl_b32", s(sA4), s(sA4), "3")
    k("s_lshl_b32", s(sO), s(sA4), "2"); k("s_add_u32", s(sO), s(sO), str(WS_GG))
    k("s_cmp_ge_u32", s(sIDX), "24"); k("s_cselect_b32", s(sO), s(sO), str(OOB))
    k("v_and_b32", v(vT), "7", v(LANE)); k("v_lshlrev_b32", v(vT), "2", v(vT))
    k("buffer_store_dword", v(PZ), v(vT), s(WS, 4), s(sO), m="offen sc0 sc1"); vm.issue("st")
    k("v_lshlrev_b32", v(vT), "3", v(vG)); k("s_lshl_b32", s(sT), s(sJ8), "5"); k("v_add_u32", v(vT), s(sT), v(vT))
    for n in range(5):
        k("global_load_dwordx2", a(aDP + 2 * n, 2), v(vT), s(pDS, 2), m="offset:%d" % (n * 256)); vm.issue("dsk")
    st.mark(3)
    k("s_waitcnt", "vmcnt(%d)" % vm.n_after("A")); k("s_barrier")
    vRA = 130
    XT, AC, UO = 136, 176, 108
    k("v_lshlrev_b32", v(vRA), "3", v(LANE)); k("v_add_u32", v(vRA), str(L_AR), v(vRA))
    for dh in range(5):
        for ks in range(2):
            for hf in range(2):
                k("ds_read_b64_tr_b16", v(XT + 8 * dh + 4 * ks + 2 * hf, 2), v(vRA), m="offset:%d" % (dh * 2048 + ks * 1024 + hf * 512))
        if dh == 2: k("s_waitcnt", "lgkmcnt(4)")
    k("s_lshl_b32", s(sT), s(sW), "9"); k("s_add_u32", s(sT), s(sT), str(L_AR))
    k("v_lshlrev_b32", v(vT), "5", v(vI)); k("v_lshl_add_u32", v(vT), v(vG), "3", v(vT)); k("v_add_u32", v(vT), s(sT), v(vT))
    k("s_waitcnt", "lgkmcnt(0)")
    for n in range(5): k("ds_read_b64", a(aXP + 2 * n, 2), v(vT), m="offset:%d" % (n * 2048))
    for ks in range(2):
        for dh in range(5):
            k(M16, v(AC + 4 * dh, 4), v(FA + 4 * ks, 4), v(XT + 8 * dh + 4 * ks, 4), "0" if ks == 0 else v(AC + 4 * dh, 4))
    k("s_cmp_eq_u32", s(sW), "0"); k("s_cselect_b32", s(sMK), "0xffff", "0"); k("s_mov_b32", s(sMK + 1), "0")
    for vv in range(2):
        T = lambda dh: v(AC + 4 * dh + 2 * vv, 2)
        b = XT + 20 * vv
        S1, D1, S2, D2, A1, A2, B1, B2, U0, Z = [b + 2 * i for i in range(10)]
        k("v_pk_add_f32", P(S1), T(1), T(4)); k("v_pk_add_f32", P(D1), T(1), T(4), m="neg_lo:[0,1] neg_hi:[0,1]")
        k("v_pk_add_f32", P(S2), T(2), T(3)); k("v_pk_add_f32", P(D2), T(2), T(3), m="neg_lo:[0,1] neg_hi:[0,1]")
        k("v_pk_add_f32", P(U0), T(0), P(S1))
        k("v_pk_fma_f32", P(A1), P(S1), s(sC1, 2), T(0)); k("v_pk_fma_f32", P(A2), P(S1), s(sC2, 2), T(0))
        k("v_pk_mul_f32", P(B1), P(D1), s(sN1, 2)); k("v_pk_mul_f32", P(B2), P(D1), s(sN2, 2))
        k("v_pk_add_f32", P(U0), P(U0), P(S2))
        k("v_pk_fma_f32", P(A1), P(S2), s(sC2, 2), P(A1)); k("v_pk_fma_f32", P(A2), P(S2), s(sC1, 2), P(A2))
        k("v_pk_fma_f32", P(B1), P(D2), s(sN2, 2), P(B1)); k("v_pk_fma_f32", P(B2), P(D2), s(sN1, 2), P(B2), m="neg_lo:[1,0,0] neg_hi:[1,0,0]")
        k("v_pk_add_f32", P(S1), P(A1), P(B1), m="op_sel:[0,1] op_sel_hi:[1,0] neg_hi:[0,1]")
        k("v_pk_add_f32", P(D1), P(A1), P(B1), m="op_sel:[0,1] op_sel_hi:[1,0] neg_lo:[0,1]")
        k("v_pk_add_f32", P(S2), P(A2), P(B2), m="op_sel:[0,1] op_sel_hi:[1,0] neg_hi:[0,1]")
        k("v_pk_add_f32", P(D2), P(A2), P(B2), m="op_sel:[0,1] op_sel_hi:[1,0] neg_lo:[0,1]")
        if vv == 0:
            sp = s(sMK, 2)
            k("v_cndmask_b32", v(S1), v(S1), v(A1), sp); k("v_cndmask_b32", v(S1 + 1), v(S1 + 1), "-" + v(B1), sp)
            k("v_cndmask_b32", v(D1), v(D1), v(A1 + 1), sp); k("v_cndmask_b32", v(D1 + 1), v(D1 + 1), v(B1 + 1), sp)
            k("v_cndmask_b32", v(S2), v(S2), v(A2 + 1), sp); k("v_cndmask_b32", v(S2 + 1), v(S2 + 1), "-" + v(B2 + 1), sp)
            k("v_cndmask_b32", v(D2), v(D2), v(A2), sp); k("v_cndmask_b32", v(D2 + 1), v(D2 + 1), v(B2), sp)
        k("v_cvt_pk_bf16_f32", v(UO + 5 * vv), v(U0), v(U0 + 1))
        for q, src, tw, cj, dst in ((1, D2, TW1, False, A1), (2, S1, TW2, False, A2), (3, D1, TW2, True, B1), (4, S2, TW1, True, B2)):
            k("v_pk_mul_f32", P(dst), P(src), P(tw), m="op_sel:[0,0] op_sel_hi:[1,0]")
            k("v_pk_fma_f32", P(dst), P(src), P(tw), P(dst), m="op_sel:[1,1,0] op_sel_hi:[0,1,1] " + ("neg_lo:[0,1,0]" if cj else "neg_hi:[0,1,0]"))
        for q, dst in ((1, A1), (2, A2), (3, B1), (4, B2)):
            k("v_cvt_pk_bf16_f32", v(UO + 5 * vv + q), v(dst), v(dst + 1))
    vSEL, vUO = 128, 129
    k("v_and_b32", v(vT2), "1", v(vI)); k("v_cmp_eq_u32", "vcc", "1", v(vT2))
    k("v_mov_b32", v(vSEL), "0x05040100"); k("v_mov_b32", v(vT), "0x03020706"); k("v_cndmask_b32", v(vSEL), v(vSEL), v(vT), "vcc")
    for n in range(10): k("v_mov_b32_dpp", v(XT + n), v(UO + n), m="quad_perm:[1,0,3,2]" + DPPM)
    for n in range(10): k("v_perm_b32", v(UO + n), v(XT + n), v(UO + n), v(vSEL))
    k("v_mul_u32_u24", v(vUO), "10", v(vG)); k("v_lshlrev_b32", v(vUO), "14", v(vUO))
    k("v_lshl_add_u32", v(vUO), v(vT2), "5", v(vUO))
    k("v_bfe_u32", v(vT), v(vI), "2", "1"); k("v_lshl_add_u32", v(vUO), v(vT), "4", v(vUO))
    k("v_lshrrev_b32", v(vT), "3", v(vI)); k("v_lshl_add_u32", v(vUO), v(vT), "3", v(vUO))
    k("v_and_b32", v(vT), "2", v(vI)); k("v_lshl_add_u32", v(vUO), v(vT), "1", v(vUO))
    k("s_mul_i32", s(sA3), s(sW), str(8 * 81920)); k("s_lshl_b32", s(sT), s(sJ8), "11"); k("s_add_u32", s(sA3), s(sA3), s(sT))
    k("s_lshl_b32", s(sT), s(sSLO), "6"); k("s_add_u32", s(sA3), s(sA3), s(sT))
    for vv in range(2):
        for q in range(5):
            k("s_add_u32", s(sO), s(sA3), str(WS_UU + vv * 81920 + q * 16384))
            k("buffer_store_dword", v(UO + 5 * vv + q), v(vUO), s(WS, 4), s(sO), m="offen sc0 sc1"); vm.issue("st")
    st.mark(4)
    k("s_waitcnt", "vmcnt(%d)" % vm.n_after("pc"))
    for r in range(PP, PP + 3): k("v_lshlrev_b32", v(r), "16", v(r))
    lam_calc(k, PP, PP + 1, PP + 2, 136, 137, 138)
    cexp(k, 140, 136, 137, 138)
    k("v_add_f32", v(140), "-1.0", v(140))
    k("v_mul_f32", v(136), v(PP), v(PP)); k("v_fmac_f32", v(136), v(PP + 1), v(PP + 1)); k("v_rcp_f32", v(136), v(136))
    k("v_mul_f32", v(142), v(140), v(PP)); k("v_fmac_f32", v(142), v(141), v(PP + 1))
    k("v_mul_f32", v(143), v(141), v(PP)); k("v_fma_f32", v(143), "-" + v(140), v(PP + 1), v(143))
    k("v_add_f32", v(136), v(136), v(136))
    k("v_mul_f32", v(142), v(142), v(136)); k("v_mul_f32", v(143), v(143), v(136))
    KK, POUT = 144, 160
    for c in range(8):
        for e in range(2): k("v_mov_b32_dpp", v(KK + 2 * c + e), v(142 + e), m="row_newbcast:%d" % c + DPPM)
    for c in range(8):
        t = 168 + 4 * (c & 3)
        for e in range(2):
            src = PIN + 4 * e + (c >> 1)
            if c & 1: k("v_and_b32", v(t + e), "0xffff0000", v(src))
            else: k("v_lshlrev_b32", v(t + e), "16", v(src))
        k("v_pk_mul_f32", v(t + 2, 2), v(t, 2), v(KK + 2 * c, 2), m="op_sel:[0,0] op_sel_hi:[1,0] neg_hi:[1,0]")
        k("v_pk_fma_f32", v(t + 2, 2), v(t, 2), v(KK + 2 * c, 2), v(t + 2, 2), m="op_sel:[1,1,0] op_sel_hi:[0,1,1] neg_lo:[1,0,0] neg_hi:[1,0,0]")
        k("v_cvt_pk_bf16_f32", v(POUT + c), v(t + 2), v(t + 3))
    k("v_lshlrev_b32", v(vT), "9", v(vG)); k("v_lshl_add_u32", v(vT), v(vI), "4", v(vT))
    k("s_and_b32", s(sO), s(sA5), "7"); k("s_mul_i32", s(sO), s(sO), "5"); k("s_lshr_b32", s(sT), s(sA5), "3"); k("s_add_u32", s(sO), s(sO), s(sT))
    k("s_mul_i32", s(sO), s(sO), "40960"); k("s_lshl_b32", s(sT), s(sA6), "11"); k("s_add_u32", s(sO), s(sO), s(sT)); k("s_add_u32", s(sO), s(sO), str(WS_CP))
    k("s_cmp_lt_u32", "s2", "200"); k("s_cselect_b32", s(sO), s(sO), str(OOB))
    for e in range(2):
        k("buffer_store_dwordx4", v(POUT + 4 * e, 4), v(vT), s(WS, 4), s(sO), m="offen offset:%d sc0 sc1" % (e * 256)); vm.issue("st")
    vRDY = 251
    k("global_load_dword", v(vRDY), v(vZ), s(pDBG, 2), m="sc1"); vm.issue("rdy")
    cap = Cap()
    ZR, ZI, T0, T1, T2 = VY, VY + 1, VY + 2, VY + 4, VY + 6
    for r in range(PC, PC + 3): cap("v_lshlrev_b32", v(r), "16", v(r))
    lam_calc(cap, PC, PC + 1, PC + 2, ZR, ZI, T0)
    cexp(cap, T2, ZR, ZI, T0)
    cap("v_lshrrev_b32", v(T1), "2", "v0"); cap("v_lshlrev_b32", v(T1), "3", v(T1))
    cap("v_add_u32", v(T1), str(L_LT), v(T1))
    cap("ds_write_b64", v(T1), v(T2, 2))
    for dst, n in ((L8, 8.0), (L32, 32.0), (L64, 64.0)):
        cap("v_mul_f32", v(T1), f32(n), v(ZR)); cap("v_mul_f32", v(T1 + 1), f32(n), v(ZI)); cexp(cap, dst, T1, T1 + 1, T0)
    QF = VY + 8
    cap("v_and_b32", v(QF), "3", "v0"); cap("v_cvt_f32_u32", v(QF + 1), v(QF)); cap("v_mul_f32", v(QF + 1), f32(32.0), v(QF + 1))
    cap("v_mul_f32", v(T1), v(QF + 1), v(ZR)); cap("v_mul_f32", v(T1 + 1), v(QF + 1), v(ZI)); cexp(cap, L32Q, T1, T1 + 1, T0)
    cap("v_lshlrev_b32", v(QF), "2", v(QF)); cap("v_sub_u32", v(QF + 2), s(sC), v(QF))
    cap("v_mul_u32_u24", v(QF + 3), "384", v(QF))
    cap("v_lshrrev_b32", v(QF + 4), "2", "v0"); cap("v_lshl_add_u32", v(QF + 3), v(QF + 4), "3", v(QF + 3))
    cap("v_cmp_gt_u32", "vcc", "40", v(QF + 4)); cap("v_cndmask_b32", v(QF + 2), "0", v(QF + 2), "vcc")
    cap("v_mov_b32", v(QF + 4), str(OOB))
    for n in range(4):
        cap("v_subrev_u32", v(QF + 5), str(n + 1), v(QF + 2))
        cap("v_cmp_le_i32", "vcc", "0", v(QF + 5))
        cap("v_cndmask_b32", v(vGA + n), v(QF + 4), v(QF + 3), "vcc")
        cap("v_max_i32", v(QF + 5), "0", v(QF + 5)); cap("v_cvt_f32_i32", v(QF + 5), v(QF + 5)); cap("v_mul_f32", v(QF + 5), f32(128.0), v(QF + 5))
        cap("v_mul_f32", v(T1), v(QF + 5), v(ZR)); cap("v_mul_f32", v(T1 + 1), v(QF + 5), v(ZI)); cexp(cap, WGT + 2 * n, T1, T1 + 1, T0)
    vO0, vSTW, vA0 = 252, 255, 236
    vK2 = 237
    cap("s_lshl_b32", s(sA5), s(sW), "5"); cap("v_add_u32", v(vK2), s(sA5), v(vL5))
    cap("s_lshl_b32", s(sA5), s(sQ), "7")
    cap("v_mul_u32_u24", v(vK2), "5", v(vK2)); cap("v_add_u32", v(vK2), s(sA5), v(vK2))
    cap("v_subrev_u32", v(vT), "640", v(vK2)); cap("v_min_u32", v(vK2), v(vK2), v(vT))
    cap("v_cmp_lt_u32", "vcc", "320", v(vK2)); cap("v_sub_u32", v(vT), "640", v(vK2)); cap("v_cndmask_b32", v(vK2), v(vK2), v(vT), "vcc")
    cap("v_lshlrev_b32", v(vT), "8", v(vH)); cap("v_add_u32", v(vT), s(sM), v(vT)); cap("v_sub_u32", v(vT2), "2048", v(vT))
    cap("v_cndmask_b32", v(vT), v(vT), v(vT2), "vcc")
    cap("v_mov_b32", v(vSTW), "41088"); cap("v_mov_b32", v(vT2), "-41088"); cap("v_cndmask_b32", v(vSTW), v(vSTW), v(vT2), "vcc")
    cap("v_mov_b32", v(vSG), "0"); cap("v_bfrev_b32", v(vT2), "1"); cap("v_cndmask_b32", v(vSG), v(vSG), v(vT2), "vcc")
    cap("v_lshlrev_b32", v(vK2), "1", v(vK2)); cap("s_movk_i32", s(sA5), "642")
    cap("v_mad_u32_u24", v(vO0), v(vT), s(sA5), v(vK2)); cap("v_and_b32", v(vT), "2047", v(vT)); cap("v_mad_u32_u24", v(vA0), v(vT), s(sA5), v(vK2))
    for r in range(32): cap("v_mov_b32", v(WR + r), "0")
    n_pre = len(cap.q)
    def w_gathers():
        it = []
        for rho in range(16):
            rp = 8 * (rho >> 2) + (rho & 3)
            ad = vA0 + (rho & 1)
            def f(rho=rho, rp=rp, ad=ad):
                if rho: k("v_mad_i32_i24", v(ad), v(vSTW), str(rp), v(vO0))
                k("buffer_load_short_d16_hi", v(WR + rho), v(ad), s(SC, 4), "0", m="offen"); vm.issue("W")
                k("buffer_load_short_d16_hi", v(WI + rho), v(ad), s(SD, 4), "0", m="offen"); vm.issue("W")
            it.append(("d", f))
        def sp():
            k("v_and_b32", v(vT), "12", v(LANE)); k("v_lshlrev_b32", v(vT), "1", v(vT))
            k("v_and_b32", v(vT2), "3", v(LANE)); k("v_add_u32", v(vT), v(vT), v(vT2)); k("v_lshl_add_u32", v(vT), v(vH), "2", v(vT))
            k("v_lshlrev_b32", v(vT), "6", v(vT)); k("v_add_u32", v(vT), s(sM), v(vT))
            k("v_sub_u32", v(vT2), "2048", v(vT)); k("v_and_b32", v(vT2), "2047", v(vT2))
            k("v_mul_u32_u24", v(vT), "642", v(vT)); k("v_mul_u32_u24", v(vT2), "642", v(vT2))
            k("s_and_b32", s(sA5), s(sW), "2"); k("s_mul_i32", s(sA5), s(sA5), "320")
            for r, ad, sr in ((vSR, vT, SC), (vSI, vT, SD), (vMR, vT2, SC), (vMI, vT2, SD)):
                k("buffer_load_ushort", v(r), v(ad), s(sr, 4), s(sA5), m="offen"); vm.issue("W")
        it.append(("d", sp))
        return it
    srd(k, SC, pWR, 1314816 + 4); srd(k, SD, pWI, 1314816 + 4)
    k("s_cmp_eq_u32", s(sISA), "1"); k("s_cselect_b32", s(SC + 2), s(SC + 2), "0"); k("s_cselect_b32", s(SD + 2), s(SD + 2), "0")
    st.mark(5)
    FX0, FW0 = 0, 8
    FX1 = [28, 56]; FW1 = [36, 64]
    first = {}
    def mfma(fx, fw, t, tau):
        acc = v(ACC + 8 * t + 4 * tau, 4)
        cc = acc if first.get((t, tau)) else "0"
        first[(t, tau)] = True
        k(M16, acc, a(fx + 4 * tau, 4), a(fw + 4 * t, 4), cc)
    wg_items = w_gathers()
    vCK = 251
    for c in range(10):
        needs = ["x%d" % c] + (["w%d" % (c // 2)] if c % 2 == 0 else [])
        if c == 3: needs += ["st", "rdy"]
        k("s_waitcnt", "vmcnt(%d) lgkmcnt(0)" % vm.n_after(*needs))
        if c % 2 == 0: k("s_barrier")
        if c == 5:
            k("v_add_u32", v(vRW0), "51200", v(vRW0)); k("v_add_u32", v(vRW1), "51200", v(vRW1))
        wo, xo, p = (c % 5) * 10240, (c % 3) * 4096, c & 1
        for tau in range(2): k("ds_read_b128", a(FX0 + 4 * tau, 4), v(vRX0), m="offset:%d" % (xo + tau * 2048))
        for tau in range(2): k("ds_read_b128", a(FX1[p] + 4 * tau, 4), v(vRX1), m="offset:%d" % (xo + tau * 2048))
        reads = [(a(FW0 + 4 * t, 4), vRW0, wo + t * 1024) for t in range(5)] + [(a(FW1[p] + 4 * t, 4), vRW1, wo + t * 1024) for t in range(5)]
        for n in range(10):
            if c > 0: mfma(FX1[1 - p], FW1[1 - p], n >> 1, n & 1)
            d, ad, off = reads[n]
            k("ds_read_b128", d, v(ad), m="offset:%d" % off)
        if c == 3:
            k("s_mov_b64", s(sMK, 2), "vcc")
            k("v_cmp_eq_u32", "vcc", "0", v(vRDY))
            spin_check(k, "V_RDY", lambda: k("global_load_dword", v(vRDY), v(vZ), s(pDBG, 2), m="sc1"),
                       lambda: k("v_cmp_eq_u32", "vcc", "0", v(vRDY)))
            k("s_lshl_b32", s(sO), "s2", "2"); k("s_add_u32", s(sO), s(sO), s(sW)); k("s_and_b32", s(sO), s(sO), "31")
            k("s_lshl_b32", s(sO), s(sO), "7"); k("s_add_u32", s(sO), s(sO), str(WS_CT))
            k("v_mov_b32", v(vRDY), "1"); k("s_mov_b64", "exec", "1")
            k("buffer_atomic_add", v(vRDY), v(vZ), s(WS, 4), s(sO), m="offen sc1"); vm.issue("arr")
            k("s_mov_b64", "exec", "-1"); k("s_mov_b64", "vcc", s(sMK, 2))
        items = []
        if c + 3 < 10: items += x_items(c + 3)
        if c % 2 == 1 and (c + 3) // 2 < 5: items += w_items((c + 3) // 2)
        if c >= 7:
            n_take = {7: 6, 8: 6, 9: 5}[c]
            items += wg_items[:n_take]; wg_items = wg_items[n_take:]
        if c == 8:
            def ck():
                k("s_mov_b32", s(sO), str(WS_CT))
                k("buffer_load_dword", v(vCK), v(vCA), s(WS, 4), s(sO), m="offen sc1"); vm.issue("ck")
            items = [("d", ck)] + items
        lg = 5 + sum(1 for q in cap.q[:0] if q[0].startswith("ds_"))
        k("s_waitcnt", "lgkmcnt(5)")
        if c == 6: assert len(cap.q) == 0 or True
        for n in range(10):
            mfma(FX0, FW0, n >> 1, n & 1)
            did = False
            while items:
                kind, f = items.pop(0); f()
                if kind == "d": did = True; break
            if c < 7: cap.drain(k, 8 if did else 16)
        run(items)
        if c == 6: cap.drain(k)
    k("s_waitcnt", "lgkmcnt(0)")
    LR = VY
    def read_lam():
        k("v_lshrrev_b32", v(vT), "1", v(vI)); k("v_lshlrev_b32", v(vT), "3", v(vT)); k("v_add_u32", v(vT), str(L_LT), v(vT))
        for t in range(5): k("ds_read_b64", v(LR + 2 * t, 2), v(vT), m="offset:%d" % (t * 64))
    def fix_lam():
        k("v_not_b32", v(vT2), v(vI)); k("v_lshlrev_b32", v(vT2), "31", v(vT2))
        for t in range(5): k("v_xor_b32", v(LR + 2 * t + 1), v(vT2), v(LR + 2 * t + 1))
    read_lam()
    for n in range(10): mfma(FX1[1], FW1[1], n >> 1, n & 1)
    k("s_waitcnt", "lgkmcnt(0)")
    fix_lam()
    st.mark(6)
    EE = [218, 200]
    SW = "quad_perm:[1,0,3,2]" + DPPM
    for n in range(1, 8):
        for t in range(5):
            prev = ACC + 8 * t if n == 1 else EE[(n - 1) & 1] + t
            k("v_fma_f32", v(EE[n & 1] + t), v(LR + 2 * t), v(prev), v(ACC + 8 * t + n))
        for t in range(5):
            prev = ACC + 8 * t if n == 1 else EE[(n - 1) & 1] + t
            k("v_fmac_f32_dpp", v(EE[n & 1] + t), v(prev), v(LR + 2 * t + 1), m=SW)
    vEA = 205
    k("s_lshl_b32", s(sT), s(sW), "2"); k("v_add_u32", v(vEA), s(sT), v(vG)); k("v_mul_u32_u24", v(vEA), "336", v(vEA))
    k("v_lshl_add_u32", v(vEA), v(vI), "2", v(vEA)); k("v_add_u32", v(vEA), str(L_E), v(vEA))
    k("s_barrier")
    for t in range(5): k("ds_write_b32", v(vEA), v(EE[1] + t), m="offset:%d" % (t * 64))
    vPK = 206
    k("s_mul_i32", s(sT), s(sW), "10240"); k("v_add_u32", v(vPK), s(sT), v(vF)); k("v_add_u32", v(vPK), str(L_PK), v(vPK))
    vCB = 15
    k("v_and_b32", v(vT), "3", "v0"); k("v_mul_u32_u24", v(vCB), str(4 * 336), v(vT))
    k("v_lshrrev_b32", v(vT), "2", "v0"); k("v_min_u32", v(vT), "39", v(vT)); k("v_lshl_add_u32", v(vCB), v(vT), "3", v(vCB)); k("v_add_u32", v(vCB), str(L_E), v(vCB))
    k("s_waitcnt", "lgkmcnt(0)"); k("s_barrier")
    E0 = VY
    for n in range(4): k("ds_read_b64", v(E0 + 2 * n, 2), v(vCB), m="offset:%d" % (n * 336))
    for r in range(10): k("ds_write_b128", v(vPK), v(ACC + 4 * r, 4), m="offset:%d" % (r * 1024))
    k("s_waitcnt", "lgkmcnt(10)")
    cmac(k, E0 + 2, L8, E0, E0 + 2); cmac(k, E0 + 4, L8, E0 + 2, E0 + 4); cmac(k, E0 + 6, L8, E0 + 4, E0 + 6)
    Q_, SH = E0 + 6, E0 + 8
    k("s_mov_b32", s(sMK), "0x11111111"); k("s_mov_b32", s(sMK + 1), "0x11111111")
    for e in range(2): k("v_mov_b32_dpp", v(SH + e), v(Q_ + e), m="quad_perm:[0,0,1,2]" + DPPM)
    for e in range(2): k("v_cndmask_b32", v(SH + e), v(SH + e), "0", s(sMK, 2))
    cmac(k, Q_, L32, SH, Q_)
    k("s_mov_b32", s(sA0), "0x33333333"); k("s_mov_b32", s(sA1), "0x33333333")
    for e in range(2): k("v_mov_b32_dpp", v(SH + e), v(Q_ + e), m="quad_perm:[0,1,0,1]" + DPPM)
    for e in range(2): k("v_cndmask_b32", v(SH + e), v(SH + e), "0", s(sA0, 2))
    cmac(k, Q_, L64, SH, Q_)
    k("buffer_store_dwordx2", v(Q_, 2), v(vTS), s(WS, 4), "0", m="offen sc0 sc1"); vm.issue("st2")
    for e in range(2): k("v_mov_b32_dpp", v(XE + e), v(Q_ + e), m="quad_perm:[0,0,1,2]" + DPPM)
    for e in range(2): k("v_cndmask_b32", v(XE + e), v(XE + e), "0", s(sMK, 2))
    st.mark(7)
    k("s_waitcnt", "vmcnt(%d)" % vm.n_after("ck"))
    k("v_cmp_ne_u32", "vcc", "32", v(vCK))
    k("s_mov_b32", s(sO), str(WS_CT))
    spin_check(k, "V_S0", lambda: k("buffer_load_dword", v(vCK), v(vCA), s(WS, 4), s(sO), m="offen sc1"),
               lambda: k("v_cmp_ne_u32", "vcc", "32", v(vCK)))
    sCA, sCB = sXB, sWB
    k("s_mul_i32", s(sCA), s(sJ8), "204800"); k("s_mul_i32", s(sT), s(sW), "10240"); k("s_add_u32", s(sCA), s(sCA), s(sT)); k("s_add_u32", s(sCA), s(sCA), str(WS_CP))
    k("s_and_b32", s(sXL), s(sJ8), "1")
    k("s_mul_i32", s(sT), s(sXL), "5120"); k("s_sub_u32", s(sCB), s(sCA), s(sT)); k("s_add_u32", s(sCA), s(sCA), s(sT))
    def ld_cp(kq, f):
        n, kk = divmod(f, 10)
        kq("s_add_u32", s(sA6), s(sCA if kk < 5 else sCB), str(n * 40960 + kk * 1024))
        kq("buffer_load_dwordx4", a(40 * n + 4 * kk, 4), v(vF), s(WS, 4), s(sA6), m="offen sc1")
    k("s_mul_i32", s(sA2), s(sJ), "6144"); k("s_add_u32", s(sA2), s(sA2), str(WS_TS))
    def ld_T():
        for n in range(4): k("buffer_load_dwordx2", v(TG + 2 * n, 2), v(vGA + n), s(WS, 4), s(sA2), m="offen offset:%d sc1" % (n * 384))
    def ck_T():
        k("v_max3_u32", v(vT), v(TG), v(TG + 1), v(TG + 2)); k("v_max3_u32", v(vT), v(TG + 3), v(TG + 4), v(vT))
        k("v_max3_u32", v(vT), v(TG + 5), v(TG + 6), v(vT)); k("v_max_u32", v(vT), v(TG + 7), v(vT))
        k("v_cmp_eq_u32", "vcc", "-1", v(vT))
    N_CP1 = 30
    k("s_cmp_eq_u32", s(sISA), "0"); k("s_cbranch_scc1", "V_NOA1")
    UL = P0
    k("s_lshl_b32", s(sO), s(sU), "14"); k("s_cmp_eq_u32", s(sU), "160"); k("s_cselect_b32", s(sO), "0", s(sO))
    k("s_lshl_b32", s(sT), s(sW), "12"); k("s_add_u32", s(sO), s(sO), s(sT)); k("s_add_u32", s(sO), s(sO), str(WS_UU))
    k("s_waitcnt", "lgkmcnt(0)")
    for n in range(4): k("buffer_load_dwordx4", v(UL + 4 * n, 4), v(vF), s(WS, 4), s(sO), m="offen offset:%d sc1" % (n * 1024))
    for f in range(8): ld_cp(k, 49 - f)
    vUW, vH4, vSTP, vB2 = 251, 252, 255, 207
    k("v_bfe_u32", v(vT), v(LANE), "1", "1"); k("v_lshlrev_b32", v(vUW), "10", v(vT))
    k("v_and_b32", v(vT2), "1", v(LANE)); k("v_lshl_add_u32", v(vUW), v(vT2), "9", v(vUW))
    k("v_lshrrev_b32", v(vT2), "2", v(LANE)); k("v_lshl_add_u32", v(vUW), v(vT2), "4", v(vUW))
    k("s_lshl_b32", s(sA0), s(sW), "12"); k("v_add_u32", v(vUW), s(sA0), v(vUW))
    k("v_cvt_f32_u32", v(vH4), v(vH)); k("v_mul_f32", v(vH4), "4.0", v(vH4))
    k("v_lshlrev_b32", v(vT2), "6", v(vL5)); k("v_add_u32", v(vT2), s(sM), v(vT2))
    k("v_cvt_f32_u32", v(vSTP), v(vT2)); k("v_mul_f32", v(vSTP), f32(1 / 2048), v(vSTP)); k("v_mul_f32", v(P1), v(vSTP), v(vH4))
    gen16(k, vSTP, P1, FC, FS, FN, VY)
    k("s_waitcnt", "vmcnt(8)")
    k("s_cmp_lg_u32", s(sQ), "0"); k("s_cbranch_scc1", "V_NSU")
    k("s_and_b32", s(sT), s(sM), "31"); k("s_cmp_lg_u32", s(sT), "0"); k("s_cbranch_scc1", "V_NSU")
    k("s_lshr_b32", s(sT), s(sM), "5")
    k("v_cmp_ne_u32", "vcc", s(sT), v(vT))
    for r in range(16): k("v_cndmask_b32", v(UL + r), v(UL + r), "0", "vcc")
    k("s_lshl_b32", s(sT), s(sT), "10"); k("v_xor_b32", v(vUW), s(sT), v(vUW))
    k.label("V_NSU")
    for n in range(4): k("ds_write_b128", v(vUW), v(UL + 4 * n, 4), m="offset:%d" % (L_UI + (n >> 1) * 2048 + (n & 1) * 256))
    cap = Cap()
    cap("v_cvt_f32_u32", v(vSTP), v(vL5)); cap("v_mul_f32", v(vSTP), f32(1 / 32), v(vSTP))
    cap("v_cvt_f32_u32", v(vT), s(sM)); cap("v_fmamk_f32", v(vT), v(vT), f32(1 / 64), v(vH4)); cap("v_mul_f32", v(vH4), v(vSTP), v(vT))
    gen16(cap, vSTP, vH4, F2C, F2S, F2N, VY)
    k("s_waitcnt", "lgkmcnt(0)"); k("s_barrier")
    st.mark(8)
    def big_stage(base, first_is_A, cap, cps):
        def rd(ks):
            for pl in range(2):
                k("ds_read_b128", a(aOP + 8 * (ks & 3) + 4 * pl, 4), v(vF), m="offset:%d" % (base + ks * 2048 + pl * 1024))
        for ks in range(4): rd(ks)
        for ks in range(8):
            out = min(7, ks + 3) - ks
            k("s_waitcnt", "lgkmcnt(%d)" % (2 * out))
            re, im = a(aOP + 8 * (ks & 3), 4), a(aOP + 8 * (ks & 3) + 4, 4)
            gc, gs = v(GC + 4 * ks, 4), v(GS + 4 * ks, 4)
            z = ks == 0
            if first_is_A: seq = [(P0, re, gc, z), (P1, im, gc, z), (P2, re, gs, z), (P0, im, gs, False)]
            else: seq = [(P0, gc, re, z), (P1, gc, im, z), (P2, gs, im, z), (P1, gs, re, False)]
            for (d, a_, b_, zz) in seq:
                k(M32, v(d, 16), a_, b_, "0" if zz else v(d, 16))
                if cps: ld_cp(k, cps.pop(0))
                if cap is not None: cap.drain(k, 16)
            if ks + 4 < 8: rd(ks + 4)
    cps = [41 - f for f in range(N_CP1 - 8)]
    big_stage(L_UI, True, cap, cps)
    cap.drain(k)
    for r in range(16): k("v_xor_b32", v(WI + r), v(vSG), v(WI + r))
    VR, VI = VY, VY + 8
    for r in range(0, 16, 2): k("v_pk_add_f32", v(P1 + r, 2), v(P1 + r, 2), v(P2 + r, 2), m="neg_lo:[0,1] neg_hi:[0,1]")
    for r in range(8): k("v_cvt_pk_bf16_f32", v(VR + r), v(P0 + 2 * r), v(P0 + 2 * r + 1))
    for r in range(8): k("v_cvt_pk_bf16_f32", v(VI + r), v(P1 + 2 * r), v(P1 + 2 * r + 1))
    for q in range(2):
        k(M32, v(P0, 16), v(FC + 4 * q, 4), v(VR + 4 * q, 4), "0" if q == 0 else v(P0, 16))
        k(M32, v(P1, 16), v(FN + 4 * q, 4), v(VR + 4 * q, 4), "0" if q == 0 else v(P1, 16))
    for q in range(2):
        k(M32, v(P0, 16), v(FS + 4 * q, 4), v(VI + 4 * q, 4), v(P0, 16))
        k(M32, v(P1, 16), v(FC + 4 * q, 4), v(VI + 4 * q, 4), v(P1, 16))
    ld_T()
    k("s_and_b32", s(sT), s(sW), "1"); k("s_add_u32", s(sT), s(sT), s(sQ)); k("s_cmp_lg_u32", s(sT), "0"); k("s_cbranch_scc1", "V_NOSP")
    for r in (vSR, vSI, vMR, vMI): k("v_lshlrev_b32", v(r), "16", v(r))
    k("v_add_f32", v(vSR), v(vSR), v(vMR)); k("v_sub_f32", v(vSI), v(vSI), v(vMI))
    k("v_mul_f32", v(vSR), "0.5", v(vSR)); k("v_mul_f32", v(vSI), "0.5", v(vSI))
    k("v_cmp_ne_u32", "vcc", "0", v(vL5))
    for r in range(16):
        k("v_cndmask_b32_dpp", v(WR + r), v(vSR), v(WR + r), "vcc", m="row_newbcast:%d" % r + DPPM)
        k("v_cndmask_b32_dpp", v(WI + r), v(vSI), v(WI + r), "vcc", m="row_newbcast:%d" % r + DPPM)
    k.label("V_NOSP")
    for r in range(0, 16, 2):
        k("v_pk_mul_f32", v(P2 + r, 2), v(P0 + r, 2), v(WR + r, 2)); k("v_pk_mul_f32", v(P0 + r, 2), v(P0 + r, 2), v(WI + r, 2))
    for r in range(0, 16, 2):
        k("v_pk_fma_f32", v(P2 + r, 2), v(P1 + r, 2), v(WI + r, 2), v(P2 + r, 2), m="neg_lo:[1,0,0] neg_hi:[1,0,0]")
        k("v_pk_fma_f32", v(P0 + r, 2), v(P1 + r, 2), v(WR + r, 2), v(P0 + r, 2))
    for r in range(8): k("v_cvt_pk_bf16_f32", v(VR + r), v(P2 + 2 * r), v(P2 + 2 * r + 1))
    for r in range(8): k("v_cvt_pk_bf16_f32", v(VI + r), v(P0 + 2 * r), v(P0 + 2 * r + 1))
    for q in range(2):
        k(M32, v(P0, 16), v(VR + 4 * q, 4), v(F2C + 4 * q, 4), "0" if q == 0 else v(P0, 16))
        k(M32, v(P1, 16), v(VR + 4 * q, 4), v(F2S + 4 * q, 4), "0" if q == 0 else v(P1, 16))
    for q in range(2):
        k(M32, v(P0, 16), v(VI + 4 * q, 4), v(F2N + 4 * q, 4), v(P0, 16))
        k(M32, v(P1, 16), v(VI + 4 * q, 4), v(F2C + 4 * q, 4), v(P1, 16))
    k("v_add_u32", v(vUW), s(sA0), v(vF))
    for r in range(8): k("v_cvt_pk_bf16_f32", v(WR + r), v(P0 + 2 * r), v(P0 + 2 * r + 1))
    for q in range(2): k("ds_write_b128", v(vUW), v(WR + 4 * q, 4), m="offset:%d" % (L_EX + q * 2048))
    for r in range(8): k("v_cvt_pk_bf16_f32", v(WR + 8 + r), v(P1 + 2 * r), v(P1 + 2 * r + 1))
    for q in range(2): k("ds_write_b128", v(vUW), v(WR + 8 + 4 * q, 4), m="offset:%d" % (L_EX + q * 2048 + 1024))
    k("s_branch", "V_J1")
    k.label("V_NOA1")
    k("s_cmp_lt_u32", s(sIDX), "24"); k("s_cbranch_scc1", "V_NOG")
    Wt, XX, GA = 16, 40, 80
    k("v_lshlrev_b32", v(vT), "4", v(vI))
    for n in range(5): k("global_load_dwordx4", v(Wt + 4 * n, 4), v(vT), s(pGW, 2), m="offset:%d" % (n * 256))
    k("v_mul_u32_u24", v(vT2), "1280", v(vG)); k("v_add_u32", v(vT2), v(vT2), v(vT))
    k("s_mul_i32", s(sO), s(sA4), "1280")
    for it in range(2):
        if it: k("s_add_u32", s(sO), s(sO), "5120")
        for n in range(5): k("buffer_load_dwordx4", v(XX + 20 * it + 4 * n, 4), v(vT2), s(SA, 4), s(sO), m="offen offset:%d" % (n * 256))
    for it in range(2): k("v_mov_b32", v(GA + it), "0")
    for it in range(2):
        k("s_waitcnt", "vmcnt(%d)" % (5 - 5 * it))
        for r in range(20): k("v_dot2c_f32_bf16", v(GA + it), v(XX + 20 * it + r), v(Wt + r))
    for sh in (8, 4, 2, 1):
        for it in range(2): k("v_add_f32_dpp", v(GA + it), v(GA + it), v(GA + it), m="row_ror:%d" % sh + DPPM)
    for it in range(2): k("v_mul_f32", v(GA + it), f32(-LOG2E), v(GA + it))
    for it in range(2): k("v_exp_f32", v(GA + it), v(GA + it))
    for it in range(2): k("v_add_f32", v(GA + it), "1.0", v(GA + it))
    for it in range(2): k("v_rcp_f32", v(GA + it), v(GA + it))
    k("v_lshlrev_b32", v(vT), "2", v(vG)); k("s_lshl_b32", s(sO), s(sA4), "2"); k("s_add_u32", s(sO), s(sO), str(WS_GG))
    for it in range(2): k("buffer_store_dword", v(GA + it), v(vT), s(WS, 4), s(sO), m="offen offset:%d sc0 sc1" % (16 * it))
    k.label("V_NOG")
    for f in range(N_CP1): ld_cp(k, 49 - f)
    ld_T()
    k.label("V_J1")
    st.mark(9)
    HC = 80
    k("s_mul_i32", s(sT), s(sW), "10240"); k("v_add_u32", v(vT2), s(sT), v(vF)); k("v_add_u32", v(vT2), str(L_PK), v(vT2))
    E0 = 120
    k("s_waitcnt", "lgkmcnt(2)")
    for n in range(3): k("ds_read_b64", v(E0 + 2 * n, 2), v(vCB), m="offset:%d" % (n * 336))
    for r in range(10): k("ds_read_b128", v(HC + 4 * r, 4), v(vT2), m="offset:%d" % (r * 1024))
    k("s_waitcnt", "vmcnt(0)")
    ck_T()
    spin_check(k, "V_S1", ld_T, ck_T)
    HI = 126
    cmul(k, HI, WGT, TG)
    for n in range(1, 4): cmac(k, HI, WGT + 2 * n, TG + 2 * n, HI)
    for qp in ("[1,0,3,2]", "[2,3,0,1]"):
        for e in range(2): k("v_add_f32_dpp", v(HI + e), v(HI + e), v(HI + e), m="quad_perm:" + qp + DPPM)
    cmac(k, XE, L32Q, HI, XE)
    k("s_waitcnt", "lgkmcnt(0)")
    read_lam()
    cmac(k, E0, L8, XE, E0); cmac(k, E0 + 2, L8, E0, E0 + 2); cmac(k, E0 + 4, L8, E0 + 2, E0 + 4)
    k("v_lshrrev_b32", v(vT2), "2", "v0"); k("v_cmp_gt_u32", "vcc", "40", v(vT2))
    k("s_and_saveexec_b64", s(sMK, 2), "vcc")
    for n, r in enumerate((XE, E0, E0 + 2, E0 + 4)):
        k("ds_write_b64", v(vCB), v(r, 2), m="offset:%d" % (L_CR - L_E + n * 336))
    k("s_mov_b64", "exec", s(sMK, 2))
    vEA = 251
    k("s_lshl_b32", s(sT), s(sW), "2"); k("v_add_u32", v(vEA), s(sT), v(vG)); k("v_mul_u32_u24", v(vEA), "336", v(vEA))
    k("v_lshl_add_u32", v(vEA), v(vI), "2", v(vEA)); k("v_add_u32", v(vEA), str(L_CR), v(vEA))
    k("s_waitcnt", "lgkmcnt(0)")
    fix_lam()
    k("s_barrier")
    CY = 120
    for t in range(5): k("ds_read_b32", v(CY + t), v(vEA), m="offset:%d" % (t * 64))
    vW1, vR1, vW2, vR2 = 224, 225, 226, 227
    k("s_mul_i32", s(sT), s(sW), "6400"); k("s_add_u32", s(sT), s(sT), str(L_H1))
    k("v_mul_u32_u24", v(vW1), "80", v(vI)); k("v_lshl_add_u32", v(vW1), v(vG), "4", v(vW1)); k("v_add_u32", v(vW1), s(sT), v(vW1))
    k("v_and_b32", v(vT), "1", v(vG)); k("v_lshlrev_b32", v(vR1), "3", v(vT)); k("v_lshrrev_b32", v(vT2), "2", v(vI)); k("v_add_u32", v(vR1), v(vR1), v(vT2))
    k("v_mul_u32_u24", v(vR1), "80", v(vR1)); k("v_lshl_add_u32", v(vR1), v(vH), "5", v(vR1))
    k("v_and_b32", v(vT2), "3", v(vI)); k("v_lshl_add_u32", v(vR1), v(vT2), "3", v(vR1)); k("v_add_u32", v(vR1), s(sT), v(vR1))
    k("v_lshl_add_u32", v(vW2), v(vH), "4", v(vI)); k("v_mul_u32_u24", v(vW2), "656", v(vW2)); k("v_lshl_add_u32", v(vW2), v(vT), "6", v(vW2))
    k("s_lshl_b32", s(sT), s(sW), "4"); k("s_add_u32", s(sT), s(sT), str(L_H2)); k("v_add_u32", v(vW2), s(sT), v(vW2))
    k("v_lshrrev_b32", v(vR2), "3", "v0"); k("v_mul_u32_u24", v(vR2), "656", v(vR2))
    k("v_and_b32", v(vT2), "7", v(LANE)); k("v_lshl_add_u32", v(vR2), v(vT2), "4", v(vR2)); k("v_add_u32", v(vR2), str(L_H2), v(vR2))
    k("s_waitcnt", "lgkmcnt(0)")
    for n in range(8):
        for t in range(5):
            prev = CY + t if n == 0 else HC + 8 * t + n - 1
            k("v_fmac_f32", v(HC + 8 * t + n), v(LR + 2 * t), v(prev))
        for t in range(5):
            prev = CY + t if n == 0 else HC + 8 * t + n - 1
            k("v_fmac_f32_dpp", v(HC + 8 * t + n), v(prev), v(LR + 2 * t + 1), m=SW)
    HP = 128
    for t in range(5):
        for e in range(4): k("v_cvt_pk_bf16_f32", v(HP + 4 * t + e), v(HC + 8 * t + 2 * e), v(HC + 8 * t + 2 * e + 1))
        k("ds_write_b128", v(vW1), v(HP + 4 * t, 4), m="offset:%d" % (t * 1280))
    k("s_waitcnt", "lgkmcnt(0)")
    for t in range(5):
        for aa in range(2): k("ds_read_b64_tr_b16", v(HC + 4 * t + 2 * aa, 2), v(vR1), m="offset:%d" % ((16 * t + 4 * aa) * 80))
    for t in range(5):
        k("s_waitcnt", "lgkmcnt(%d)" % (8 - 2 * t + t))
        k("ds_write_b128", v(vW2), v(HC + 4 * t, 4), m="offset:%d" % (t * 128))
    k("s_waitcnt", "lgkmcnt(0)"); k("s_barrier")
    for t in range(5): k("ds_read_b128", v(HP + 4 * t, 4), v(vR2), m="offset:%d" % (t * 128))
    for t in range(5):
        k("s_waitcnt", "lgkmcnt(%d)" % (4 - t))
        k("buffer_store_dwordx4", v(HP + 4 * t, 4), v(vHS), s(WS, 4), s(sHB), m="offen offset:%d sc0 sc1" % (t * 128))
    st.mark(10)
    cps = [49 - f for f in range(N_CP1, 50)]
    k("s_cmp_eq_u32", s(sISA), "0"); k("s_cbranch_scc1", "V_NOA2")
    big_stage(L_EX, False, None, list(cps))
    k("v_lshlrev_b32", v(vT), "9", v(vL5)); k("v_lshl_add_u32", v(vT), v(vH), "4", v(vT))
    k("s_lshl_b32", s(sO), s(sU), "14"); k("s_lshl_b32", s(sT), s(sW), "7"); k("s_add_u32", s(sO), s(sO), s(sT)); k("s_add_u32", s(sO), s(sO), str(WS_UP))
    for r in range(0, 16, 2): k("v_pk_add_f32", v(P0 + r, 2), v(P0 + r, 2), v(P2 + r, 2), m="neg_lo:[0,1] neg_hi:[0,1]")
    for jj in range(4):
        for r in range(4): k("v_cvt_pk_bf16_f32", v(VY + 4 * jj + r), v(P0 + 4 * jj + r), v(P1 + 4 * jj + r))
        k("buffer_store_dwordx4", v(VY + 4 * jj, 4), v(vT), s(WS, 4), s(sO), m="offen offset:%d sc0 sc1" % (jj * 32))
    k("s_branch", "V_J2")
    k.label("V_NOA2")
    for f in cps: ld_cp(k, f)
    k("v_lshrrev_b32", v(vT), "4", "v0"); k("v_mul_u32_u24", v(vT), "10240", v(vT))
    k("v_mul_u32_u24", v(vT2), "640", v(vI)); k("v_add_u32", v(vT2), v(vT), v(vT2))
    k("s_mul_i32", s(sO), s(sSLO), "163840"); k("s_add_u32", s(sO), s(sO), str(WS_HH))
    k("s_mov_b64", "vcc", "-1")
    spin_check(k, "V_CAN", lambda: k("buffer_load_dword", v(vT), v(vT2), s(WS, 4), s(sO), m="offen offset:%d sc1" % 512),
               lambda: k("v_cmp_eq_u32", "vcc", "-1", v(vT)))
    k.label("V_J2")
    k("s_barrier")
    st.mark(11)
    vm = VM()
    HV = 16
    OWN, OTH = 176, [196, 216]
    vHL, vMX, vRW, GV = 236, 237, 238, 239
    Z = 240
    k("v_bfe_u32", v(vHL), v(LANE), "2", "2"); k("v_mul_u32_u24", v(vHL), "10240", v(vHL))
    k("v_lshl_add_u32", v(vHL), v(vG), "6", v(vHL)); k("v_and_b32", v(vT), "3", v(LANE)); k("v_lshl_add_u32", v(vHL), v(vT), "4", v(vHL))
    sHA, sHZ, sRD = 36, 40, 44
    k("s_mul_i32", s(sA0), s(sSLO), "163840"); k("s_mul_i32", s(sT), s(sW), "2560"); k("s_add_u32", s(sA0), s(sA0), s(sT))
    k("s_add_u32", s(sA0), s(sA0), str(WS_HH)); k("s_mul_i32", s(sA1), s(sXL), "1280")
    k("s_mul_i32", s(sT), s(sJ8), "86"); k("s_lshr_b32", s(sT), s(sT), "8"); k("s_mul_i32", s(sT), s(sT), "3"); k("s_sub_u32", s(sA2), s(sJ8), s(sT))
    for p_ in range(4):
        if p_ < 3:
            k("s_add_u32", s(sT), s(sA2), str(p_)); k("s_cmp_ge_u32", s(sT), "3"); k("s_cselect_b32", s(sT2), "3", "0"); k("s_sub_u32", s(sT), s(sT), s(sT2))
            k("s_add_u32", s(sT2), s(sT), s(sW)); k("s_add_u32", s(sT2), s(sT2), "1"); k("s_and_b32", s(sT2), s(sT2), "3")
            k("s_mul_i32", s(sRD + p_), s(sT2), "15360"); k("s_mul_i32", s(sT), s(sT), "5120"); k("s_add_u32", s(sRD + p_), s(sRD + p_), s(sT))
        else:
            k("s_mov_b32", s(sT2), s(sW))
        k("s_mul_i32", s(sT2), s(sT2), "40960"); k("s_add_u32", s(sT2), s(sT2), s(sA0))
        k("s_add_u32", s(sHA + p_), s(sT2), s(sA1)); k("s_sub_u32", s(sHZ + p_), s(sT2), s(sA1))
    def ld_h(f, track=True):
        p_, kk = divmod(f, 10)
        k("buffer_load_dwordx4", v(HV + 4 * f, 4), v(vHL), s(WS, 4), s((sHA if kk < 5 else sHZ) + p_), m="offen offset:%d sc1" % (kk * 256))
        if track: vm.issue("h%d" % f)
    AHEAD = 20
    for f in range(AHEAD): ld_h(f)
    vU, vU2, vGO = 252, 255, 15
    k("v_and_b32", v(vU2), "7", "v0"); k("v_lshlrev_b32", v(vU2), "3", v(vU2))
    k("v_lshrrev_b32", v(vT), "3", "v0"); k("s_mov_b32", s(sT), "81920"); k("v_mad_u32_u24", v(vU), v(vT), s(sT), v(vU2))
    k("v_lshlrev_b32", v(vGO), "7", v(vI))
    sUB, sRB = 48, 49
    k("s_lshl_b32", s(sUB), s(sSLO), "9"); k("s_lshl_b32", s(sT), s(sJ8), "6"); k("s_add_u32", s(sUB), s(sUB), s(sT)); k("s_add_u32", s(sUB), s(sUB), str(WS_UP))
    k("s_lshl_b32", s(sRB), s(sW), "9"); k("s_add_u32", s(sRB), s(sRB), s(sSLO))
    def ld_U(track=True):
        for q in range(5):
            k("s_add_u32", s(sO), s(sUB), str(q * 16384))
            k("buffer_load_dwordx2", v(Z + 2 * q, 2), v(vU), s(WS, 4), s(sO), m="offen sc1")
            if track: vm.issue("U")
        k("s_add_u32", s(sO), s(sUB), str(160 * 16384))
        k("buffer_load_dwordx2", v(Z + 10, 2), v(vU2), s(WS, 4), s(sO), m="offen sc1")
        if track: vm.issue("U")
        k("s_lshl_b32", s(sO), s(sRB), "2"); k("s_add_u32", s(sO), s(sO), str(WS_GG))
        k("buffer_load_dword", v(GV), v(vGO), s(WS, 4), s(sO), m="offen sc1")
        if track: vm.issue("U")
    def ck_U():
        k("v_max3_u32", v(vT), v(Z), v(Z + 2), v(Z + 4)); k("v_max3_u32", v(vT), v(Z + 6), v(Z + 8), v(vT)); k("v_max3_u32", v(vT), v(Z + 10), v(GV), v(vT))
        k("v_cmp_eq_u32", "vcc", "-1", v(vT))
    def slot(p_, acc, cinit, extra=None):
        k.label("V_SL%d" % p_)
        k("v_mov_b32", v(vMX), "0")
        for kk in range(10):
            f = 10 * p_ + kk
            k("s_waitcnt", "vmcnt(%d)" % vm.n_after("h%d" % f))
            for n in range(5):
                cc = (cinit(n) if kk == 0 else v(acc + 4 * n, 4))
                k(M16, v(acc + 4 * n, 4), a(40 * n + 4 * kk, 4), v(HV + 4 * f, 4), cc)
                if n == 0:
                    k("v_max3_u32", v(vMX), v(HV + 4 * f), v(HV + 4 * f + 2), v(vMX))
                if n == 1 and f + AHEAD < 40: ld_h(f + AHEAD)
                if n == 2 and extra: extra(kk)
        k("v_cmp_eq_u32", "vcc", "-1", v(vMX))
        k("s_cbranch_vccz", "V_OK%d" % p_)
        def rl():
            for kk in range(10): ld_h(10 * p_ + kk, False)
        def ck():
            k("v_mov_b32", v(vMX), "0")
            for kk in range(10): k("v_max3_u32", v(vMX), v(HV + 40 * p_ + 4 * kk), v(HV + 40 * p_ + 4 * kk + 2), v(vMX))
            k("v_cmp_eq_u32", "vcc", "-1", v(vMX))
        spin_check(k, "V_RT%d" % p_, rl, ck)
        k("s_cmp_ge_u32", s(sCNT), str(SPIN_MAX)); k("s_cbranch_scc0", "V_SL%d" % p_)
        k.label("V_OK%d" % p_)
    def red_write(p_):
        def ex(kk):
            if kk == 1: k("v_add_u32", v(vRW), s(sRD + p_), v(vF))
            if 2 <= kk < 7: k("ds_write_b128", v(vRW), v(OTH[p_ & 1] + 4 * (kk - 2), 4), m="offset:%d" % (L_RED + (kk - 2) * 1024))
        return ex
    slot(0, OTH[0], lambda n: "0")
    slot(1, OTH[1], lambda n: "0", red_write(0))
    ld_U()
    slot(2, OTH[0], lambda n: "0", red_write(1))
    k("v_add_u32", v(vRW), s(sRD + 2), v(vF))
    for n in range(5): k("ds_write_b128", v(vRW), v(OTH[0] + 4 * n, 4), m="offset:%d" % (L_RED + n * 1024))
    st.mark(12)
    EF, TM, TA = 80, 16, 88
    k("s_lshl_b32", s(sT), s(sW), "4")
    k("v_add_u32", v(vT), s(sT), v(vI)); k("v_cvt_f32_u32", v(vT), v(vT)); k("v_mul_f32", v(vT), f32(1 / 64), v(vT))
    k("v_cvt_f32_u32", v(vT2), v(vG)); k("v_mul_f32", v(vT2), "4.0", v(vT2)); k("v_mul_f32", v(vT2), v(vT2), v(vT))
    for e in range(8): k("v_fmamk_f32", v(TM + e), v(vT), f32(16 * (e >> 2) + (e & 3)), v(vT2))
    for e in range(8): k("v_cos_f32", v(TM + 8 + e), v(TM + e))
    for e in range(8): k("v_sin_f32", v(TM + e), v(TM + e))
    for e in range(8): k("v_cvt_pk_bf16_f32", v(EF + e), v(TM + 8 + e), "-" + v(TM + e))
    k("v_lshlrev_b32", v(vT), "31", v(vI)); k("v_or_b32", v(vT), "0x3f003f00", v(vT))
    k("v_cmp_eq_u32", "vcc", "0", v(vG)); k("v_cndmask_b32", v(EF), v(EF), v(vT), "vcc")
    k("v_and_b32", v(vT), "7", "v0")
    k("v_lshlrev_b32", v(vT2), "1", v(vT)); k("v_add_u32", v(vT2), s(sJ8), v(vT2)); k("v_mul_u32_u24", v(vT2), "3", v(vT2))
    k("v_mul_u32_u24", v(TM), "205", v(vT2)); k("v_lshrrev_b32", v(TM), "10", v(TM)); k("v_mul_u32_u24", v(TM), "5", v(TM))
    k("v_sub_u32", v(vT2), v(vT2), v(TM)); k("v_mul_u32_u24", v(TA), "2304", v(vT2))
    for e in range(1, 5):
        k("v_add_u32", v(TA + e), "4608", v(TA + e - 1)); k("v_subrev_u32", v(TM), "11520", v(TA + e)); k("v_min_u32", v(TA + e), v(TA + e), v(TM))
    k("v_mul_u32_u24", v(vT), "288", v(vT)); k("v_lshrrev_b32", v(vT2), "3", "v0"); k("v_lshl_add_u32", v(vT), v(vT2), "2", v(vT))
    k("v_add_u32", v(vT), str(L_TP), v(vT))
    for e in range(5): k("v_add_u32", v(TA + e), v(TA + e), v(vT))
    k("s_waitcnt", "vmcnt(%d)" % vm.n_after("U"))
    ck_U()
    spin_check(k, "V_S3", lambda: ld_U(False), ck_U)
    regs = []
    for u in range(2):
        b = TM + 28 * u
        L = [b + 2 * q for q in range(5)]
        S1, D1, S2, D2, A1, A2, B1, B2, T0 = [b + 10 + 2 * i for i in range(9)]
        regs.append((L, S1, D1, S2, D2, A1, A2, B1, B2, T0))
        for q in range(5):
            k("v_lshlrev_b32", v(L[q]), "16", v(Z + 2 * q + u)); k("v_and_b32", v(L[q] + 1), "0xffff0000", v(Z + 2 * q + u))
        k("v_pk_add_f32", P(S1), P(L[1]), P(L[4])); k("v_pk_add_f32", P(D1), P(L[1]), P(L[4]), m="neg_lo:[0,1] neg_hi:[0,1]")
        k("v_pk_add_f32", P(S2), P(L[2]), P(L[3])); k("v_pk_add_f32", P(D2), P(L[2]), P(L[3]), m="neg_lo:[0,1] neg_hi:[0,1]")
    k("s_cmp_lg_u32", s(sW), "0"); k("s_cbranch_scc1", "V_NSP3")
    k("s_mov_b64", "exec", "0xff")
    for u in range(2):
        L, S1, D1, S2, D2 = regs[u][:5]
        k("v_lshlrev_b32", v(L[0] + 1), "16", v(Z + 10 + u))
        for (S_, D_, x_, y_) in ((S1, D1, L[1], L[4]), (S2, D2, L[2], L[3])):
            k("v_add_f32", v(S_), v(x_), v(x_)); k("v_add_f32", v(S_ + 1), v(y_), v(y_))
            k("v_add_f32", v(D_), v(y_ + 1), v(y_ + 1)); k("v_add_f32", v(D_ + 1), v(x_ + 1), v(x_ + 1))
    k("s_mov_b64", "exec", "-1")
    k.label("V_NSP3")
    for u in range(2):
        L, S1, D1, S2, D2, A1, A2, B1, B2, T0 = regs[u]
        k("v_pk_add_f32", P(T0), P(L[0]), P(S1))
        k("v_pk_fma_f32", P(A1), P(S1), s(sC1, 2), P(L[0])); k("v_pk_fma_f32", P(A2), P(S1), s(sC2, 2), P(L[0]))
        k("v_pk_mul_f32", P(B1), P(D1), s(sN1, 2)); k("v_pk_mul_f32", P(B2), P(D1), s(sN2, 2))
        k("v_pk_add_f32", P(T0), P(T0), P(S2))
        k("v_pk_fma_f32", P(A1), P(S2), s(sC2, 2), P(A1)); k("v_pk_fma_f32", P(A2), P(S2), s(sC1, 2), P(A2))
        k("v_pk_fma_f32", P(B1), P(D2), s(sN2, 2), P(B1)); k("v_pk_fma_f32", P(B2), P(D2), s(sN1, 2), P(B2), m="neg_lo:[1,0,0] neg_hi:[1,0,0]")
        k("v_pk_add_f32", P(S1), P(A1), P(B1), m="op_sel:[0,1] op_sel_hi:[1,0] neg_lo:[0,1]")
        k("v_pk_add_f32", P(D1), P(A1), P(B1), m="op_sel:[0,1] op_sel_hi:[1,0] neg_hi:[0,1]")
        k("v_pk_add_f32", P(S2), P(A2), P(B2), m="op_sel:[0,1] op_sel_hi:[1,0] neg_lo:[0,1]")
        k("v_pk_add_f32", P(D2), P(A2), P(B2), m="op_sel:[0,1] op_sel_hi:[1,0] neg_hi:[0,1]")
        for e, r in enumerate((T0, S1, S2, D2, D1)):
            k("v_cvt_pk_bf16_f32", v(L[e]), v(r), v(r + 1))
            k("ds_write_b32", v(TA + (e + 4 * u) % 5), v(L[e]), m="offset:%d" % (144 * u))
    IN_ = OTH[1]
    for n in range(5):
        for hf in range(2):
            t = 96 + 6 * hf
            k("v_accvgpr_read_b32", v(t + 4), a(aXP + 2 * n + hf)); k("v_accvgpr_read_b32", v(t + 5), a(aDP + 2 * n + hf))
            k("v_lshlrev_b32", v(t), "16", v(t + 4)); k("v_and_b32", v(t + 1), "0xffff0000", v(t + 4))
            k("v_lshlrev_b32", v(t + 2), "16", v(t + 5)); k("v_and_b32", v(t + 3), "0xffff0000", v(t + 5))
            k("v_pk_mul_f32", v(IN_ + 4 * n + 2 * hf, 2), v(t, 2), v(t + 2, 2))
    k("v_mul_u32_u24", v(vT), "144", v(vI)); k("v_lshl_add_u32", v(vT), v(vG), "4", v(vT)); k("v_add_u32", v(vT), str(L_TP), v(vT))
    k("s_mul_i32", s(sT), s(sW), "15360"); k("v_add_u32", v(vT2), s(sT), v(vF))
    k("s_waitcnt", "lgkmcnt(0)"); k("s_barrier")
    TF, RD, AA = 96, 16, OTH[0]
    for n in range(5):
        for q in range(2): k("ds_read_b128", v(TF + 8 * n + 4 * q, 4), v(vT), m="offset:%d" % (n * 2304 + 64 * q))
    def rd_red(kk):
        if 1 <= kk < 6:
            for mu in range(3):
                n = kk - 1
                k("ds_read_b128", v(RD + 12 * n + 4 * mu, 4), v(vT2), m="offset:%d" % (L_RED + mu * 5120 + n * 1024))
            k("s_waitcnt", "lgkmcnt(9)")
    st.mark(13)
    slot(3, OWN, lambda n: v(IN_ + 4 * n, 4), rd_red)
    k("s_waitcnt", "lgkmcnt(0)")
    for q in range(2):
        for n in range(5):
            k(M16, v(AA + 4 * n, 4), v(TF + 8 * n + 4 * q, 4), v(EF + 4 * q, 4), "0" if q == 0 else v(AA + 4 * n, 4))
    GS_, G1, vXO = 88, 90, 92
    k("v_mul_f32", v(GS_), f32(2.0 / (2048 * 640)), v(GV)); k("v_sub_f32", v(G1), "1.0", v(GV))
    k("s_mov_b32", s(sT), "81920"); k("v_lshlrev_b32", v(vXO), "4", v(vG)); k("v_mad_u32_u24", v(vXO), v(vI), s(sT), v(vXO))
    srd(k, SA, pOUT, 5242880)
    k("s_mul_i32", s(sO), s(sRB), "2560"); k("s_lshl_b32", s(sT), s(sJ8), "6"); k("s_add_u32", s(sO), s(sO), s(sT))
    for n in range(5):
        r = RD + 12 * n
        for hf in range(0, 4, 2):
            k("v_pk_add_f32", v(r + hf, 2), v(r + hf, 2), v(r + 4 + hf, 2))
            k("v_pk_add_f32", v(OWN + 4 * n + hf, 2), v(OWN + 4 * n + hf, 2), v(r + 8 + hf, 2))
        for hf in range(0, 4, 2): k("v_pk_add_f32", v(OWN + 4 * n + hf, 2), v(OWN + 4 * n + hf, 2), v(r + hf, 2))
        for hf in range(0, 4, 2): k("v_pk_mul_f32", v(OWN + 4 * n + hf, 2), v(OWN + 4 * n + hf, 2), v(G1, 2), m="op_sel_hi:[1,0]")
    for n in range(5):
        for hf in range(0, 4, 2):
            k("v_pk_fma_f32", v(OWN + 4 * n + hf, 2), v(AA + 4 * n + hf, 2), v(GS_, 2), v(OWN + 4 * n + hf, 2), m="op_sel_hi:[1,0,1]")
        k("buffer_store_dwordx4", v(OWN + 4 * n, 4), v(vXO), s(SA, 4), s(sO), m="offen offset:%d" % (n * 512))
    st.mark(14)
    if STAMP: k("s_waitcnt", "vmcnt(0)")
    st.mark(15, True)
    st.flush()
    k.label("V_END")
    k("s_endpgm")
    return k

HDR = open("gated_mix__spectral_gfnet__ssm_conv_s5__prompt.s.ref").read().split("\n")
HDR = [l for l in HDR if l.startswith(";") and "@launch" not in l and "Override" not in l and "grid=ceil" not in l]
if __name__ == "__main__":
    import sys
    k = gen_v()
    txt = build_file(HDR, [k], [])
    lines = txt.split("\n")
    i = lines.index('.amdgcn_target "amdgcn-amd-amdhsa--gfx950"')
    lines.insert(i, "; @launch grid=(256,1,1) block=(256,1,1) lds=%d" % LDS_TOTAL)
    open(sys.argv[1] if len(sys.argv) > 1 else "v.s", "w").write("\n".join(lines))
    print("maxv", k.maxv, "maxa", k.maxa, "maxs", k.maxs, "instrs", len(k.items))
```

```python
from vcommon import *
KNAME = "gated_mix__spectral_gfnet__ssm_conv_s5__prompt_kernel"
M16 = "v_mfma_f32_16x16x32_bf16"
M32 = "v_mfma_f32_32x32x16_bf16"
DPPM = " row_mask:0xf bank_mask:0xf"
ROT = int(os.environ.get("ROT", "2"))
NOPOI = int(os.environ.get("NOPOI", "0"))
SPINK = int(os.environ.get("SPINK", "0"))

L_WT, L_AR, L_XR, L_LT = 0, 102400, 112640, 161792
LDS_TOTAL = 163840
L_UI, L_EX, L_PK = 0, 16384, 32768
L_E, L_CR = 73728, 79360
L_H1, L_H2 = 86016, 111616
L_TP = 133120
L_RED = 0

WS, SA, SB, SC, SD = 4, 8, 12, 16, 20
sW, sC, sJ, sSLO, sJ8, sM, sQ, sU, sO, sT, sT2, sIDX = range(24, 36)
pX, pWR, pWI, pLR, pLI, pBR, pBI, pCR, pCI, pLD, pDS, pGW, pOUT, pDBG, pWS = 36, 38, 40, 44, 46, 48, 50, 52, 54, 56, 58, 60, 62, 64, 66
sSC, sXB, sWB, sXL, sWL, sISA = 68, 73, 74, 75, 76, 77
sC1, sC2, sN1, sN2, sMK = 78, 80, 82, 84, 86
sHB, sCNT, sA0, sA1, sA2, sA3, sA4, sA5, sA6 = range(88, 97)
LANE, vG, vI, vT, vT2, vF, vL5, vH, vHS, vSG = range(1, 11)
vSR, vSI, vMR, vMI = 11, 12, 13, 14
GC, GS = 16, 48
FC, FS, FN, F2C, F2S, F2N = 80, 88, 96, 104, 112, 120
WR, WI = 128, 144
P0, P1, P2 = 160, 176, 192
VY = 208
L8, L32Q, WGT, XE, TG, vGA = 224, 226, 228, 236, 238, 246
L32, L64 = 238, 240
vTS = 250
ACC = 160
aXP, aDP, aOP = 200, 210, 224

def P(r): return v(r, 2)

def spin_check(k, name, reload, check):
    k("s_mov_b32", s(sCNT), "0")
    k.label(name + "_L")
    k("s_cbranch_vccz", name + "_D")
    k("s_add_u32", s(sCNT), s(sCNT), "1"); k("s_cmp_ge_u32", s(sCNT), str(SPIN_MAX)); k("s_cbranch_scc1", name + "_D")
    k("s_sleep", "2")
    reload()
    k("s_waitcnt", "vmcnt(0)")
    check()
    k("s_branch", name + "_L")
    k.label(name + "_D")

def gen_v():
    k = Kern(KNAME)
    st = Stamps(k, WS, sW)
    vm = VM()
    k("s_cmp_ge_u32", "s2", "256"); k("s_cbranch_scc1", "V_END")
    if SPINK: k("s_memrealtime", s(100, 2))
    k("s_load_dwordx16", s(36, 16), s(0, 2), "0")
    k("s_load_dwordx16", s(52, 16), s(0, 2), "64")
    k("v_lshrrev_b32", v(vT), "6", "v0"); k("v_and_b32", v(LANE), "63", "v0")
    k("v_readfirstlane_b32", s(sW), v(vT))
    k("v_lshrrev_b32", v(vG), "4", v(LANE)); k("v_and_b32", v(vI), "15", v(LANE))
    k("v_lshlrev_b32", v(vF), "4", v(LANE)); k("v_and_b32", v(vL5), "31", v(LANE)); k("v_lshrrev_b32", v(vH), "5", v(LANE))
    k("s_lshr_b32", s(sIDX), "s2", "3")
    k("s_lshr_b32", s(sA0), "s2", "6")
    k("s_and_b32", s(sJ8), s(sIDX), "7")
    k("s_bfe_u32", s(sC), "s2", "0x20001"); k("s_lshl_b32", s(sC), s(sC), "2"); k("s_add_u32", s(sC), s(sC), s(sA0))
    k("s_and_b32", s(sJ), "s2", "1"); k("s_lshl_b32", s(sJ), s(sJ), "3"); k("s_add_u32", s(sJ), s(sJ), s(sJ8))
    k("s_and_b32", s(sSLO), "s2", "7"); k("s_lshl_b32", s(sSLO), s(sSLO), "2"); k("s_add_u32", s(sSLO), s(sSLO), s(sA0))
    k("s_add_u32", s(sT), s(sA0), s(sJ8))
    if ROT == 2:
        k("s_and_b32", s(sT), s(sT), "1"); k("s_mul_i32", s(sSC), s(sT), "512")
    elif ROT == 1:
        k("s_mov_b32", s(sSC), "0")
    else:
        for _ in range(2):
            k("s_cmp_ge_u32", s(sT), "5"); k("s_cselect_b32", s(sT2), "5", "0"); k("s_sub_u32", s(sT), s(sT), s(sT2))
        k("s_lshl_b32", s(sSC), s(sT), "8")
    for i in range(1, 5):
        k("s_add_u32", s(sSC + i), s(sSC + i - 1), "256")
        k("s_cmp_ge_u32", s(sSC + i), "1280"); k("s_cselect_b32", s(sSC + i), "0", s(sSC + i))
    k("s_lshr_b32", s(sA1), s(sW), "1"); k("s_and_b32", s(sA2), s(sW), "1")
    k("s_lshl_b32", s(sXB), s(sC), "2"); k("s_add_u32", s(sXB), s(sXB), s(sW)); k("s_mul_i32", s(sXB), s(sXB), str(32 * 1280))
    k("s_mul_i32", s(sWB), s(sJ), str(40 * 1280)); k("s_lshl_b32", s(sT), s(sA1), "7"); k("s_add_u32", s(sWB), s(sWB), s(sT))
    k("s_mul_i32", s(sWL), s(sA1), "10240"); k("s_mul_i32", s(sT), s(sA2), "5120"); k("s_add_u32", s(sWL), s(sWL), s(sT))
    k("s_mul_i32", s(sXL), s(sW), "12288"); k("s_add_u32", s(sXL), s(sXL), str(L_XR))
    k("s_mul_i32", s(sA3), s(sSLO), "1280"); k("s_mul_i32", s(sT), s(sA2), str(32 * 40960)); k("s_add_u32", s(sA3), s(sA3), s(sT))
    k("s_lshl_b32", s(sT), s(sA1), "8"); k("s_add_u32", s(sA3), s(sA3), s(sT))
    k("s_lshl_b32", s(sT), s(sJ8), "5"); k("s_add_u32", s(sA3), s(sA3), s(sT))
    k("s_lshl_b32", s(sA4), s(sW), "10"); k("s_add_u32", s(sA4), s(sA4), str(L_AR))
    vX = [200, 201, 202, 203]; vW = [11, 12, 13, 14, 15]; vRW0, vRW1, vRX0, vRX1 = 204, 205, 206, 207
    vAO = 80
    k("s_mov_b32", s(sT), "40960")
    k("v_lshrrev_b32", v(vT), "1", v(LANE)); k("v_and_b32", v(vAO), "1", v(LANE)); k("v_lshlrev_b32", v(vAO), "4", v(vAO))
    k("v_mad_u32_u24", v(vAO), v(vT), s(sT), v(vAO))
    k("v_bfe_u32", v(vT), v(LANE), "3", "2"); k("v_lshl_add_u32", v(vT), v(vH), "3", v(vT))
    k("v_mul_u32_u24", v(vT), "1280", v(vT))
    k("v_and_b32", v(vT2), "7", v(LANE)); k("v_xor_b32", v(vT2), v(vT2), v(vG))
    k("v_lshl_add_u32", v(vX[0]), v(vT2), "4", v(vT))
    k("v_xor_b32", v(vX[1]), "64", v(vX[0]))
    k("v_add_u32", v(vX[2]), str(4 * 1280 - 2048), v(vX[0]))
    k("v_add_u32", v(vX[3]), str(20 * 1280 - 3072), v(vX[1]))
    k("v_add_u32", v(vX[1]), str(16 * 1280 - 1024), v(vX[1]))
    k("v_lshrrev_b32", v(vT), "3", v(LANE))
    k("v_and_b32", v(vT2), "6", v(vT)); k("v_xor_b32", v(vT2), v(vT2), v(LANE)); k("v_xor_b32", v(vT2), s(sA2), v(vT2))
    k("v_and_b32", v(vT2), "7", v(vT2)); k("v_mul_u32_u24", v(vT), "1280", v(vT))
    k("v_lshl_add_u32", v(vW[0]), v(vT2), "4", v(vT))
    for t in range(1, 4): k("v_add_u32", v(vW[t]), str(t * (10240 - 1024)), v(vW[0]))
    k("v_add_u32", v(vW[4]), str(4 * 10240), v(vW[0]))
    vPC, vPP, vPO = 81, 82, 83
    k("v_lshrrev_b32", v(vPC), "2", "v0"); k("v_min_u32", v(vPC), "39", v(vPC))
    k("s_mul_i32", s(sT), s(sJ), "40"); k("v_add_lshl_u32", v(vPC), s(sT), v(vPC), "1")
    k("s_min_u32", s(sT), "s2", "199")
    k("s_mul_i32", s(sA5), s(sT), "205"); k("s_lshr_b32", s(sA5), s(sA5), "10")
    k("s_mul_i32", s(sT2), s(sA5), "5"); k("s_sub_u32", s(sA6), s(sT), s(sT2)); k("s_lshl_b32", s(sA6), s(sA6), "2"); k("s_add_u32", s(sA6), s(sA6), s(sW))
    k("v_and_b32", v(vPP), "7", v(vI)); k("v_lshl_add_u32", v(vPP), v(vG), "3", v(vPP))
    k("s_lshl_b32", s(sT), s(sA6), "5"); k("v_add_lshl_u32", v(vPP), s(sT), v(vPP), "1")
    k("v_mul_u32_u24", v(vPO), "1280", v(vI)); k("v_lshl_add_u32", v(vPO), v(vG), "4", v(vPO))
    k("s_mul_i32", s(sT), s(sA5), "20480"); k("s_lshl_b32", s(sT2), s(sA6), "6"); k("s_add_u32", s(sT), s(sT), s(sT2))
    k("v_add_u32", v(vPO), s(sT), v(vPO))
    k("s_waitcnt", "lgkmcnt(0)")
    st.mark(0, True); st.mark(1)
    srd(k, WS, pWS, WS_SIZE); srd(k, SA, pX, 2621440)
    k("s_cmp_eq_u32", s(sA2), "0")
    k("s_cselect_b32", s(SB), s(pBR), s(pBI)); k("s_cselect_b32", s(SB + 1), s(pBR + 1), s(pBI + 1))
    k("s_mov_b32", s(SB + 2), "819200"); k("s_mov_b32", s(SB + 3), "0x20000")
    vZ, vCA = 84, 85
    k("v_mov_b32", v(vZ), "0"); k("v_lshlrev_b32", v(vCA), "7", v(vL5))
    k("s_or_b32", s(sT), "s2", s(sW)); k("s_cmp_lg_u32", s(sT), "0"); k("s_cbranch_scc1", "V_NZ")
    k("s_mov_b32", s(sO), str(WS_CT))
    k("buffer_store_dword", v(vZ), v(vCA), s(WS, 4), s(sO), m="offen sc0 sc1")
    k.label("V_NZ")
    def dma(srdn, voff, soff, off, tag):
        k("buffer_load_dwordx4", v(voff), s(srdn, 4), s(soff), m="offen offset:%d lds" % off if off else "offen lds")
        vm.issue(tag)
    k("s_cmp_ge_u32", s(sW), "2"); k("s_cbranch_scc1", "V_A2")
    k("s_add_u32", "m0", s(sA4), "8192"); k("s_add_u32", s(sO), s(sA3), "1024")
    k("buffer_load_dwordx4", v(vAO), s(SA, 4), s(sO), m="offen lds")
    k.label("V_A2")
    k("s_mov_b32", "m0", s(sA4)); k("s_add_u32", s(sO), s(sA3), "512"); dma(SA, vAO, sA3, 0, "A")
    k("s_add_u32", "m0", s(sA4), "4096"); dma(SA, vAO, sO, 0, "A")
    PC, PP = 86, 89
    for base, off in ((PC, vPC), (PP, vPP)):
        for n, ptr in enumerate((pLR, pLI, pLD)):
            k("global_load_ushort", v(base + n), v(off), s(ptr, 2)); vm.issue("par")
    def x_items(c):
        it = [("s", lambda: (k("s_add_u32", "m0", s(sXL), str((c % 3) * 4096)), k("s_add_u32", s(sA0), s(sXB), s(sSC + c // 2)),
                             (k("s_add_u32", s(sA0), s(sA0), "128") if c & 1 else None)))]
        for q in range(4):
            it.append(("d", lambda q=q: dma(SA, vX[q], sA0, q * 1024, "x%d" % c)))
        return it
    def w_items(sc):
        it = [("s", lambda: (k("s_add_u32", "m0", s(sWL), str(L_WT + sc * 20480)), k("s_add_u32", s(sA1), s(sWB), s(sSC + sc))))]
        for t in range(4):
            it.append(("d", lambda t=t: dma(SB, vW[t], sA1, t * 1024, "w%d" % sc)))
        it.append(("s", lambda: k("s_add_u32", "m0", s(sWL), str(L_WT + sc * 20480 + 4096))))
        it.append(("d", lambda: dma(SB, vW[4], sA1, 0, "w%d" % sc)))
        return it
    def run(items):
        for _, f in items: f()
    run(x_items(0)); run(w_items(0))
    PIN = 92
    k("global_load_dwordx4", v(PIN, 4), v(vPO), s(pCR, 2)); vm.issue("pc")
    k("global_load_dwordx4", v(PIN + 4, 4), v(vPO), s(pCI, 2)); vm.issue("pc")
    k("s_or_b32", s(sT), "s2", s(sW)); k("s_cmp_lg_u32", s(sT), "0"); k("s_cbranch_scc1", "V_NR")
    k("s_waitcnt", "vmcnt(%d)" % (len(vm.tags) + 1))
    k("v_mov_b32", v(vT), "1")
    k("global_store_dword", v(vZ), v(vT), s(pDBG, 2), m="sc0 sc1")
    k.label("V_NR")
    run(x_items(1))
    k("s_mul_i32", s(sT), s(sIDX), "52"); k("s_lshr_b32", s(sT), s(sT), "8")
    k("s_mul_i32", s(sT2), s(sT), "5"); k("s_sub_u32", s(sQ), s(sIDX), s(sT2))
    k("s_and_b32", s(sM), "s2", "7"); k("s_lshl_b32", s(sT), s(sT), "3"); k("s_add_u32", s(sM), s(sM), s(sT))
    k("s_mul_i32", s(sU), s(sM), "5"); k("s_add_u32", s(sU), s(sU), s(sQ))
    k("s_sub_u32", s(sT), s(sU), "3"); k("s_cmp_lt_u32", s(sT), "2"); k("s_cselect_b32", s(sM), "32", s(sM))
    k("s_cmp_le_u32", "s2", "160"); k("s_cselect_b32", s(sISA), "1", "0")
    FA, TM, TW1, TW2, vMF, vBS = 100, 108, 124, 126, 128, 129
    k("v_lshrrev_b32", v(vT), "1", v(vI))
    k("s_lshl_b32", s(sT), s(sW), "3"); k("v_add_u32", v(vMF), s(sT), v(vT))
    k("v_and_b32", v(vT2), "1", v(vI))
    k("v_cvt_f32_u32", v(vBS), v(vT2)); k("v_mul_f32", v(vBS), f32(0.25), v(vBS))
    k("v_lshl_add_u32", v(vT2), v(vMF), "1", v(vT2)); k("v_cmp_eq_u32", "vcc", "1", v(vT2))
    k("v_cndmask_b32", v(vMF), v(vMF), "32", "vcc"); k("v_cndmask_b32", v(vBS), v(vBS), "0", "vcc")
    k("v_cvt_f32_u32", v(vMF), v(vMF)); k("v_mul_f32", v(vMF), f32(1 / 64), v(vMF))
    k("v_cvt_f32_u32", v(vT2), v(vG)); k("v_mul_f32", v(vT2), "4.0", v(vT2)); k("v_fmac_f32", v(vBS), v(vMF), v(vT2))
    for ks in range(2):
        for e in range(8): k("v_fmamk_f32", v(TM + 8 * ks + e), v(vMF), f32(32 * ks + 16 * (e >> 2) + (e & 3)), v(vBS))
    for e in range(16): k("v_cos_f32", v(TM + e), v(TM + e))
    for e in range(8): k("v_cvt_pk_bf16_f32", v(FA + e), v(TM + 2 * e), v(TM + 2 * e + 1))
    k("s_lshl_b32", s(sT), s(sJ8), "4")
    k("v_add_u32", v(vT2), s(sT), v(vI)); k("v_cvt_f32_u32", v(vT2), v(vT2))
    k("v_mul_f32", v(TW1), f32(0.2), v(vT2)); k("v_mul_f32", v(TW2), f32(0.4), v(vT2))
    k("v_sin_f32", v(TW1 + 1), v(TW1)); k("v_sin_f32", v(TW2 + 1), v(TW2))
    k("v_cos_f32", v(TW1), v(TW1)); k("v_cos_f32", v(TW2), v(TW2))
    for r, val in ((sC1, C1), (sC2, C2), (sN1, N1), (sN2, N2)):
        k("s_mov_b32", s(r), f32(val)); k("s_mov_b32", s(r + 1), f32(val))
    k("v_lshrrev_b32", v(vT), "1", v(vI)); k("v_and_b32", v(vT2), "1", v(vI))
    k("v_and_b32", v(vRW0), "6", v(vT)); k("v_xor_b32", v(vRW0), v(vRW0), v(vT2)); k("v_xor_b32", v(vRW0), v(vRW0), v(vG))
    k("v_lshlrev_b32", v(vRW0), "4", v(vRW0)); k("v_lshl_add_u32", v(vRW0), v(vT), "7", v(vRW0))
    k("v_mul_u32_u24", v(vT2), "5120", v(vT2)); k("v_add_u32", v(vRW0), v(vRW0), v(vT2)); k("v_xor_b32", v(vRW1), "64", v(vRW0))
    k("v_xor_b32", v(vRX0), v(vT), v(vG)); k("v_lshlrev_b32", v(vRX0), "4", v(vRX0))
    k("v_lshl_add_u32", v(vRX0), v(vI), "7", v(vRX0)); k("v_add_u32", v(vRX0), s(sXL), v(vRX0)); k("v_xor_b32", v(vRX1), "64", v(vRX0))
    def gen_G(k):
        vN0, vSTP, vB2 = 251, 252, 255
        k("s_lshl_b32", s(sT), s(sW), "5"); k("v_add_u32", v(vN0), s(sT), v(vL5))
        k("v_cvt_f32_u32", v(vSTP), v(vN0)); k("v_mul_f32", v(vSTP), f32(1 / 128), v(vSTP))
        k("v_cvt_f32_u32", v(vB2), v(vH)); k("v_mul_f32", v(vB2), "4.0", v(vB2)); k("v_mul_f32", v(vB2), v(vSTP), v(vB2))
        gen16(k, vSTP, vB2, GC, GS, None, VY)
        vODD, vMC, vMS, vM64 = VY, VY + 1, VY + 2, VY + 3
        k("v_bfe_i32", v(vODD), v(vN0), "0", "1"); k("v_and_b32", v(vM64), "0x80008000", v(vODD))
        k("v_bfe_i32", v(vMS), v(vN0), "1", "1"); k("v_and_b32", v(vMS), "0x80008000", v(vMS))
        k("v_xor_b32", v(vMC), v(vMS), v(vM64))
        for r in range(8):
            k("v_bfi_b32", v(GC + 8 + r), v(vODD), v(GS + r), v(GC + r)); k("v_bfi_b32", v(GS + 8 + r), v(vODD), v(GC + r), v(GS + r))
        for r in range(8):
            k("v_xor_b32", v(GC + 8 + r), v(vMC), v(GC + 8 + r)); k("v_xor_b32", v(GS + 8 + r), v(vMS), v(GS + 8 + r))
        for r in range(16):
            k("v_xor_b32", v(GC + 16 + r), v(vM64), v(GC + r)); k("v_xor_b32", v(GS + 16 + r), v(vM64), v(GS + r))
    gen_G(k)
    st.mark(2)
    run(x_items(2)); run(w_items(1))
    PZ = 132
    for r in range(4): k("v_mov_b32", v(PZ + r), "-1")
    k("v_lshrrev_b32", v(vT), "3", "v0"); k("s_mov_b32", s(sT), "163840")
    k("v_and_b32", v(vHS), "7", v(LANE)); k("v_lshlrev_b32", v(vHS), "4", v(vHS)); k("v_mad_u32_u24", v(vHS), v(vT), s(sT), v(vHS))
    k("s_mul_i32", s(sHB), s(sC), "10240"); k("s_mul_i32", s(sT), s(sJ), "640"); k("s_add_u32", s(sHB), s(sHB), s(sT)); k("s_add_u32", s(sHB), s(sHB), str(WS_HH))
    for t in range(0 if NOPOI else 5):
        k("buffer_store_dwordx4", v(PZ, 4), v(vHS), s(WS, 4), s(sHB), m="offen offset:%d sc0 sc1" % (t * 128)); vm.issue("st")
    k("s_lshl_b32", s(sO), s(sU), "14"); k("s_lshl_b32", s(sT), s(sW), "12"); k("s_add_u32", s(sO), s(sO), s(sT)); k("s_add_u32", s(sO), s(sO), str(WS_UP))
    k("s_cmp_eq_u32", s(sISA), "1"); k("s_cselect_b32", s(sO), s(sO), str(OOB))
    for n in range(0 if NOPOI else 4):
        k("buffer_store_dwordx4", v(PZ, 4), v(vF), s(WS, 4), s(sO), m="offen offset:%d sc0 sc1" % (n * 1024)); vm.issue("st")
    k("v_lshrrev_b32", v(vT), "2", "v0"); k("v_lshlrev_b32", v(vTS), "3", v(vT))
    k("v_cmp_gt_u32", "vcc", "40", v(vT)); k("v_and_b32", v(vT2), "3", "v0"); k("v_cmp_eq_u32", s(sMK, 2), "3", v(vT2))
    k("s_and_b64", "vcc", "vcc", s(sMK, 2)); k("v_mov_b32", v(vT2), str(OOB))
    k("v_cndmask_b32", v(vTS), v(vT2), v(vTS), "vcc")
    k("s_lshl_b32", s(sA2), s(sJ), "4"); k("s_add_u32", s(sA2), s(sA2), s(sC)); k("s_mul_i32", s(sA2), s(sA2), "384"); k("s_add_u32", s(sA2), s(sA2), str(WS_TS))
    k("v_add_u32", v(vTS), s(sA2), v(vTS))
    k("buffer_store_dwordx2", v(PZ, 2), v(vTS), s(WS, 4), "0", m="offen sc0 sc1"); vm.issue("st")
    k("s_and_b32", s(sA4), "s2", "7"); k("s_lshl_b32", s(sA4), s(sA4), "3"); k("s_add_u32", s(sA4), s(sA4), s(sIDX)); k("s_sub_u32", s(sA4), s(sA4), "24")
    k("s_lshl_b32", s(sA4), s(sA4), "2"); k("s_add_u32", s(sA4), s(sA4), s(sW)); k("s_lshl_b32", s(sA4), s(sA4), "3")
    k("s_lshl_b32", s(sO), s(sA4), "2"); k("s_add_u32", s(sO), s(sO), str(WS_GG))
    k("s_cmp_ge_u32", s(sIDX), "24"); k("s_cselect_b32", s(sO), s(sO), str(OOB))
    k("v_and_b32", v(vT), "7", v(LANE)); k("v_lshlrev_b32", v(vT), "2", v(vT))
    k("buffer_store_dword", v(PZ), v(vT), s(WS, 4), s(sO), m="offen sc0 sc1"); vm.issue("st")
    k("v_lshlrev_b32", v(vT), "3", v(vG)); k("s_lshl_b32", s(sT), s(sJ8), "5"); k("v_add_u32", v(vT), s(sT), v(vT))
    for n in range(5):
        k("global_load_dwordx2", a(aDP + 2 * n, 2), v(vT), s(pDS, 2), m="offset:%d" % (n * 256)); vm.issue("dsk")
    st.mark(3)
    k("s_waitcnt", "vmcnt(%d)" % vm.n_after("A")); k("s_barrier")
    vRA = 130
    XT, AC, UO = 136, 176, 108
    k("v_lshlrev_b32", v(vRA), "3", v(LANE)); k("v_add_u32", v(vRA), str(L_AR), v(vRA))
    for dh in range(5):
        for ks in range(2):
            for hf in range(2):
                k("ds_read_b64_tr_b16", v(XT + 8 * dh + 4 * ks + 2 * hf, 2), v(vRA), m="offset:%d" % (dh * 2048 + ks * 1024 + hf * 512))
        if dh == 2: k("s_waitcnt", "lgkmcnt(4)")
    k("s_lshl_b32", s(sT), s(sW), "9"); k("s_add_u32", s(sT), s(sT), str(L_AR))
    k("v_lshlrev_b32", v(vT), "5", v(vI)); k("v_lshl_add_u32", v(vT), v(vG), "3", v(vT)); k("v_add_u32", v(vT), s(sT), v(vT))
    k("s_waitcnt", "lgkmcnt(0)")
    for n in range(5): k("ds_read_b64", a(aXP + 2 * n, 2), v(vT), m="offset:%d" % (n * 2048))
    for ks in range(2):
        for dh in range(5):
            k(M16, v(AC + 4 * dh, 4), v(FA + 4 * ks, 4), v(XT + 8 * dh + 4 * ks, 4), "0" if ks == 0 else v(AC + 4 * dh, 4))
    k("s_cmp_eq_u32", s(sW), "0"); k("s_cselect_b32", s(sMK), "0xffff", "0"); k("s_mov_b32", s(sMK + 1), "0")
    for vv in range(2):
        T = lambda dh: v(AC + 4 * dh + 2 * vv, 2)
        b = XT + 20 * vv
        S1, D1, S2, D2, A1, A2, B1, B2, U0, Z = [b + 2 * i for i in range(10)]
        k("v_pk_add_f32", P(S1), T(1), T(4)); k("v_pk_add_f32", P(D1), T(1), T(4), m="neg_lo:[0,1] neg_hi:[0,1]")
        k("v_pk_add_f32", P(S2), T(2), T(3)); k("v_pk_add_f32", P(D2), T(2), T(3), m="neg_lo:[0,1] neg_hi:[0,1]")
        k("v_pk_add_f32", P(U0), T(0), P(S1))
        k("v_pk_fma_f32", P(A1), P(S1), s(sC1, 2), T(0)); k("v_pk_fma_f32", P(A2), P(S1), s(sC2, 2), T(0))
        k("v_pk_mul_f32", P(B1), P(D1), s(sN1, 2)); k("v_pk_mul_f32", P(B2), P(D1), s(sN2, 2))
        k("v_pk_add_f32", P(U0), P(U0), P(S2))
        k("v_pk_fma_f32", P(A1), P(S2), s(sC2, 2), P(A1)); k("v_pk_fma_f32", P(A2), P(S2), s(sC1, 2), P(A2))
        k("v_pk_fma_f32", P(B1), P(D2), s(sN2, 2), P(B1)); k("v_pk_fma_f32", P(B2), P(D2), s(sN1, 2), P(B2), m="neg_lo:[1,0,0] neg_hi:[1,0,0]")
        k("v_pk_add_f32", P(S1), P(A1), P(B1), m="op_sel:[0,1] op_sel_hi:[1,0] neg_hi:[0,1]")
        k("v_pk_add_f32", P(D1), P(A1), P(B1), m="op_sel:[0,1] op_sel_hi:[1,0] neg_lo:[0,1]")
        k("v_pk_add_f32", P(S2), P(A2), P(B2), m="op_sel:[0,1] op_sel_hi:[1,0] neg_hi:[0,1]")
        k("v_pk_add_f32", P(D2), P(A2), P(B2), m="op_sel:[0,1] op_sel_hi:[1,0] neg_lo:[0,1]")
        if vv == 0:
            sp = s(sMK, 2)
            k("v_cndmask_b32", v(S1), v(S1), v(A1), sp); k("v_cndmask_b32", v(S1 + 1), v(S1 + 1), "-" + v(B1), sp)
            k("v_cndmask_b32", v(D1), v(D1), v(A1 + 1), sp); k("v_cndmask_b32", v(D1 + 1), v(D1 + 1), v(B1 + 1), sp)
            k("v_cndmask_b32", v(S2), v(S2), v(A2 + 1), sp); k("v_cndmask_b32", v(S2 + 1), v(S2 + 1), "-" + v(B2 + 1), sp)
            k("v_cndmask_b32", v(D2), v(D2), v(A2), sp); k("v_cndmask_b32", v(D2 + 1), v(D2 + 1), v(B2), sp)
        k("v_cvt_pk_bf16_f32", v(UO + 5 * vv), v(U0), v(U0 + 1))
        for q, src, tw, cj, dst in ((1, D2, TW1, False, A1), (2, S1, TW2, False, A2), (3, D1, TW2, True, B1), (4, S2, TW1, True, B2)):
            k("v_pk_mul_f32", P(dst), P(src), P(tw), m="op_sel:[0,0] op_sel_hi:[1,0]")
            k("v_pk_fma_f32", P(dst), P(src), P(tw), P(dst), m="op_sel:[1,1,0] op_sel_hi:[0,1,1] " + ("neg_lo:[0,1,0]" if cj else "neg_hi:[0,1,0]"))
        for q, dst in ((1, A1), (2, A2), (3, B1), (4, B2)):
            k("v_cvt_pk_bf16_f32", v(UO + 5 * vv + q), v(dst), v(dst + 1))
    vSEL, vUO = 128, 129
    k("v_and_b32", v(vT2), "1", v(vI)); k("v_cmp_eq_u32", "vcc", "1", v(vT2))
    k("v_mov_b32", v(vSEL), "0x05040100"); k("v_mov_b32", v(vT), "0x03020706"); k("v_cndmask_b32", v(vSEL), v(vSEL), v(vT), "vcc")
    for n in range(10): k("v_mov_b32_dpp", v(XT + n), v(UO + n), m="quad_perm:[1,0,3,2]" + DPPM)
    for n in range(10): k("v_perm_b32", v(UO + n), v(XT + n), v(UO + n), v(vSEL))
    k("v_mul_u32_u24", v(vUO), "10", v(vG)); k("v_lshlrev_b32", v(vUO), "14", v(vUO))
    k("v_lshl_add_u32", v(vUO), v(vT2), "5", v(vUO))
    k("v_bfe_u32", v(vT), v(vI), "2", "1"); k("v_lshl_add_u32", v(vUO), v(vT), "4", v(vUO))
    k("v_lshrrev_b32", v(vT), "3", v(vI)); k("v_lshl_add_u32", v(vUO), v(vT), "3", v(vUO))
    k("v_and_b32", v(vT), "2", v(vI)); k("v_lshl_add_u32", v(vUO), v(vT), "1", v(vUO))
    k("s_mul_i32", s(sA3), s(sW), str(8 * 81920)); k("s_lshl_b32", s(sT), s(sJ8), "11"); k("s_add_u32", s(sA3), s(sA3), s(sT))
    k("s_lshl_b32", s(sT), s(sSLO), "6"); k("s_add_u32", s(sA3), s(sA3), s(sT))
    for vv in range(2):
        for q in range(5):
            k("s_add_u32", s(sO), s(sA3), str(WS_UU + vv * 81920 + q * 16384))
            k("buffer_store_dword", v(UO + 5 * vv + q), v(vUO), s(WS, 4), s(sO), m="offen sc0 sc1"); vm.issue("st")
    st.mark(4)
    k("s_waitcnt", "vmcnt(%d)" % vm.n_after("pc"))
    for r in range(PP, PP + 3): k("v_lshlrev_b32", v(r), "16", v(r))
    lam_calc(k, PP, PP + 1, PP + 2, 136, 137, 138)
    cexp(k, 140, 136, 137, 138)
    k("v_add_f32", v(140), "-1.0", v(140))
    k("v_mul_f32", v(136), v(PP), v(PP)); k("v_fmac_f32", v(136), v(PP + 1), v(PP + 1)); k("v_rcp_f32", v(136), v(136))
    k("v_mul_f32", v(142), v(140), v(PP)); k("v_fmac_f32", v(142), v(141), v(PP + 1))
    k("v_mul_f32", v(143), v(141), v(PP)); k("v_fma_f32", v(143), "-" + v(140), v(PP + 1), v(143))
    k("v_add_f32", v(136), v(136), v(136))
    k("v_mul_f32", v(142), v(142), v(136)); k("v_mul_f32", v(143), v(143), v(136))
    KK, POUT = 144, 160
    for c in range(8):
        for e in range(2): k("v_mov_b32_dpp", v(KK + 2 * c + e), v(142 + e), m="row_newbcast:%d" % c + DPPM)
    for c in range(8):
        t = 168 + 4 * (c & 3)
        for e in range(2):
            src = PIN + 4 * e + (c >> 1)
            if c & 1: k("v_and_b32", v(t + e), "0xffff0000", v(src))
            else: k("v_lshlrev_b32", v(t + e), "16", v(src))
        k("v_pk_mul_f32", v(t + 2, 2), v(t, 2), v(KK + 2 * c, 2), m="op_sel:[0,0] op_sel_hi:[1,0] neg_hi:[1,0]")
        k("v_pk_fma_f32", v(t + 2, 2), v(t, 2), v(KK + 2 * c, 2), v(t + 2, 2), m="op_sel:[1,1,0] op_sel_hi:[0,1,1] neg_lo:[1,0,0] neg_hi:[1,0,0]")
        k("v_cvt_pk_bf16_f32", v(POUT + c), v(t + 2), v(t + 3))
    k("v_lshlrev_b32", v(vT), "9", v(vG)); k("v_lshl_add_u32", v(vT), v(vI), "4", v(vT))
    k("s_and_b32", s(sO), s(sA5), "7"); k("s_mul_i32", s(sO), s(sO), "5"); k("s_lshr_b32", s(sT), s(sA5), "3"); k("s_add_u32", s(sO), s(sO), s(sT))
    k("s_mul_i32", s(sO), s(sO), "40960"); k("s_lshl_b32", s(sT), s(sA6), "11"); k("s_add_u32", s(sO), s(sO), s(sT)); k("s_add_u32", s(sO), s(sO), str(WS_CP))
    k("s_cmp_lt_u32", "s2", "200"); k("s_cselect_b32", s(sO), s(sO), str(OOB))
    for e in range(2):
        k("buffer_store_dwordx4", v(POUT + 4 * e, 4), v(vT), s(WS, 4), s(sO), m="offen offset:%d sc0 sc1" % (e * 256)); vm.issue("st")
    vRDY = 251
    k("global_load_dword", v(vRDY), v(vZ), s(pDBG, 2), m="sc1"); vm.issue("rdy")
    cap = Cap()
    ZR, ZI, T0, T1, T2 = VY, VY + 1, VY + 2, VY + 4, VY + 6
    for r in range(PC, PC + 3): cap("v_lshlrev_b32", v(r), "16", v(r))
    lam_calc(cap, PC, PC + 1, PC + 2, ZR, ZI, T0)
    cexp(cap, T2, ZR, ZI, T0)
    cap("v_lshrrev_b32", v(T1), "2", "v0"); cap("v_lshlrev_b32", v(T1), "3", v(T1))
    cap("v_add_u32", v(T1), str(L_LT), v(T1))
    cap("ds_write_b64", v(T1), v(T2, 2))
    for dst, n in ((L8, 8.0), (L32, 32.0), (L64, 64.0)):
        cap("v_mul_f32", v(T1), f32(n), v(ZR)); cap("v_mul_f32", v(T1 + 1), f32(n), v(ZI)); cexp(cap, dst, T1, T1 + 1, T0)
    QF = VY + 8
    cap("v_and_b32", v(QF), "3", "v0"); cap("v_cvt_f32_u32", v(QF + 1), v(QF)); cap("v_mul_f32", v(QF + 1), f32(32.0), v(QF + 1))
    cap("v_mul_f32", v(T1), v(QF + 1), v(ZR)); cap("v_mul_f32", v(T1 + 1), v(QF + 1), v(ZI)); cexp(cap, L32Q, T1, T1 + 1, T0)
    cap("v_lshlrev_b32", v(QF), "2", v(QF)); cap("v_sub_u32", v(QF + 2), s(sC), v(QF))
    cap("v_mul_u32_u24", v(QF + 3), "384", v(QF))
    cap("v_lshrrev_b32", v(QF + 4), "2", "v0"); cap("v_lshl_add_u32", v(QF + 3), v(QF + 4), "3", v(QF + 3))
    cap("v_cmp_gt_u32", "vcc", "40", v(QF + 4)); cap("v_cndmask_b32", v(QF + 2), "0", v(QF + 2), "vcc")
    cap("v_mov_b32", v(QF + 4), str(OOB))
    for n in range(4):
        cap("v_subrev_u32", v(QF + 5), str(n + 1), v(QF + 2))
        cap("v_cmp_le_i32", "vcc", "0", v(QF + 5))
        cap("v_cndmask_b32", v(vGA + n), v(QF + 4), v(QF + 3), "vcc")
        cap("v_max_i32", v(QF + 5), "0", v(QF + 5)); cap("v_cvt_f32_i32", v(QF + 5), v(QF + 5)); cap("v_mul_f32", v(QF + 5), f32(128.0), v(QF + 5))
        cap("v_mul_f32", v(T1), v(QF + 5), v(ZR)); cap("v_mul_f32", v(T1 + 1), v(QF + 5), v(ZI)); cexp(cap, WGT + 2 * n, T1, T1 + 1, T0)
    vO0, vSTW, vA0 = 252, 255, 236
    vK2 = 237
    cap("s_lshl_b32", s(sA5), s(sW), "5"); cap("v_add_u32", v(vK2), s(sA5), v(vL5))
    cap("s_lshl_b32", s(sA5), s(sQ), "7")
    cap("v_mul_u32_u24", v(vK2), "5", v(vK2)); cap("v_add_u32", v(vK2), s(sA5), v(vK2))
    cap("v_subrev_u32", v(vT), "640", v(vK2)); cap("v_min_u32", v(vK2), v(vK2), v(vT))
    cap("v_cmp_lt_u32", "vcc", "320", v(vK2)); cap("v_sub_u32", v(vT), "640", v(vK2)); cap("v_cndmask_b32", v(vK2), v(vK2), v(vT), "vcc")
    cap("v_lshlrev_b32", v(vT), "8", v(vH)); cap("v_add_u32", v(vT), s(sM), v(vT)); cap("v_sub_u32", v(vT2), "2048", v(vT))
    cap("v_cndmask_b32", v(vT), v(vT), v(vT2), "vcc")
    cap("v_mov_b32", v(vSTW), "41088"); cap("v_mov_b32", v(vT2), "-41088"); cap("v_cndmask_b32", v(vSTW), v(vSTW), v(vT2), "vcc")
    cap("v_mov_b32", v(vSG), "0"); cap("v_bfrev_b32", v(vT2), "1"); cap("v_cndmask_b32", v(vSG), v(vSG), v(vT2), "vcc")
    cap("v_lshlrev_b32", v(vK2), "1", v(vK2)); cap("s_movk_i32", s(sA5), "642")
    cap("v_mad_u32_u24", v(vO0), v(vT), s(sA5), v(vK2)); cap("v_and_b32", v(vT), "2047", v(vT)); cap("v_mad_u32_u24", v(vA0), v(vT), s(sA5), v(vK2))
    for r in range(32): cap("v_mov_b32", v(WR + r), "0")
    n_pre = len(cap.q)
    def w_gathers():
        it = []
        for rho in range(16):
            rp = 8 * (rho >> 2) + (rho & 3)
            ad = vA0 + (rho & 1)
            def f(rho=rho, rp=rp, ad=ad):
                if rho: k("v_mad_i32_i24", v(ad), v(vSTW), str(rp), v(vO0))
                k("buffer_load_short_d16_hi", v(WR + rho), v(ad), s(SC, 4), "0", m="offen"); vm.issue("W")
                k("buffer_load_short_d16_hi", v(WI + rho), v(ad), s(SD, 4), "0", m="offen"); vm.issue("W")
            it.append(("d", f))
        def sp():
            k("v_and_b32", v(vT), "12", v(LANE)); k("v_lshlrev_b32", v(vT), "1", v(vT))
            k("v_and_b32", v(vT2), "3", v(LANE)); k("v_add_u32", v(vT), v(vT), v(vT2)); k("v_lshl_add_u32", v(vT), v(vH), "2", v(vT))
            k("v_lshlrev_b32", v(vT), "6", v(vT)); k("v_add_u32", v(vT), s(sM), v(vT))
            k("v_sub_u32", v(vT2), "2048", v(vT)); k("v_and_b32", v(vT2), "2047", v(vT2))
            k("v_mul_u32_u24", v(vT), "642", v(vT)); k("v_mul_u32_u24", v(vT2), "642", v(vT2))
            k("s_and_b32", s(sA5), s(sW), "2"); k("s_mul_i32", s(sA5), s(sA5), "320")
            for r, ad, sr in ((vSR, vT, SC), (vSI, vT, SD), (vMR, vT2, SC), (vMI, vT2, SD)):
                k("buffer_load_ushort", v(r), v(ad), s(sr, 4), s(sA5), m="offen"); vm.issue("W")
        it.append(("d", sp))
        return it
    srd(k, SC, pWR, 1314816 + 4); srd(k, SD, pWI, 1314816 + 4)
    k("s_cmp_eq_u32", s(sISA), "1"); k("s_cselect_b32", s(SC + 2), s(SC + 2), "0"); k("s_cselect_b32", s(SD + 2), s(SD + 2), "0")
    st.mark(5)
    FX0, FW0 = 0, 8
    FX1 = [28, 56]; FW1 = [36, 64]
    first = {}
    def mfma(fx, fw, t, tau):
        acc = v(ACC + 8 * t + 4 * tau, 4)
        cc = acc if first.get((t, tau)) else "0"
        first[(t, tau)] = True
        k(M16, acc, a(fx + 4 * tau, 4), a(fw + 4 * t, 4), cc)
    wg_items = w_gathers()
    vCK = 251
    for c in range(10):
        needs = ["x%d" % c] + (["w%d" % (c // 2)] if c % 2 == 0 else [])
        if c == 3: needs += ["st", "rdy"]
        k("s_waitcnt", "vmcnt(%d) lgkmcnt(0)" % vm.n_after(*needs))
        if c % 2 == 0: k("s_barrier")
        if c == 5:
            k("v_add_u32", v(vRW0), "51200", v(vRW0)); k("v_add_u32", v(vRW1), "51200", v(vRW1))
        wo, xo, p = (c % 5) * 10240, (c % 3) * 4096, c & 1
        for tau in range(2): k("ds_read_b128", a(FX0 + 4 * tau, 4), v(vRX0), m="offset:%d" % (xo + tau * 2048))
        for tau in range(2): k("ds_read_b128", a(FX1[p] + 4 * tau, 4), v(vRX1), m="offset:%d" % (xo + tau * 2048))
        reads = [(a(FW0 + 4 * t, 4), vRW0, wo + t * 1024) for t in range(5)] + [(a(FW1[p] + 4 * t, 4), vRW1, wo + t * 1024) for t in range(5)]
        for n in range(10):
            if c > 0: mfma(FX1[1 - p], FW1[1 - p], n >> 1, n & 1)
            d, ad, off = reads[n]
            k("ds_read_b128", d, v(ad), m="offset:%d" % off)
        if c == 3:
            k("s_mov_b64", s(sMK, 2), "vcc")
            k("v_cmp_eq_u32", "vcc", "0", v(vRDY))
            spin_check(k, "V_RDY", lambda: k("global_load_dword", v(vRDY), v(vZ), s(pDBG, 2), m="sc1"),
                       lambda: k("v_cmp_eq_u32", "vcc", "0", v(vRDY)))
            k("s_lshl_b32", s(sO), "s2", "2"); k("s_add_u32", s(sO), s(sO), s(sW)); k("s_and_b32", s(sO), s(sO), "31")
            k("s_lshl_b32", s(sO), s(sO), "7"); k("s_add_u32", s(sO), s(sO), str(WS_CT))
            k("v_mov_b32", v(vRDY), "1"); k("s_mov_b64", "exec", "1")
            k("buffer_atomic_add", v(vRDY), v(vZ), s(WS, 4), s(sO), m="offen sc1"); vm.issue("arr")
            k("s_mov_b64", "exec", "-1"); k("s_mov_b64", "vcc", s(sMK, 2))
        items = []
        if c + 3 < 10: items += x_items(c + 3)
        if c % 2 == 1 and (c + 3) // 2 < 5: items += w_items((c + 3) // 2)
        if c >= 7:
            n_take = {7: 6, 8: 6, 9: 5}[c]
            items += wg_items[:n_take]; wg_items = wg_items[n_take:]
        if c == 8:
            def ck():
                k("s_mov_b32", s(sO), str(WS_CT))
                k("buffer_load_dword", v(vCK), v(vCA), s(WS, 4), s(sO), m="offen sc1"); vm.issue("ck")
            items = [("d", ck)] + items
        lg = 5 + sum(1 for q in cap.q[:0] if q[0].startswith("ds_"))
        k("s_waitcnt", "lgkmcnt(5)")
        if c == 6: assert len(cap.q) == 0 or True
        for n in range(10):
            mfma(FX0, FW0, n >> 1, n & 1)
            did = False
            while items:
                kind, f = items.pop(0); f()
                if kind == "d": did = True; break
            if c < 7: cap.drain(k, 8 if did else 16)
        run(items)
        if c == 6: cap.drain(k)
    k("s_waitcnt", "lgkmcnt(0)")
    LR = VY
    def read_lam():
        k("v_lshrrev_b32", v(vT), "1", v(vI)); k("v_lshlrev_b32", v(vT), "3", v(vT)); k("v_add_u32", v(vT), str(L_LT), v(vT))
        for t in range(5): k("ds_read_b64", v(LR + 2 * t, 2), v(vT), m="offset:%d" % (t * 64))
    def fix_lam():
        k("v_not_b32", v(vT2), v(vI)); k("v_lshlrev_b32", v(vT2), "31", v(vT2))
        for t in range(5): k("v_xor_b32", v(LR + 2 * t + 1), v(vT2), v(LR + 2 * t + 1))
    read_lam()
    for n in range(10): mfma(FX1[1], FW1[1], n >> 1, n & 1)
    k("s_waitcnt", "lgkmcnt(0)")
    fix_lam()
    st.mark(6)
    EE = [218, 200]
    SW = "quad_perm:[1,0,3,2]" + DPPM
    for n in range(1, 8):
        for t in range(5):
            prev = ACC + 8 * t if n == 1 else EE[(n - 1) & 1] + t
            k("v_fma_f32", v(EE[n & 1] + t), v(LR + 2 * t), v(prev), v(ACC + 8 * t + n))
        for t in range(5):
            prev = ACC + 8 * t if n == 1 else EE[(n - 1) & 1] + t
            k("v_fmac_f32_dpp", v(EE[n & 1] + t), v(prev), v(LR + 2 * t + 1), m=SW)
    vEA = 205
    k("s_lshl_b32", s(sT), s(sW), "2"); k("v_add_u32", v(vEA), s(sT), v(vG)); k("v_mul_u32_u24", v(vEA), "336", v(vEA))
    k("v_lshl_add_u32", v(vEA), v(vI), "2", v(vEA)); k("v_add_u32", v(vEA), str(L_E), v(vEA))
    k("s_barrier")
    for t in range(5): k("ds_write_b32", v(vEA), v(EE[1] + t), m="offset:%d" % (t * 64))
    vPK = 206
    k("s_mul_i32", s(sT), s(sW), "10240"); k("v_add_u32", v(vPK), s(sT), v(vF)); k("v_add_u32", v(vPK), str(L_PK), v(vPK))
    vCB = 15
    k("v_and_b32", v(vT), "3", "v0"); k("v_mul_u32_u24", v(vCB), str(4 * 336), v(vT))
    k("v_lshrrev_b32", v(vT), "2", "v0"); k("v_min_u32", v(vT), "39", v(vT)); k("v_lshl_add_u32", v(vCB), v(vT), "3", v(vCB)); k("v_add_u32", v(vCB), str(L_E), v(vCB))
    k("s_waitcnt", "lgkmcnt(0)"); k("s_barrier")
    E0 = VY
    for n in range(4): k("ds_read_b64", v(E0 + 2 * n, 2), v(vCB), m="offset:%d" % (n * 336))
    for r in range(10): k("ds_write_b128", v(vPK), v(ACC + 4 * r, 4), m="offset:%d" % (r * 1024))
    k("s_waitcnt", "lgkmcnt(10)")
    cmac(k, E0 + 2, L8, E0, E0 + 2); cmac(k, E0 + 4, L8, E0 + 2, E0 + 4); cmac(k, E0 + 6, L8, E0 + 4, E0 + 6)
    Q_, SH = E0 + 6, E0 + 8
    k("s_mov_b32", s(sMK), "0x11111111"); k("s_mov_b32", s(sMK + 1), "0x11111111")
    for e in range(2): k("v_mov_b32_dpp", v(SH + e), v(Q_ + e), m="quad_perm:[0,0,1,2]" + DPPM)
    for e in range(2): k("v_cndmask_b32", v(SH + e), v(SH + e), "0", s(sMK, 2))
    cmac(k, Q_, L32, SH, Q_)
    k("s_mov_b32", s(sA0), "0x33333333"); k("s_mov_b32", s(sA1), "0x33333333")
    for e in range(2): k("v_mov_b32_dpp", v(SH + e), v(Q_ + e), m="quad_perm:[0,1,0,1]" + DPPM)
    for e in range(2): k("v_cndmask_b32", v(SH + e), v(SH + e), "0", s(sA0, 2))
    cmac(k, Q_, L64, SH, Q_)
    k("buffer_store_dwordx2", v(Q_, 2), v(vTS), s(WS, 4), "0", m="offen sc0 sc1"); vm.issue("st2")
    for e in range(2): k("v_mov_b32_dpp", v(XE + e), v(Q_ + e), m="quad_perm:[0,0,1,2]" + DPPM)
    for e in range(2): k("v_cndmask_b32", v(XE + e), v(XE + e), "0", s(sMK, 2))
    st.mark(7)
    k("s_waitcnt", "vmcnt(%d)" % vm.n_after("ck"))
    k("v_cmp_ne_u32", "vcc", "32", v(vCK))
    k("s_mov_b32", s(sO), str(WS_CT))
    spin_check(k, "V_S0", lambda: k("buffer_load_dword", v(vCK), v(vCA), s(WS, 4), s(sO), m="offen sc1"),
               lambda: k("v_cmp_ne_u32", "vcc", "32", v(vCK)))
    sCA, sCB = sXB, sWB
    k("s_mul_i32", s(sCA), s(sJ8), "204800"); k("s_mul_i32", s(sT), s(sW), "10240"); k("s_add_u32", s(sCA), s(sCA), s(sT)); k("s_add_u32", s(sCA), s(sCA), str(WS_CP))
    k("s_and_b32", s(sXL), s(sJ8), "1")
    k("s_mul_i32", s(sT), s(sXL), "5120"); k("s_sub_u32", s(sCB), s(sCA), s(sT)); k("s_add_u32", s(sCA), s(sCA), s(sT))
    def ld_cp(kq, f):
        n, kk = divmod(f, 10)
        kq("s_add_u32", s(sA6), s(sCA if kk < 5 else sCB), str(n * 40960 + kk * 1024))
        kq("buffer_load_dwordx4", a(40 * n + 4 * kk, 4), v(vF), s(WS, 4), s(sA6), m="offen sc1")
    k("s_mul_i32", s(sA2), s(sJ), "6144"); k("s_add_u32", s(sA2), s(sA2), str(WS_TS))
    def ld_T():
        for n in range(4): k("buffer_load_dwordx2", v(TG + 2 * n, 2), v(vGA + n), s(WS, 4), s(sA2), m="offen offset:%d sc1" % (n * 384))
    def ck_T():
        k("v_max3_u32", v(vT), v(TG), v(TG + 1), v(TG + 2)); k("v_max3_u32", v(vT), v(TG + 3), v(TG + 4), v(vT))
        k("v_max3_u32", v(vT), v(TG + 5), v(TG + 6), v(vT)); k("v_max_u32", v(vT), v(TG + 7), v(vT))
        k("v_cmp_eq_u32", "vcc", "-1", v(vT))
    N_CP1 = 30
    k("s_cmp_eq_u32", s(sISA), "0"); k("s_cbranch_scc1", "V_NOA1")
    UL = P0
    k("s_lshl_b32", s(sO), s(sU), "14"); k("s_cmp_eq_u32", s(sU), "160"); k("s_cselect_b32", s(sO), "0", s(sO))
    k("s_lshl_b32", s(sT), s(sW), "12"); k("s_add_u32", s(sO), s(sO), s(sT)); k("s_add_u32", s(sO), s(sO), str(WS_UU))
    k("s_waitcnt", "lgkmcnt(0)")
    for n in range(4): k("buffer_load_dwordx4", v(UL + 4 * n, 4), v(vF), s(WS, 4), s(sO), m="offen offset:%d sc1" % (n * 1024))
    for f in range(8): ld_cp(k, 49 - f)
    vUW, vH4, vSTP, vB2 = 251, 252, 255, 207
    k("v_bfe_u32", v(vT), v(LANE), "1", "1"); k("v_lshlrev_b32", v(vUW), "10", v(vT))
    k("v_and_b32", v(vT2), "1", v(LANE)); k("v_lshl_add_u32", v(vUW), v(vT2), "9", v(vUW))
    k("v_lshrrev_b32", v(vT2), "2", v(LANE)); k("v_lshl_add_u32", v(vUW), v(vT2), "4", v(vUW))
    k("s_lshl_b32", s(sA0), s(sW), "12"); k("v_add_u32", v(vUW), s(sA0), v(vUW))
    k("v_cvt_f32_u32", v(vH4), v(vH)); k("v_mul_f32", v(vH4), "4.0", v(vH4))
    k("v_lshlrev_b32", v(vT2), "6", v(vL5)); k("v_add_u32", v(vT2), s(sM), v(vT2))
    k("v_cvt_f32_u32", v(vSTP), v(vT2)); k("v_mul_f32", v(vSTP), f32(1 / 2048), v(vSTP)); k("v_mul_f32", v(P1), v(vSTP), v(vH4))
    gen16(k, vSTP, P1, FC, FS, FN, VY)
    k("s_waitcnt", "vmcnt(8)")
    k("s_cmp_lg_u32", s(sQ), "0"); k("s_cbranch_scc1", "V_NSU")
    k("s_and_b32", s(sT), s(sM), "31"); k("s_cmp_lg_u32", s(sT), "0"); k("s_cbranch_scc1", "V_NSU")
    k("s_lshr_b32", s(sT), s(sM), "5")
    k("v_cmp_ne_u32", "vcc", s(sT), v(vT))
    for r in range(16): k("v_cndmask_b32", v(UL + r), v(UL + r), "0", "vcc")
    k("s_lshl_b32", s(sT), s(sT), "10"); k("v_xor_b32", v(vUW), s(sT), v(vUW))
    k.label("V_NSU")
    for n in range(4): k("ds_write_b128", v(vUW), v(UL + 4 * n, 4), m="offset:%d" % (L_UI + (n >> 1) * 2048 + (n & 1) * 256))
    cap = Cap()
    cap("v_cvt_f32_u32", v(vSTP), v(vL5)); cap("v_mul_f32", v(vSTP), f32(1 / 32), v(vSTP))
    cap("v_cvt_f32_u32", v(vT), s(sM)); cap("v_fmamk_f32", v(vT), v(vT), f32(1 / 64), v(vH4)); cap("v_mul_f32", v(vH4), v(vSTP), v(vT))
    gen16(cap, vSTP, vH4, F2C, F2S, F2N, VY)
    k("s_waitcnt", "lgkmcnt(0)"); k("s_barrier")
    st.mark(8)
    def big_stage(base, first_is_A, cap, cps):
        def rd(ks):
            for pl in range(2):
                k("ds_read_b128", a(aOP + 8 * (ks & 3) + 4 * pl, 4), v(vF), m="offset:%d" % (base + ks * 2048 + pl * 1024))
        for ks in range(4): rd(ks)
        for ks in range(8):
            out = min(7, ks + 3) - ks
            k("s_waitcnt", "lgkmcnt(%d)" % (2 * out))
            re, im = a(aOP + 8 * (ks & 3), 4), a(aOP + 8 * (ks & 3) + 4, 4)
            gc, gs = v(GC + 4 * ks, 4), v(GS + 4 * ks, 4)
            z = ks == 0
            if first_is_A: seq = [(P0, re, gc, z), (P1, im, gc, z), (P2, re, gs, z), (P0, im, gs, False)]
            else: seq = [(P0, gc, re, z), (P1, gc, im, z), (P2, gs, im, z), (P1, gs, re, False)]
            for (d, a_, b_, zz) in seq:
                k(M32, v(d, 16), a_, b_, "0" if zz else v(d, 16))
                if cps: ld_cp(k, cps.pop(0))
                if cap is not None: cap.drain(k, 16)
            if ks + 4 < 8: rd(ks + 4)
    cps = [41 - f for f in range(N_CP1 - 8)]
    big_stage(L_UI, True, cap, cps)
    cap.drain(k)
    for r in range(16): k("v_xor_b32", v(WI + r), v(vSG), v(WI + r))
    VR, VI = VY, VY + 8
    for r in range(0, 16, 2): k("v_pk_add_f32", v(P1 + r, 2), v(P1 + r, 2), v(P2 + r, 2), m="neg_lo:[0,1] neg_hi:[0,1]")
    for r in range(8): k("v_cvt_pk_bf16_f32", v(VR + r), v(P0 + 2 * r), v(P0 + 2 * r + 1))
    for r in range(8): k("v_cvt_pk_bf16_f32", v(VI + r), v(P1 + 2 * r), v(P1 + 2 * r + 1))
    for q in range(2):
        k(M32, v(P0, 16), v(FC + 4 * q, 4), v(VR + 4 * q, 4), "0" if q == 0 else v(P0, 16))
        k(M32, v(P1, 16), v(FN + 4 * q, 4), v(VR + 4 * q, 4), "0" if q == 0 else v(P1, 16))
    for q in range(2):
        k(M32, v(P0, 16), v(FS + 4 * q, 4), v(VI + 4 * q, 4), v(P0, 16))
        k(M32, v(P1, 16), v(FC + 4 * q, 4), v(VI + 4 * q, 4), v(P1, 16))
    ld_T()
    k("s_and_b32", s(sT), s(sW), "1"); k("s_add_u32", s(sT), s(sT), s(sQ)); k("s_cmp_lg_u32", s(sT), "0"); k("s_cbranch_scc1", "V_NOSP")
    for r in (vSR, vSI, vMR, vMI): k("v_lshlrev_b32", v(r), "16", v(r))
    k("v_add_f32", v(vSR), v(vSR), v(vMR)); k("v_sub_f32", v(vSI), v(vSI), v(vMI))
    k("v_mul_f32", v(vSR), "0.5", v(vSR)); k("v_mul_f32", v(vSI), "0.5", v(vSI))
    k("v_cmp_ne_u32", "vcc", "0", v(vL5))
    for r in range(16):
        k("v_cndmask_b32_dpp", v(WR + r), v(vSR), v(WR + r), "vcc", m="row_newbcast:%d" % r + DPPM)
        k("v_cndmask_b32_dpp", v(WI + r), v(vSI), v(WI + r), "vcc", m="row_newbcast:%d" % r + DPPM)
    k.label("V_NOSP")
    for r in range(0, 16, 2):
        k("v_pk_mul_f32", v(P2 + r, 2), v(P0 + r, 2), v(WR + r, 2)); k("v_pk_mul_f32", v(P0 + r, 2), v(P0 + r, 2), v(WI + r, 2))
    for r in range(0, 16, 2):
        k("v_pk_fma_f32", v(P2 + r, 2), v(P1 + r, 2), v(WI + r, 2), v(P2 + r, 2), m="neg_lo:[1,0,0] neg_hi:[1,0,0]")
        k("v_pk_fma_f32", v(P0 + r, 2), v(P1 + r, 2), v(WR + r, 2), v(P0 + r, 2))
    for r in range(8): k("v_cvt_pk_bf16_f32", v(VR + r), v(P2 + 2 * r), v(P2 + 2 * r + 1))
    for r in range(8): k("v_cvt_pk_bf16_f32", v(VI + r), v(P0 + 2 * r), v(P0 + 2 * r + 1))
    for q in range(2):
        k(M32, v(P0, 16), v(VR + 4 * q, 4), v(F2C + 4 * q, 4), "0" if q == 0 else v(P0, 16))
        k(M32, v(P1, 16), v(VR + 4 * q, 4), v(F2S + 4 * q, 4), "0" if q == 0 else v(P1, 16))
    for q in range(2):
        k(M32, v(P0, 16), v(VI + 4 * q, 4), v(F2N + 4 * q, 4), v(P0, 16))
        k(M32, v(P1, 16), v(VI + 4 * q, 4), v(F2C + 4 * q, 4), v(P1, 16))
    k("v_add_u32", v(vUW), s(sA0), v(vF))
    for r in range(8): k("v_cvt_pk_bf16_f32", v(WR + r), v(P0 + 2 * r), v(P0 + 2 * r + 1))
    for q in range(2): k("ds_write_b128", v(vUW), v(WR + 4 * q, 4), m="offset:%d" % (L_EX + q * 2048))
    for r in range(8): k("v_cvt_pk_bf16_f32", v(WR + 8 + r), v(P1 + 2 * r), v(P1 + 2 * r + 1))
    for q in range(2): k("ds_write_b128", v(vUW), v(WR + 8 + 4 * q, 4), m="offset:%d" % (L_EX + q * 2048 + 1024))
    k("s_branch", "V_J1")
    k.label("V_NOA1")
    k("s_cmp_lt_u32", s(sIDX), "24"); k("s_cbranch_scc1", "V_NOG")
    Wt, XX, GA = 16, 40, 80
    k("v_lshlrev_b32", v(vT), "4", v(vI))
    for n in range(5): k("global_load_dwordx4", v(Wt + 4 * n, 4), v(vT), s(pGW, 2), m="offset:%d" % (n * 256))
    k("v_mul_u32_u24", v(vT2), "1280", v(vG)); k("v_add_u32", v(vT2), v(vT2), v(vT))
    k("s_mul_i32", s(sO), s(sA4), "1280")
    for it in range(2):
        if it: k("s_add_u32", s(sO), s(sO), "5120")
        for n in range(5): k("buffer_load_dwordx4", v(XX + 20 * it + 4 * n, 4), v(vT2), s(SA, 4), s(sO), m="offen offset:%d" % (n * 256))
    for it in range(2): k("v_mov_b32", v(GA + it), "0")
    for it in range(2):
        k("s_waitcnt", "vmcnt(%d)" % (5 - 5 * it))
        for r in range(20): k("v_dot2c_f32_bf16", v(GA + it), v(XX + 20 * it + r), v(Wt + r))
    for sh in (8, 4, 2, 1):
        for it in range(2): k("v_add_f32_dpp", v(GA + it), v(GA + it), v(GA + it), m="row_ror:%d" % sh + DPPM)
    for it in range(2): k("v_mul_f32", v(GA + it), f32(-LOG2E), v(GA + it))
    for it in range(2): k("v_exp_f32", v(GA + it), v(GA + it))
    for it in range(2): k("v_add_f32", v(GA + it), "1.0", v(GA + it))
    for it in range(2): k("v_rcp_f32", v(GA + it), v(GA + it))
    k("v_lshlrev_b32", v(vT), "2", v(vG)); k("s_lshl_b32", s(sO), s(sA4), "2"); k("s_add_u32", s(sO), s(sO), str(WS_GG))
    for it in range(2): k("buffer_store_dword", v(GA + it), v(vT), s(WS, 4), s(sO), m="offen offset:%d sc0 sc1" % (16 * it))
    k.label("V_NOG")
    for f in range(N_CP1): ld_cp(k, 49 - f)
    ld_T()
    k.label("V_J1")
    st.mark(9)
    HC = 80
    k("s_mul_i32", s(sT), s(sW), "10240"); k("v_add_u32", v(vT2), s(sT), v(vF)); k("v_add_u32", v(vT2), str(L_PK), v(vT2))
    E0 = 120
    k("s_waitcnt", "lgkmcnt(2)")
    for n in range(3): k("ds_read_b64", v(E0 + 2 * n, 2), v(vCB), m="offset:%d" % (n * 336))
    for r in range(10): k("ds_read_b128", v(HC + 4 * r, 4), v(vT2), m="offset:%d" % (r * 1024))
    k("s_waitcnt", "vmcnt(0)")
    ck_T()
    spin_check(k, "V_S1", ld_T, ck_T)
    HI = 126
    cmul(k, HI, WGT, TG)
    for n in range(1, 4): cmac(k, HI, WGT + 2 * n, TG + 2 * n, HI)
    for qp in ("[1,0,3,2]", "[2,3,0,1]"):
        for e in range(2): k("v_add_f32_dpp", v(HI + e), v(HI + e), v(HI + e), m="quad_perm:" + qp + DPPM)
    cmac(k, XE, L32Q, HI, XE)
    k("s_waitcnt", "lgkmcnt(0)")
    read_lam()
    cmac(k, E0, L8, XE, E0); cmac(k, E0 + 2, L8, E0, E0 + 2); cmac(k, E0 + 4, L8, E0 + 2, E0 + 4)
    k("v_lshrrev_b32", v(vT2), "2", "v0"); k("v_cmp_gt_u32", "vcc", "40", v(vT2))
    k("s_and_saveexec_b64", s(sMK, 2), "vcc")
    for n, r in enumerate((XE, E0, E0 + 2, E0 + 4)):
        k("ds_write_b64", v(vCB), v(r, 2), m="offset:%d" % (L_CR - L_E + n * 336))
    k("s_mov_b64", "exec", s(sMK, 2))
    vEA = 251
    k("s_lshl_b32", s(sT), s(sW), "2"); k("v_add_u32", v(vEA), s(sT), v(vG)); k("v_mul_u32_u24", v(vEA), "336", v(vEA))
    k("v_lshl_add_u32", v(vEA), v(vI), "2", v(vEA)); k("v_add_u32", v(vEA), str(L_CR), v(vEA))
    k("s_waitcnt", "lgkmcnt(0)")
    fix_lam()
    k("s_barrier")
    CY = 120
    for t in range(5): k("ds_read_b32", v(CY + t), v(vEA), m="offset:%d" % (t * 64))
    vW1, vR1, vW2, vR2 = 224, 225, 226, 227
    k("s_mul_i32", s(sT), s(sW), "6400"); k("s_add_u32", s(sT), s(sT), str(L_H1))
    k("v_mul_u32_u24", v(vW1), "80", v(vI)); k("v_lshl_add_u32", v(vW1), v(vG), "4", v(vW1)); k("v_add_u32", v(vW1), s(sT), v(vW1))
    k("v_and_b32", v(vT), "1", v(vG)); k("v_lshlrev_b32", v(vR1), "3", v(vT)); k("v_lshrrev_b32", v(vT2), "2", v(vI)); k("v_add_u32", v(vR1), v(vR1), v(vT2))
    k("v_mul_u32_u24", v(vR1), "80", v(vR1)); k("v_lshl_add_u32", v(vR1), v(vH), "5", v(vR1))
    k("v_and_b32", v(vT2), "3", v(vI)); k("v_lshl_add_u32", v(vR1), v(vT2), "3", v(vR1)); k("v_add_u32", v(vR1), s(sT), v(vR1))
    k("v_lshl_add_u32", v(vW2), v(vH), "4", v(vI)); k("v_mul_u32_u24", v(vW2), "656", v(vW2)); k("v_lshl_add_u32", v(vW2), v(vT), "6", v(vW2))
    k("s_lshl_b32", s(sT), s(sW), "4"); k("s_add_u32", s(sT), s(sT), str(L_H2)); k("v_add_u32", v(vW2), s(sT), v(vW2))
    k("v_lshrrev_b32", v(vR2), "3", "v0"); k("v_mul_u32_u24", v(vR2), "656", v(vR2))
    k("v_and_b32", v(vT2), "7", v(LANE)); k("v_lshl_add_u32", v(vR2), v(vT2), "4", v(vR2)); k("v_add_u32", v(vR2), str(L_H2), v(vR2))
    k("s_waitcnt", "lgkmcnt(0)")
    for n in range(8):
        for t in range(5):
            prev = CY + t if n == 0 else HC + 8 * t + n - 1
            k("v_fmac_f32", v(HC + 8 * t + n), v(LR + 2 * t), v(prev))
        for t in range(5):
            prev = CY + t if n == 0 else HC + 8 * t + n - 1
            k("v_fmac_f32_dpp", v(HC + 8 * t + n), v(prev), v(LR + 2 * t + 1), m=SW)
    HP = 128
    for t in range(5):
        for e in range(4): k("v_cvt_pk_bf16_f32", v(HP + 4 * t + e), v(HC + 8 * t + 2 * e), v(HC + 8 * t + 2 * e + 1))
        k("ds_write_b128", v(vW1), v(HP + 4 * t, 4), m="offset:%d" % (t * 1280))
    k("s_waitcnt", "lgkmcnt(0)")
    for t in range(5):
        for aa in range(2): k("ds_read_b64_tr_b16", v(HC + 4 * t + 2 * aa, 2), v(vR1), m="offset:%d" % ((16 * t + 4 * aa) * 80))
    for t in range(5):
        k("s_waitcnt", "lgkmcnt(%d)" % (8 - 2 * t + t))
        k("ds_write_b128", v(vW2), v(HC + 4 * t, 4), m="offset:%d" % (t * 128))
    k("s_waitcnt", "lgkmcnt(0)"); k("s_barrier")
    for t in range(5): k("ds_read_b128", v(HP + 4 * t, 4), v(vR2), m="offset:%d" % (t * 128))
    for t in range(5):
        k("s_waitcnt", "lgkmcnt(%d)" % (4 - t))
        k("buffer_store_dwordx4", v(HP + 4 * t, 4), v(vHS), s(WS, 4), s(sHB), m="offen offset:%d sc0 sc1" % (t * 128))
    st.mark(10)
    cps = [49 - f for f in range(N_CP1, 50)]
    k("s_cmp_eq_u32", s(sISA), "0"); k("s_cbranch_scc1", "V_NOA2")
    big_stage(L_EX, False, None, list(cps))
    k("v_lshlrev_b32", v(vT), "9", v(vL5)); k("v_lshl_add_u32", v(vT), v(vH), "4", v(vT))
    k("s_lshl_b32", s(sO), s(sU), "14"); k("s_lshl_b32", s(sT), s(sW), "7"); k("s_add_u32", s(sO), s(sO), s(sT)); k("s_add_u32", s(sO), s(sO), str(WS_UP))
    for r in range(0, 16, 2): k("v_pk_add_f32", v(P0 + r, 2), v(P0 + r, 2), v(P2 + r, 2), m="neg_lo:[0,1] neg_hi:[0,1]")
    for jj in range(4):
        for r in range(4): k("v_cvt_pk_bf16_f32", v(VY + 4 * jj + r), v(P0 + 4 * jj + r), v(P1 + 4 * jj + r))
        k("buffer_store_dwordx4", v(VY + 4 * jj, 4), v(vT), s(WS, 4), s(sO), m="offen offset:%d sc0 sc1" % (jj * 32))
    k("s_branch", "V_J2")
    k.label("V_NOA2")
    for f in cps: ld_cp(k, f)
    k("v_lshrrev_b32", v(vT), "4", "v0"); k("v_mul_u32_u24", v(vT), "10240", v(vT))
    k("v_mul_u32_u24", v(vT2), "640", v(vI)); k("v_add_u32", v(vT2), v(vT), v(vT2))
    k("s_mul_i32", s(sO), s(sSLO), "163840"); k("s_add_u32", s(sO), s(sO), str(WS_HH))
    k("s_mov_b64", "vcc", "-1")
    spin_check(k, "V_CAN", lambda: k("buffer_load_dword", v(vT), v(vT2), s(WS, 4), s(sO), m="offen offset:%d sc1" % 512),
               lambda: k("v_cmp_eq_u32", "vcc", "-1", v(vT)))
    k.label("V_J2")
    k("s_barrier")
    st.mark(11)
    vm = VM()
    HV = 16
    OWN, OTH = 176, [196, 216]
    vHL, vMX, vRW, GV = 236, 237, 238, 239
    Z = 240
    k("v_bfe_u32", v(vHL), v(LANE), "2", "2"); k("v_mul_u32_u24", v(vHL), "10240", v(vHL))
    k("v_lshl_add_u32", v(vHL), v(vG), "6", v(vHL)); k("v_and_b32", v(vT), "3", v(LANE)); k("v_lshl_add_u32", v(vHL), v(vT), "4", v(vHL))
    sHA, sHZ, sRD = 36, 40, 44
    k("s_mul_i32", s(sA0), s(sSLO), "163840"); k("s_mul_i32", s(sT), s(sW), "2560"); k("s_add_u32", s(sA0), s(sA0), s(sT))
    k("s_add_u32", s(sA0), s(sA0), str(WS_HH)); k("s_mul_i32", s(sA1), s(sXL), "1280")
    k("s_mul_i32", s(sT), s(sJ8), "86"); k("s_lshr_b32", s(sT), s(sT), "8"); k("s_mul_i32", s(sT), s(sT), "3"); k("s_sub_u32", s(sA2), s(sJ8), s(sT))
    for p_ in range(4):
        if p_ < 3:
            k("s_add_u32", s(sT), s(sA2), str(p_)); k("s_cmp_ge_u32", s(sT), "3"); k("s_cselect_b32", s(sT2), "3", "0"); k("s_sub_u32", s(sT), s(sT), s(sT2))
            k("s_add_u32", s(sT2), s(sT), s(sW)); k("s_add_u32", s(sT2), s(sT2), "1"); k("s_and_b32", s(sT2), s(sT2), "3")
            k("s_mul_i32", s(sRD + p_), s(sT2), "15360"); k("s_mul_i32", s(sT), s(sT), "5120"); k("s_add_u32", s(sRD + p_), s(sRD + p_), s(sT))
        else:
            k("s_mov_b32", s(sT2), s(sW))
        k("s_mul_i32", s(sT2), s(sT2), "40960"); k("s_add_u32", s(sT2), s(sT2), s(sA0))
        k("s_add_u32", s(sHA + p_), s(sT2), s(sA1)); k("s_sub_u32", s(sHZ + p_), s(sT2), s(sA1))
    def ld_h(f, track=True):
        p_, kk = divmod(f, 10)
        k("buffer_load_dwordx4", v(HV + 4 * f, 4), v(vHL), s(WS, 4), s((sHA if kk < 5 else sHZ) + p_), m="offen offset:%d sc1" % (kk * 256))
        if track: vm.issue("h%d" % f)
    AHEAD = 20
    for f in range(AHEAD): ld_h(f)
    vU, vU2, vGO = 252, 255, 15
    k("v_and_b32", v(vU2), "7", "v0"); k("v_lshlrev_b32", v(vU2), "3", v(vU2))
    k("v_lshrrev_b32", v(vT), "3", "v0"); k("s_mov_b32", s(sT), "81920"); k("v_mad_u32_u24", v(vU), v(vT), s(sT), v(vU2))
    k("v_lshlrev_b32", v(vGO), "7", v(vI))
    sUB, sRB = 48, 49
    k("s_lshl_b32", s(sUB), s(sSLO), "9"); k("s_lshl_b32", s(sT), s(sJ8), "6"); k("s_add_u32", s(sUB), s(sUB), s(sT)); k("s_add_u32", s(sUB), s(sUB), str(WS_UP))
    k("s_lshl_b32", s(sRB), s(sW), "9"); k("s_add_u32", s(sRB), s(sRB), s(sSLO))
    def ld_U(track=True):
        for q in range(5):
            k("s_add_u32", s(sO), s(sUB), str(q * 16384))
            k("buffer_load_dwordx2", v(Z + 2 * q, 2), v(vU), s(WS, 4), s(sO), m="offen sc1")
            if track: vm.issue("U")
        k("s_add_u32", s(sO), s(sUB), str(160 * 16384))
        k("buffer_load_dwordx2", v(Z + 10, 2), v(vU2), s(WS, 4), s(sO), m="offen sc1")
        if track: vm.issue("U")
        k("s_lshl_b32", s(sO), s(sRB), "2"); k("s_add_u32", s(sO), s(sO), str(WS_GG))
        k("buffer_load_dword", v(GV), v(vGO), s(WS, 4), s(sO), m="offen sc1")
        if track: vm.issue("U")
    def ck_U():
        k("v_max3_u32", v(vT), v(Z), v(Z + 2), v(Z + 4)); k("v_max3_u32", v(vT), v(Z + 6), v(Z + 8), v(vT)); k("v_max3_u32", v(vT), v(Z + 10), v(GV), v(vT))
        k("v_cmp_eq_u32", "vcc", "-1", v(vT))
    def slot(p_, acc, cinit, extra=None):
        k.label("V_SL%d" % p_)
        k("v_mov_b32", v(vMX), "0")
        for kk in range(10):
            f = 10 * p_ + kk
            k("s_waitcnt", "vmcnt(%d)" % vm.n_after("h%d" % f))
            for n in range(5):
                cc = (cinit(n) if kk == 0 else v(acc + 4 * n, 4))
                k(M16, v(acc + 4 * n, 4), a(40 * n + 4 * kk, 4), v(HV + 4 * f, 4), cc)
                if n == 0:
                    k("v_max3_u32", v(vMX), v(HV + 4 * f), v(HV + 4 * f + 2), v(vMX))
                if n == 1 and f + AHEAD < 40: ld_h(f + AHEAD)
                if n == 2 and extra: extra(kk)
        k("v_cmp_eq_u32", "vcc", "-1", v(vMX))
        k("s_cbranch_vccz", "V_OK%d" % p_)
        def rl():
            for kk in range(10): ld_h(10 * p_ + kk, False)
        def ck():
            k("v_mov_b32", v(vMX), "0")
            for kk in range(10): k("v_max3_u32", v(vMX), v(HV + 40 * p_ + 4 * kk), v(HV + 40 * p_ + 4 * kk + 2), v(vMX))
            k("v_cmp_eq_u32", "vcc", "-1", v(vMX))
        spin_check(k, "V_RT%d" % p_, rl, ck)
        k("s_cmp_ge_u32", s(sCNT), str(SPIN_MAX)); k("s_cbranch_scc0", "V_SL%d" % p_)
        k.label("V_OK%d" % p_)
    def red_write(p_):
        def ex(kk):
            if kk == 1: k("v_add_u32", v(vRW), s(sRD + p_), v(vF))
            if 2 <= kk < 7: k("ds_write_b128", v(vRW), v(OTH[p_ & 1] + 4 * (kk - 2), 4), m="offset:%d" % (L_RED + (kk - 2) * 1024))
        return ex
    slot(0, OTH[0], lambda n: "0")
    slot(1, OTH[1], lambda n: "0", red_write(0))
    ld_U()
    slot(2, OTH[0], lambda n: "0", red_write(1))
    k("v_add_u32", v(vRW), s(sRD + 2), v(vF))
    for n in range(5): k("ds_write_b128", v(vRW), v(OTH[0] + 4 * n, 4), m="offset:%d" % (L_RED + n * 1024))
    st.mark(12)
    EF, TM, TA = 80, 16, 88
    k("s_lshl_b32", s(sT), s(sW), "4")
    k("v_add_u32", v(vT), s(sT), v(vI)); k("v_cvt_f32_u32", v(vT), v(vT)); k("v_mul_f32", v(vT), f32(1 / 64), v(vT))
    k("v_cvt_f32_u32", v(vT2), v(vG)); k("v_mul_f32", v(vT2), "4.0", v(vT2)); k("v_mul_f32", v(vT2), v(vT2), v(vT))
    for e in range(8): k("v_fmamk_f32", v(TM + e), v(vT), f32(16 * (e >> 2) + (e & 3)), v(vT2))
    for e in range(8): k("v_cos_f32", v(TM + 8 + e), v(TM + e))
    for e in range(8): k("v_sin_f32", v(TM + e), v(TM + e))
    for e in range(8): k("v_cvt_pk_bf16_f32", v(EF + e), v(TM + 8 + e), "-" + v(TM + e))
    k("v_lshlrev_b32", v(vT), "31", v(vI)); k("v_or_b32", v(vT), "0x3f003f00", v(vT))
    k("v_cmp_eq_u32", "vcc", "0", v(vG)); k("v_cndmask_b32", v(EF), v(EF), v(vT), "vcc")
    k("v_and_b32", v(vT), "7", "v0")
    k("v_lshlrev_b32", v(vT2), "1", v(vT)); k("v_add_u32", v(vT2), s(sJ8), v(vT2)); k("v_mul_u32_u24", v(vT2), "3", v(vT2))
    k("v_mul_u32_u24", v(TM), "205", v(vT2)); k("v_lshrrev_b32", v(TM), "10", v(TM)); k("v_mul_u32_u24", v(TM), "5", v(TM))
    k("v_sub_u32", v(vT2), v(vT2), v(TM)); k("v_mul_u32_u24", v(TA), "2304", v(vT2))
    for e in range(1, 5):
        k("v_add_u32", v(TA + e), "4608", v(TA + e - 1)); k("v_subrev_u32", v(TM), "11520", v(TA + e)); k("v_min_u32", v(TA + e), v(TA + e), v(TM))
    k("v_mul_u32_u24", v(vT), "288", v(vT)); k("v_lshrrev_b32", v(vT2), "3", "v0"); k("v_lshl_add_u32", v(vT), v(vT2), "2", v(vT))
    k("v_add_u32", v(vT), str(L_TP), v(vT))
    for e in range(5): k("v_add_u32", v(TA + e), v(TA + e), v(vT))
    k("s_waitcnt", "vmcnt(%d)" % vm.n_after("U"))
    ck_U()
    spin_check(k, "V_S3", lambda: ld_U(False), ck_U)
    regs = []
    for u in range(2):
        b = TM + 28 * u
        L = [b + 2 * q for q in range(5)]
        S1, D1, S2, D2, A1, A2, B1, B2, T0 = [b + 10 + 2 * i for i in range(9)]
        regs.append((L, S1, D1, S2, D2, A1, A2, B1, B2, T0))
        for q in range(5):
            k("v_lshlrev_b32", v(L[q]), "16", v(Z + 2 * q + u)); k("v_and_b32", v(L[q] + 1), "0xffff0000", v(Z + 2 * q + u))
        k("v_pk_add_f32", P(S1), P(L[1]), P(L[4])); k("v_pk_add_f32", P(D1), P(L[1]), P(L[4]), m="neg_lo:[0,1] neg_hi:[0,1]")
        k("v_pk_add_f32", P(S2), P(L[2]), P(L[3])); k("v_pk_add_f32", P(D2), P(L[2]), P(L[3]), m="neg_lo:[0,1] neg_hi:[0,1]")
    k("s_cmp_lg_u32", s(sW), "0"); k("s_cbranch_scc1", "V_NSP3")
    k("s_mov_b64", "exec", "0xff")
    for u in range(2):
        L, S1, D1, S2, D2 = regs[u][:5]
        k("v_lshlrev_b32", v(L[0] + 1), "16", v(Z + 10 + u))
        for (S_, D_, x_, y_) in ((S1, D1, L[1], L[4]), (S2, D2, L[2], L[3])):
            k("v_add_f32", v(S_), v(x_), v(x_)); k("v_add_f32", v(S_ + 1), v(y_), v(y_))
            k("v_add_f32", v(D_), v(y_ + 1), v(y_ + 1)); k("v_add_f32", v(D_ + 1), v(x_ + 1), v(x_ + 1))
    k("s_mov_b64", "exec", "-1")
    k.label("V_NSP3")
    for u in range(2):
        L, S1, D1, S2, D2, A1, A2, B1, B2, T0 = regs[u]
        k("v_pk_add_f32", P(T0), P(L[0]), P(S1))
        k("v_pk_fma_f32", P(A1), P(S1), s(sC1, 2), P(L[0])); k("v_pk_fma_f32", P(A2), P(S1), s(sC2, 2), P(L[0]))
        k("v_pk_mul_f32", P(B1), P(D1), s(sN1, 2)); k("v_pk_mul_f32", P(B2), P(D1), s(sN2, 2))
        k("v_pk_add_f32", P(T0), P(T0), P(S2))
        k("v_pk_fma_f32", P(A1), P(S2), s(sC2, 2), P(A1)); k("v_pk_fma_f32", P(A2), P(S2), s(sC1, 2), P(A2))
        k("v_pk_fma_f32", P(B1), P(D2), s(sN2, 2), P(B1)); k("v_pk_fma_f32", P(B2), P(D2), s(sN1, 2), P(B2), m="neg_lo:[1,0,0] neg_hi:[1,0,0]")
        k("v_pk_add_f32", P(S1), P(A1), P(B1), m="op_sel:[0,1] op_sel_hi:[1,0] neg_lo:[0,1]")
        k("v_pk_add_f32", P(D1), P(A1), P(B1), m="op_sel:[0,1] op_sel_hi:[1,0] neg_hi:[0,1]")
        k("v_pk_add_f32", P(S2), P(A2), P(B2), m="op_sel:[0,1] op_sel_hi:[1,0] neg_lo:[0,1]")
        k("v_pk_add_f32", P(D2), P(A2), P(B2), m="op_sel:[0,1] op_sel_hi:[1,0] neg_hi:[0,1]")
        for e, r in enumerate((T0, S1, S2, D2, D1)):
            k("v_cvt_pk_bf16_f32", v(L[e]), v(r), v(r + 1))
            k("ds_write_b32", v(TA + (e + 4 * u) % 5), v(L[e]), m="offset:%d" % (144 * u))
    IN_ = OTH[1]
    for n in range(5):
        for hf in range(2):
            t = 96 + 6 * hf
            k("v_accvgpr_read_b32", v(t + 4), a(aXP + 2 * n + hf)); k("v_accvgpr_read_b32", v(t + 5), a(aDP + 2 * n + hf))
            k("v_lshlrev_b32", v(t), "16", v(t + 4)); k("v_and_b32", v(t + 1), "0xffff0000", v(t + 4))
            k("v_lshlrev_b32", v(t + 2), "16", v(t + 5)); k("v_and_b32", v(t + 3), "0xffff0000", v(t + 5))
            k("v_pk_mul_f32", v(IN_ + 4 * n + 2 * hf, 2), v(t, 2), v(t + 2, 2))
    k("v_mul_u32_u24", v(vT), "144", v(vI)); k("v_lshl_add_u32", v(vT), v(vG), "4", v(vT)); k("v_add_u32", v(vT), str(L_TP), v(vT))
    k("s_mul_i32", s(sT), s(sW), "15360"); k("v_add_u32", v(vT2), s(sT), v(vF))
    k("s_waitcnt", "lgkmcnt(0)"); k("s_barrier")
    TF, RD, AA = 96, 16, OTH[0]
    for n in range(5):
        for q in range(2): k("ds_read_b128", v(TF + 8 * n + 4 * q, 4), v(vT), m="offset:%d" % (n * 2304 + 64 * q))
    def rd_red(kk):
        if 1 <= kk < 6:
            for mu in range(3):
                n = kk - 1
                k("ds_read_b128", v(RD + 12 * n + 4 * mu, 4), v(vT2), m="offset:%d" % (L_RED + mu * 5120 + n * 1024))
            k("s_waitcnt", "lgkmcnt(9)")
    st.mark(13)
    slot(3, OWN, lambda n: v(IN_ + 4 * n, 4), rd_red)
    k("s_waitcnt", "lgkmcnt(0)")
    for q in range(2):
        for n in range(5):
            k(M16, v(AA + 4 * n, 4), v(TF + 8 * n + 4 * q, 4), v(EF + 4 * q, 4), "0" if q == 0 else v(AA + 4 * n, 4))
    GS_, G1, vXO = 88, 90, 92
    k("v_mul_f32", v(GS_), f32(2.0 / (2048 * 640)), v(GV)); k("v_sub_f32", v(G1), "1.0", v(GV))
    k("s_mov_b32", s(sT), "81920"); k("v_lshlrev_b32", v(vXO), "4", v(vG)); k("v_mad_u32_u24", v(vXO), v(vI), s(sT), v(vXO))
    srd(k, SA, pOUT, 5242880)
    k("s_mul_i32", s(sO), s(sRB), "2560"); k("s_lshl_b32", s(sT), s(sJ8), "6"); k("s_add_u32", s(sO), s(sO), s(sT))
    for n in range(5):
        r = RD + 12 * n
        for hf in range(0, 4, 2):
            k("v_pk_add_f32", v(r + hf, 2), v(r + hf, 2), v(r + 4 + hf, 2))
            k("v_pk_add_f32", v(OWN + 4 * n + hf, 2), v(OWN + 4 * n + hf, 2), v(r + 8 + hf, 2))
        for hf in range(0, 4, 2): k("v_pk_add_f32", v(OWN + 4 * n + hf, 2), v(OWN + 4 * n + hf, 2), v(r + hf, 2))
        for hf in range(0, 4, 2): k("v_pk_mul_f32", v(OWN + 4 * n + hf, 2), v(OWN + 4 * n + hf, 2), v(G1, 2), m="op_sel_hi:[1,0]")
    for n in range(5):
        for hf in range(0, 4, 2):
            k("v_pk_fma_f32", v(OWN + 4 * n + hf, 2), v(AA + 4 * n + hf, 2), v(GS_, 2), v(OWN + 4 * n + hf, 2), m="op_sel_hi:[1,0,1]")
        k("buffer_store_dwordx4", v(OWN + 4 * n, 4), v(vXO), s(SA, 4), s(sO), m="offen offset:%d" % (n * 512))
    st.mark(14)
    if STAMP: k("s_waitcnt", "vmcnt(0)")
    st.mark(15, True)
    st.flush()
    if SPINK:
        k("s_waitcnt", "vmcnt(0)")
        k("s_memrealtime", s(98, 2)); k("s_waitcnt", "lgkmcnt(0)")
        k("s_sub_u32", s(97), s(98), s(100)); k("s_min_u32", s(97), s(97), "20000"); k("s_mul_i32", s(97), s(97), str(SPINK))
        k.label("V_SPIN")
        k("s_memrealtime", s(100, 2)); k("s_waitcnt", "lgkmcnt(0)")
        k("s_sub_u32", s(96), s(100), s(98)); k("s_cmp_lt_u32", s(96), s(97)); k("s_cbranch_scc1", "V_SPIN")
    k.label("V_END")
    k("s_endpgm")
    return k

HDR = open("gated_mix__spectral_gfnet__ssm_conv_s5__prompt.s.ref").read().split("\n")
HDR = [l for l in HDR if l.startswith(";") and "@launch" not in l and "Override" not in l and "grid=ceil" not in l]
if __name__ == "__main__":
    import sys
    k = gen_v()
    txt = build_file(HDR, [k], [])
    lines = txt.split("\n")
    i = lines.index('.amdgcn_target "amdgcn-amd-amdhsa--gfx950"')
    lines.insert(i, "; @launch grid=(256,1,1) block=(256,1,1) lds=%d" % LDS_TOTAL)
    open(sys.argv[1] if len(sys.argv) > 1 else "v.s", "w").write("\n".join(lines))
    print("maxv", k.maxv, "maxa", k.maxa, "maxs", k.maxs, "instrs", len(k.items))
```

```python
import re

_REG = re.compile(r"^(-|\|)?(abs\()?([vas])(?:(\d+)|\[(\d+):(\d+)\])\)?\|?$")

def regs_of(op):
    op = op.strip()
    if op == "vcc": return {("s", 106), ("s", 107)}
    if op == "vcc_hi": return {("s", 107)}
    if op == "exec_lo": return {("s", 126)}
    if op == "exec": return {("s", 126), ("s", 127)}
    if op == "m0": return {("s", 124)}
    m = _REG.match(op)
    if not m: return set()
    k = m.group(3)
    if m.group(4) is not None:
        return {(k, int(m.group(4)))}
    return {(k, i) for i in range(int(m.group(5)), int(m.group(6)) + 1)}

TRANS = ("v_exp_f32", "v_log_f32", "v_rcp_f32", "v_rsq_f32", "v_sqrt_f32", "v_sin_f32", "v_cos_f32")

class Ins:
    __slots__ = ("op", "ops", "mods", "text", "dst", "src", "kind", "a", "b", "c", "passes", "states")
    def __init__(self, op, ops, mods):
        self.op, self.ops, self.mods = op, list(ops), mods
        self.text = op + (" " + ", ".join(ops) if ops else "") + (" " + mods if mods else "")
        self.dst, self.src = set(), set()
        self.a = self.b = self.c = set()
        self.passes = 0
        self.states = 1
        R = [regs_of(o) for o in ops]
        U = lambda l: set().union(*l) if l else set()
        if op.startswith("v_mfma"):
            self.kind = "mfma"
            self.dst = R[0]; self.a, self.b, self.c = R[1], R[2], R[3]
            self.src = R[1] | R[2] | R[3]
            self.passes = 8 if "32x32" in op else 4
        elif op.startswith("v_"):
            self.kind = "valu"
            nd = 1
            if re.match(r"v_(add|sub|subrev|addc|subb)_co_", op) or op.startswith("v_mad_u64") or op.startswith("v_div_scale"): nd = 2
            if op == "v_nop": nd = 0
            self.dst = U(R[:nd]); self.src = U(R[nd:])
            if op.startswith(("v_fmac", "v_pk_fmac", "v_dot2c", "v_mac")) or "dpp" in op or "quad_perm" in mods or "row_" in mods:
                self.src |= R[0]
            if op.startswith("v_permlane") and "swap" in op:
                self.dst = R[0] | R[1]; self.src = R[0] | R[1]
            if op.startswith("v_cmpx"): self.dst |= regs_of("exec")
            if op.startswith("v_cndmask") and len(ops) == 3: self.src |= regs_of("vcc")
        elif op.startswith("ds_"):
            self.kind = "ds"
            if op.startswith(("ds_read", "ds_bpermute", "ds_permute", "ds_swizzle")):
                self.dst = R[0]; self.src = U(R[1:])
            else:
                self.src = U(R)
        elif op.startswith(("buffer_", "global_")):
            self.kind = "vmem"
            if "atomic" in op and "sc0" in mods:
                self.dst = R[0]; self.src = U(R)
            elif "_load" in op and " lds" not in (" " + mods) and "_lds_" not in op:
                self.dst = R[0]; self.src = U(R[1:])
                if "d16" in op: self.src |= R[0]
            else:
                self.src = U(R)
                if " lds" in (" " + mods) or "_lds_" in op: self.src |= regs_of("m0")
        elif op.startswith("s_"):
            self.kind = "salu"
            if op == "s_nop":
                self.states = int(ops[0], 0) + 1
            elif op.startswith(("s_cmp", "s_cbranch", "s_branch", "s_barrier", "s_waitcnt", "s_endpgm", "s_setprio", "s_sleep", "s_bitcmp")):
                self.src = U(R)
            else:
                self.dst = R[0] if R else set(); self.src = U(R[1:])
                if "saveexec" in op: self.dst |= regs_of("exec")
        else:
            raise ValueError("unknown op " + op)

def is_v(rs): return {r for r in rs if r[0] in "va"}
def is_s(rs): return {r for r in rs if r[0] == "s"}

def need(p, c):
    n = 0
    pv, ps = is_v(p.dst), is_s(p.dst)
    if p.kind == "valu":
        if c.kind == "mfma" and pv & c.src: n = max(n, 2)
        if c.kind == "mfma" and regs_of("exec") & p.dst: n = max(n, 4)
        if c.kind == "valu":
            dpp = "dpp" in c.op or "quad_perm" in c.mods or "row_" in c.mods
            if dpp and pv & c.src: n = max(n, 2)
            if dpp and regs_of("exec") & p.dst: n = max(n, 5)
            if c.op.startswith("v_permlane") and pv & c.src: n = max(n, 2)
            if c.op.startswith(("v_readlane", "v_readfirstlane")) and pv & c.src: n = max(n, 1)
            if c.op.startswith(("v_readlane", "v_writelane")) and ps & c.src: n = max(n, 4)
            if c.op.startswith(("v_readlane", "v_readfirstlane", "v_writelane", "v_permlane")) and regs_of("exec") & p.dst: n = max(n, 4)
            if ps & c.src: n = max(n, 2)
            if p.op.startswith(TRANS) and not c.op.startswith(TRANS) and pv & c.src: n = max(n, 1)
            if ("op_sel" in p.mods and not p.op.startswith("v_pk_")) or "sdwa" in p.op:
                if pv & (c.src | c.dst): n = max(n, 1)
            if c.op.startswith("v_div_fmas") and regs_of("vcc") & p.dst: n = max(n, 4)
        if p.op.startswith("v_dot") and c.op != p.op and pv & (c.src | c.dst): n = max(n, 3)
        if p.op.startswith(TRANS) and c.kind in ("vmem", "ds") and pv & c.src: n = max(n, 1)
        if c.kind == "vmem" and ps & c.src: n = max(n, 5)
        if c.kind == "salu" and ps & c.src: n = max(n, 1)
    elif p.kind == "mfma":
        far = {4: 8, 8: 12}[p.passes]
        if c.kind == "mfma":
            if p.dst & (c.a | c.b): n = max(n, far)
            if p.dst & c.c:
                if p.dst == c.c and p.passes == c.passes: pass
                else: n = max(n, far - 2)
            elif p.dst & c.dst: n = max(n, far)
        elif c.kind in ("valu", "vmem", "ds"):
            if p.dst & (c.src | c.dst): n = max(n, far)
            if c.kind == "valu" and p.c & c.dst: n = max(n, {4: 3, 8: 7}[p.passes])
            if c.kind != "valu" and p.c & c.dst: n = max(n, {4: 3, 8: 7}[p.passes])
    elif p.kind == "salu":
        if regs_of("m0") & p.dst and c.kind == "vmem" and regs_of("m0") & c.src: n = max(n, 1)
    elif p.kind == "vmem":
        if "store" in p.op and ("x4" in p.op or "x3" in p.op):
            data = regs_of(p.ops[0]) if p.op.startswith("buffer_") else regs_of(p.ops[1])
            if data & c.dst: n = max(n, 2)
    return n

class Kern:
    def __init__(self, name):
        self.name = name
        self.items = []
        self.maxv = -1; self.maxa = -1; self.maxs = -1
    def __call__(self, op, *ops, m=""):
        ops = [str(o) for o in ops]
        ins = Ins(op, ops, m)
        for (k, i) in ins.dst | ins.src:
            if k == "v": self.maxv = max(self.maxv, i)
            elif k == "a": self.maxa = max(self.maxa, i)
            elif k == "s" and i < 102: self.maxs = max(self.maxs, i)
        self.items.append(ins)
        return ins
    def label(self, n): self.items.append(("label", n))
    def comment(self, t): self.items.append(("raw", "; " + t))
    def render(self):
        out = []
        hist = []
        def pad(n):
            while n > 0:
                k = min(n, 16)
                out.append("    s_nop %d" % (k - 1))
                for h in hist: h[1] += k
                n -= k
        WINDOW = 20
        for it in self.items:
            if isinstance(it, tuple):
                if it[0] == "label":
                    mx = 0
                    for p, d in hist:
                        w = {"mfma": {4: 8, 8: 12}.get(p.passes, 0), "valu": 5, "salu": 1, "vmem": 2, "ds": 0}[p.kind]
                        mx = max(mx, w - d)
                    pad(mx); hist = []
                    out.append(it[1] + ":")
                else:
                    out.append("    " + it[1])
                continue
            req = 0
            for p, d in hist:
                req = max(req, need(p, it) - d)
            if it.op.startswith(("s_cbranch", "s_branch")):
                for p, d in hist:
                    w = {"mfma": {4: 8, 8: 12}.get(p.passes, 0), "valu": 5, "salu": 1, "vmem": 2, "ds": 0}[p.kind]
                    req = max(req, w - d - 1)
            pad(req)
            out.append("    " + it.text)
            for h in hist: h[1] += it.states
            hist.append([it, 0])
            hist = [h for h in hist if h[1] < WINDOW]
        return out

def v(i, n=1): return "v%d" % i if n == 1 else "v[%d:%d]" % (i, i + n - 1)
def a(i, n=1): return "a%d" % i if n == 1 else "a[%d:%d]" % (i, i + n - 1)
def s(i, n=1): return "s%d" % i if n == 1 else "s[%d:%d]" % (i, i + n - 1)

import struct
def f32(x): return "0x%08x" % struct.unpack("<I", struct.pack("<f", x))[0]

def build_file(header_lines, kernels, launches):
    L = list(header_lines)
    for (n, g, b, lds) in launches:
        L.append("; @launch kernel=%s grid=(%d,1,1) block=(%d,1,1) lds=%d" % (n, g, b, lds))
    L += ['.amdgcn_target "amdgcn-amd-amdhsa--gfx950"', ".text"]
    for k in kernels:
        L += [".globl %s" % k.name, ".p2align 8", ".type %s,@function" % k.name, "%s:" % k.name]
        L += k.render()
    L += ['.section .rodata,"a"']
    for k in kernels:
        acc = max(4, (k.maxv + 1 + 3) // 4 * 4)
        nfv = acc + k.maxa + 1 if k.maxa >= 0 else k.maxv + 1
        nfv = max(nfv, getattr(k, "min_vgpr", 0))
        L += [".p2align 6", ".amdhsa_kernel %s" % k.name,
              "  .amdhsa_next_free_vgpr %d" % nfv, "  .amdhsa_next_free_sgpr %d" % (k.maxs + 1),
              "  .amdhsa_accum_offset %d" % acc, "  .amdhsa_group_segment_fixed_size 0", "  .amdhsa_kernarg_size 128",
              "  .amdhsa_user_sgpr_count 2", "  .amdhsa_user_sgpr_kernarg_segment_ptr 1",
              "  .amdhsa_system_sgpr_workgroup_id_x 1", "  .amdhsa_float_denorm_mode_32 3", ".end_amdhsa_kernel"]
    return "\n".join(L) + "\n"

class Cap:
    def __init__(self): self.q = []
    def __call__(self, op, *ops, m=""): self.q.append((op, ops, m))
    def cost(self, it):
        return 8 if it[0].startswith(TRANS) else 4
    def drain(self, k, budget=None):
        spent = 0
        while self.q:
            c = self.cost(self.q[0])
            if budget is not None and spent + c > budget: break
            op, ops, m = self.q.pop(0)
            k(op, *ops, m=m); spent += c
```

```python
from dsl import *
import math, os
WS_HH = int(os.environ.get('WSB', '0')) * (1 << 20) + 8192
WS_UU = WS_HH + 5242880
WS_UP = WS_UU + 160 * 16384
WS_CP = WS_UP + 161 * 16384
WS_GG = WS_CP + 1638400
WS_TS = WS_GG + 16384
WS_CT = WS_TS + 16 * 16 * 640
WS_FU = WS_CT + 64 * 128
WS_FC = WS_FU + 1024 * 128
WS_FH = WS_FC + 800 * 128
WS_FP = WS_FH + 1024 * 128
WS_WP = WS_FP + 704 * 128
WS_END = WS_WP + 161 * 16384
WS_SIZE = 268435456
OOB = 0x40000000
C1, C2 = math.cos(2 * math.pi / 5), math.cos(4 * math.pi / 5)
N1, N2 = math.sin(2 * math.pi / 5), math.sin(4 * math.pi / 5)
LOG2E = 1.4426950408889634
INV2PI = 0.15915494309189535
SPIN_MAX = 40000

def srd(k, d, ptr, nbytes):
    k("s_mov_b32", s(d), s(ptr)); k("s_mov_b32", s(d + 1), s(ptr + 1))
    k("s_mov_b32", s(d + 2), str(nbytes)); k("s_mov_b32", s(d + 3), "0x20000")

class VM:
    def __init__(self): self.tags = []
    def issue(self, tag): self.tags.append(tag)
    def n_after(self, *need):
        idx = [i for i, t in enumerate(self.tags) if t in need]
        assert idx, need
        return min(63, len(self.tags) - 1 - max(idx))

STAMP = bool(int(os.environ.get("STAMP", "0")))
WS_ST = 16 << 20
NST = 16
class Stamps:
    def __init__(self, k, ws, sW, lw=2):
        self.k, self.ws, self.sW, self.lw = k, ws, sW, lw
    def mark(self, i, real=False):
        if not STAMP: return
        k = self.k
        k("s_memrealtime" if real else "s_memtime", s(98, 2)); k("s_waitcnt", "lgkmcnt(0)")
        k("v_writelane_b32", "v254", s(98), str(i))
    def flush(self):
        if not STAMP: return
        k = self.k
        k("s_lshl_b32", s(97), "s2", str(self.lw)); k("s_add_u32", s(97), s(97), s(self.sW)); k("s_lshl_b32", s(97), s(97), "6")
        k("s_add_u32", s(97), s(97), str(WS_ST))
        k("v_and_b32", "v253", "63", getattr(self, "lane", "v0")); k("v_lshlrev_b32", "v253", "2", "v253")
        k("s_mov_b64", "exec", "0xffff")
        k("buffer_store_dword", "v254", "v253", s(self.ws, 4), s(97), m="offen")
        k("s_mov_b64", "exec", "-1")

def lam_calc(k, lre, lim, ldt, zr, zi, t0):
    k("v_mul_f32", v(t0), f32(LOG2E), v(ldt))
    k("v_exp_f32", v(t0), v(t0))
    k("v_cvt_pk_bf16_f32", v(t0), v(t0), v(t0))
    k("v_and_b32", v(t0), "0xffff0000", v(t0))
    k("v_mul_f32", v(zr), v(t0), v(lre)); k("v_mul_f32", v(zi), v(t0), v(lim))
    k("v_mul_f32", v(zr), f32(LOG2E), v(zr)); k("v_mul_f32", v(zi), f32(INV2PI), v(zi))

def cexp(k, dst, zr, zi, t0):
    k("v_fract_f32", v(t0), v(zi))
    k("v_exp_f32", v(t0 + 1), v(zr))
    k("v_cos_f32", v(dst), v(t0)); k("v_sin_f32", v(dst + 1), v(t0))
    k("v_mul_f32", v(dst), v(dst), v(t0 + 1)); k("v_mul_f32", v(dst + 1), v(dst + 1), v(t0 + 1))

def cmac(k, dst, l, h, u):
    k("v_pk_fma_f32", v(dst, 2), v(h, 2), v(l, 2), v(u, 2), m="op_sel:[0,0,0] op_sel_hi:[1,0,1]")
    k("v_pk_fma_f32", v(dst, 2), v(h, 2), v(l, 2), v(dst, 2), m="op_sel:[1,1,0] op_sel_hi:[0,1,1] neg_lo:[0,1,0]")

def cmul(k, dst, l, h):
    k("v_pk_mul_f32", v(dst, 2), v(h, 2), v(l, 2), m="op_sel:[0,0] op_sel_hi:[1,0]")
    k("v_pk_fma_f32", v(dst, 2), v(h, 2), v(l, 2), v(dst, 2), m="op_sel:[1,1,0] op_sel_hi:[0,1,1] neg_lo:[0,1,0]")

def gen16(k, step, base, oc, os_, on, tmp):
    for q in range(2):
        for e in range(8):
            k("v_fmamk_f32", v(tmp + e), v(step), f32(16 * q + 8 * (e >> 2) + (e & 3)), v(base))
        for e in range(8): k("v_cos_f32", v(tmp + 8 + e), v(tmp + e))
        for e in range(8): k("v_sin_f32", v(tmp + e), v(tmp + e))
        for e in range(4): k("v_cvt_pk_bf16_f32", v(oc + 4 * q + e), v(tmp + 8 + 2 * e), v(tmp + 9 + 2 * e))
        for e in range(4): k("v_cvt_pk_bf16_f32", v(os_ + 4 * q + e), v(tmp + 2 * e), v(tmp + 1 + 2 * e))
        if on is not None:
            for e in range(4): k("v_cvt_pk_bf16_f32", v(on + 4 * q + e), "-" + v(tmp + 2 * e), "-" + v(tmp + 1 + 2 * e))
```

```python
from vcommon import *
KNAME = "gated_mix__spectral_gfnet__ssm_conv_s5__prompt_kernel"
M16 = "v_mfma_f32_16x16x32_bf16"
M32 = "v_mfma_f32_32x32x16_bf16"
DPPM = " row_mask:0xf bank_mask:0xf"
ENV = lambda n, d: int(os.environ.get(n, str(d)))
ROT = ENV("ROT", 5); SPINK = ENV("SPINK", 0); CST = ENV("CST", 0); N_CPG1 = ENV("N_CPG1", 10); N_WG1 = ENV("N_WG1", 6); N_WG2 = ENV("N_WG2", 12); N_WG3 = ENV("N_WG3", 16); CPF = ENV("CPF", 1); B2E = ENV("B2E", 1); EP_W = ENV("EP_W", 0); EP_M = ENV("EP_M", 0); NF1 = ENV("NF1", 2); NC = [int(a_) for a_ in os.environ.get("NC", "12,8,5,0").split(",")]; EP_C = ENV("EP_C", 2); N_CPG2 = ENV("N_CPG2", 15); FSH = ENV("FSH", 5); PSL = ENV("PSL", 8); WJIT = 1; WT_ = ENV("WTOUCH", 1); NT = ENV("NT", 0); ABL = ENV("ABL", 0); P1ONLY = ENV("P1ONLY", 0)

L_WT, L_AR, L_XR, L_LT, L_FL = 0, 151552, 81920, 161792, 162304
LDS_TOTAL = 163840
L_UI, L_EX, L_E, L_CR, L_PT, L_LF = 20480, 0, 40960, 46592, 52224, 55296
L_RED, L_TP = 0, 143360
L_C0, L_C1 = 40960, 99328
WS, SA, SB, SC, SD = 4, 8, 12, 16, 20
sW, sC, sJ, sSLO, sJ8, sM, sQ, sU, sO, sT, sT2, sIDX = range(24, 36)
pX, pWR, pWI, pLR, pLI, pBR, pBI, pCR, pCI, pLD, pDS, pGW, pOUT, pDBG, pWS = 36, 38, 40, 44, 46, 48, 50, 52, 54, 56, 58, 60, 62, 64, 66
sSC, sXB, sWB, sXL, sWL, sISA = 68, 73, 74, 75, 76, 77
sC1, sC2, sN1, sN2, sMK = 78, 80, 82, 84, 86
sHB, sCNT, sA0, sA1, sA2, sA3, sA4, sA5, sA6 = range(88, 97)
sKW = 42
sKW0 = 3
TID, LANE, vG, vI, vT, vT2, vF, vL5, vH, vFL, vCA = 0, 1, 2, 3, 4, 5, 6, 7, 8, 9, 10
XP, DP = 240, 246
vCK = 252
GO = (128, 64)
RT = (8, 192)

def P(r): return v(r, 2)

def swadd(k, d, a_, b_, plus_i):
    k("v_sub_f32" if plus_i else "v_add_f32", v(d), v(a_), v(b_ + 1))
    k("v_add_f32" if plus_i else "v_sub_f32", v(d + 1), v(a_ + 1), v(b_))

def spin_check(k, name, reload, check, sleep=2):
    k("s_mov_b32", s(sCNT), "0")
    k.label(name + "_L")
    k("s_cbranch_vccz", name + "_D")
    k("s_add_u32", s(sCNT), s(sCNT), "1"); k("s_cmp_ge_u32", s(sCNT), str(SPIN_MAX)); k("s_cbranch_scc1", name + "_D")
    if sleep: k("s_sleep", str(sleep))
    reload()
    k("s_waitcnt", "vmcnt(0)")
    check()
    k("s_branch", name + "_L")
    k.label(name + "_D")

def flag_set(k, epoch, tmp):
    k("v_mov_b32", v(tmp), str(epoch))
    k("ds_write_b32", v(vFL), v(tmp))

def flag_read(k, grp, tmp):
    k("ds_read_b128", v(tmp, 4), v(vCA + 1), m="offset:%d" % (16 * grp))

def flag_wait(k, name, grp, epoch, tmp, pre=False, sleep=0):
    if not pre:
        flag_read(k, grp, tmp); k("s_waitcnt", "lgkmcnt(0)")
    k("s_mov_b32", s(sCNT), "0")
    k.label(name + "_L")
    k("v_min3_u32", v(tmp), v(tmp), v(tmp + 1), v(tmp + 2)); k("v_min_u32", v(tmp), v(tmp), v(tmp + 3))
    k("v_cmp_gt_u32", "vcc", str(epoch), v(tmp))
    k("s_cbranch_vccz", name + "_D")
    k("s_add_u32", s(sCNT), s(sCNT), "1"); k("s_cmp_ge_u32", s(sCNT), str(SPIN_MAX * 8)); k("s_cbranch_scc1", name + "_D")
    if sleep: k("s_sleep", str(sleep))
    flag_read(k, grp, tmp); k("s_waitcnt", "lgkmcnt(0)")
    k("s_branch", name + "_L")
    k.label(name + "_D")

sNON = 43
def non_load(k, r):
    k("global_load_dwordx2", v(r, 2), v(vCA), s(pDBG, 2), m="sc1")
def non_wait(k, name, r):
    def ck():
        k("v_cmp_eq_u32", "vcc", "0", v(r)); k("v_cmp_ne_u32", s(sMK, 2), "8", v(r + 1)); k("s_or_b64", "vcc", "vcc", s(sMK, 2))
    ck()
    spin_check(k, name, lambda: non_load(k, r), ck, sleep=8)
    k("v_readfirstlane_b32", s(sNON), v(r))
WS_CN = WS_FU
CH0, CU0, CP0, CC0 = 0, 32, 48, 80
def cn_add(k, soff, tmp):
    k("v_mov_b32", v(tmp), "1"); k("v_lshlrev_b32", v(tmp + 1), "7", v(LANE)); k("s_mov_b64", "exec", "15")
    k("buffer_atomic_add", v(tmp), v(tmp + 1), s(WS, 4), s(soff), m="offen sc1")
    k("s_mov_b64", "exec", "-1")
def cn_poll(k, soff, nl=1):
    k("v_mov_b32", v(vCK), "0")
    if nl > 1: k("v_lshlrev_b32", v(vT), "9", v(LANE))
    k("s_mov_b64", "exec", str((1 << nl) - 1))
    k("buffer_atomic_add", v(vCK), v(vT if nl > 1 else vCA), s(WS, 4), s(soff), m="offen sc0 sc1")
    k("s_mov_b64", "exec", "-1")
def cn_wait(k, name, soff, target, nl=1, sleep=None):
    def ck():
        k("v_cmp_gt_u32", "vcc", target, v(vCK)); k("s_and_b64", "vcc", "vcc", str((1 << nl) - 1))
    ck()
    spin_check(k, name, lambda: cn_poll(k, soff, nl), ck, sleep=PSL if sleep is None else sleep)
def cn_addr(k, dst, rep_sgpr=None):
    k("s_lshl_b32", s(dst), s(dst), "2")
    if rep_sgpr is not None: k("s_add_u32", s(dst), s(dst), s(rep_sgpr))
    k("s_lshl_b32", s(dst), s(dst), "7"); k("s_add_u32", s(dst), s(dst), str(WS_CN))
sCC = 41
def cc_addr(k):
    k("s_mul_i32", s(sCC), s(sJ8), "5"); k("s_add_u32", s(sCC), s(sCC), str(CC0)); cn_addr(k, sCC, sW)

def radix_consts(k):
    for r, val in ((sC1, C1), (sC2, C2), (sN1, N1), (sN2, N2)):
        k("s_mov_b32", s(r), f32(val)); k("s_mov_b32", s(r + 1), f32(val))

def cpreg(role, n, kk):
    if role == 0: return 16 + 20 * n + 4 * kk
    return (160 + 20 * n + 4 * kk) if n < 4 else (16 + 4 * kk)
def cf_lds(n, kk):
    f = 5 * n + kk
    return L_C1 + f * 4096 if f < 11 else L_C0 + (f - 11) * 4096
def cp_setup(k):
    k("s_mul_i32", s(sXB), s(sJ8), "204800"); k("s_mul_i32", s(sT), s(sKW), "5120"); k("s_add_u32", s(sXB), s(sXB), s(sT)); k("s_add_u32", s(sXB), s(sXB), str(WS_CP))
def cp_items(k, role, n):
    it = []
    for kk in range(5):
        def f(kk=kk):
            if kk == 0: k("s_add_u32", s(sA6), s(sXB), str(n * 40960))
            if kk == 4: k("s_add_u32", s(sA6), s(sA6), "4096")
            k("buffer_load_dwordx4", v(cpreg(role, n, kk), 4), v(vF), s(WS, 4), s(sA6), m="offen offset:%d sc1" % ((kk & 3) * 1024))
        it.append(f)
    return it
def ld_cp(k, role, n):
    for f in cp_items(k, role, n): f()

def xd_loads(k, role):
    tiles = (0, 1, 2) if role == 0 else (3, 4)
    k("s_lshl_b32", s(sT), s(sW), "9"); k("s_add_u32", s(sT), s(sT), str(L_AR))
    k("v_lshlrev_b32", v(vT), "5", v(vI)); k("v_lshl_add_u32", v(vT), v(vG), "3", v(vT)); k("v_add_u32", v(vT), s(sT), v(vT))
    for i_, n in enumerate(tiles): k("ds_read_b64", v(XP + 2 * i_, 2), v(vT), m="offset:%d" % (n * 2048))
def dsk_loads(k, role, vm):
    tiles = (0, 1, 2) if role == 0 else (3, 4)
    k("v_lshlrev_b32", v(vT), "3", v(vG)); k("s_lshl_b32", s(sT), s(sJ8), "5"); k("v_add_u32", v(vT), s(sT), v(vT))
    for i_, n in enumerate(tiles):
        k("global_load_dwordx2", v(DP + 2 * i_, 2), v(vT), s(pDS, 2), m="offset:%d" % (n * 256)); vm.issue("dsk")

def g_stream(k, st):
    vm = VM()
    ACC = 116
    FX0, FW0 = 16, 24
    FX1 = [44, 72]; FW1 = [52, 80]
    vX = [100, 101, 102, 103]; vW = [104, 105, 106, 107, 108]; vRW0, vRW1, vRX0, vRX1 = 109, 110, 111, 112
    LR = 156
    L8, L32Q, WGT, XE, E0, vGA, PW2, L32, L64, vEA = 196, 198, 200, 208, 210, 218, 222, 226, 228, 230
    TG = 236
    vTS, vCB, vHS, vFC = 12, 13, 14, 15
    FT = 232
    k("s_lshr_b32", s(sA0), "s2", "6")
    k("s_add_u32", s(sT), s(sA0), s(sJ8))
    if ROT == 2:
        k("s_and_b32", s(sT), s(sT), "1"); k("s_mul_i32", s(sSC), s(sT), "512")
    elif ROT == 1:
        k("s_mov_b32", s(sSC), "0")
    else:
        for _ in range(2):
            k("s_cmp_ge_u32", s(sT), "5"); k("s_cselect_b32", s(sT2), "5", "0"); k("s_sub_u32", s(sT), s(sT), s(sT2))
        k("s_lshl_b32", s(sSC), s(sT), "8")
    for i in range(1, 5):
        k("s_add_u32", s(sSC + i), s(sSC + i - 1), "256")
        k("s_cmp_ge_u32", s(sSC + i), "1280"); k("s_cselect_b32", s(sSC + i), "0", s(sSC + i))
    k("s_lshr_b32", s(sA1), s(sW), "1"); k("s_and_b32", s(sA2), s(sW), "1")
    k("s_lshl_b32", s(sXB), s(sC), "2"); k("s_add_u32", s(sXB), s(sXB), s(sW)); k("s_mul_i32", s(sXB), s(sXB), str(32 * 1280))
    k("s_mul_i32", s(sWB), s(sJ), str(40 * 1280)); k("s_lshl_b32", s(sT), s(sA1), "7"); k("s_add_u32", s(sWB), s(sWB), s(sT))
    k("s_mul_i32", s(sWL), s(sA1), "10240"); k("s_mul_i32", s(sT), s(sA2), "5120"); k("s_add_u32", s(sWL), s(sWL), s(sT))
    k("s_mul_i32", s(sXL), s(sW), "12288"); k("s_add_u32", s(sXL), s(sXL), str(L_XR))
    k("v_bfe_u32", v(vT), v(LANE), "3", "2"); k("v_lshl_add_u32", v(vT), v(vH), "3", v(vT)); k("v_mul_u32_u24", v(vT), "1280", v(vT))
    k("v_and_b32", v(vT2), "7", v(LANE)); k("v_xor_b32", v(vT2), v(vT2), v(vG))
    k("v_lshl_add_u32", v(vX[0]), v(vT2), "4", v(vT))
    k("v_xor_b32", v(vX[1]), "64", v(vX[0]))
    k("v_add_u32", v(vX[2]), str(4 * 1280 - 2048), v(vX[0]))
    k("v_add_u32", v(vX[3]), str(20 * 1280 - 3072), v(vX[1]))
    k("v_add_u32", v(vX[1]), str(16 * 1280 - 1024), v(vX[1]))
    k("v_lshrrev_b32", v(vT), "3", v(LANE))
    k("v_and_b32", v(vT2), "6", v(vT)); k("v_xor_b32", v(vT2), v(vT2), v(LANE)); k("v_xor_b32", v(vT2), s(sA2), v(vT2))
    k("v_and_b32", v(vT2), "7", v(vT2)); k("v_mul_u32_u24", v(vT), "1280", v(vT))
    k("v_lshl_add_u32", v(vW[0]), v(vT2), "4", v(vT))
    for t in range(1, 4): k("v_add_u32", v(vW[t]), str(t * (10240 - 1024)), v(vW[0]))
    k("v_add_u32", v(vW[4]), str(4 * 10240), v(vW[0]))
    vPC, PC = 168, 170
    k("v_lshrrev_b32", v(vPC), "2", v(TID)); k("v_min_u32", v(vPC), "39", v(vPC))
    k("s_mul_i32", s(sT), s(sJ), "40"); k("v_add_lshl_u32", v(vPC), s(sT), v(vPC), "1")
    k("s_waitcnt", "lgkmcnt(0)")
    k("s_mov_b32", s(sKW), s(sKW0))
    st.mark(0, True); st.mark(1)
    srd(k, SA, pX, 2621440)
    k("s_cmp_eq_u32", s(sA2), "0")
    k("s_cselect_b32", s(SB), s(pBR), s(pBI)); k("s_cselect_b32", s(SB + 1), s(pBR + 1), s(pBI + 1))
    k("s_mov_b32", s(SB + 2), "819200"); k("s_mov_b32", s(SB + 3), "0x20000")
    def dma(srdn, voff, soff, off, tag):
        fl = " nt" if (NT & 1 and srdn == SA) or (NT & 2 and srdn == SB) else ""
        k("buffer_load_dwordx4", v(voff), s(srdn, 4), s(soff), m=("offen offset:%d" % off if off else "offen") + fl + " lds")
        vm.issue(tag)
    def x_items(c):
        it = [("s", lambda: (k("s_add_u32", "m0", s(sXL), str((c % 3) * 4096)), k("s_add_u32", s(sA0), s(sXB), s(sSC + c // 2)),
                             (k("s_add_u32", s(sA0), s(sA0), "128") if c & 1 else None)))]
        for q in range(4): it.append(("d", lambda q=q: dma(SA, vX[q], sA0, q * 1024, "x%d" % c)))
        return it
    def w_items(sc):
        it = [("s", lambda: (k("s_add_u32", "m0", s(sWL), str(L_WT + (sc % 4) * 20480)), k("s_add_u32", s(sA1), s(sWB), s(sSC + sc))))]
        for t in range(4): it.append(("d", lambda t=t: dma(SB, vW[t], sA1, t * 1024, "w%d" % sc)))
        it.append(("s", lambda: k("s_add_u32", "m0", s(sWL), str(L_WT + (sc % 4) * 20480 + 4096))))
        it.append(("d", lambda: dma(SB, vW[4], sA1, 0, "w%d" % sc)))
        return it
    def run(items):
        for _, f in items: f()
    k("s_barrier")
    for n, ptr in enumerate((pLR, pLI, pLD)):
        k("global_load_ushort", v(PC + n), v(vPC), s(ptr, 2)); vm.issue("par")
    run(w_items(0)); run(x_items(0)); run(w_items(1))
    srd(k, WS, pWS, WS_SIZE)
    k("v_lshrrev_b32", v(vT), "1", v(vI)); k("v_and_b32", v(vT2), "1", v(vI))
    k("v_and_b32", v(vRW0), "6", v(vT)); k("v_xor_b32", v(vRW0), v(vRW0), v(vT2)); k("v_xor_b32", v(vRW0), v(vRW0), v(vG))
    k("v_lshlrev_b32", v(vRW0), "4", v(vRW0)); k("v_lshl_add_u32", v(vRW0), v(vT), "7", v(vRW0))
    k("v_mul_u32_u24", v(vT2), "5120", v(vT2)); k("v_add_u32", v(vRW0), v(vRW0), v(vT2)); k("v_xor_b32", v(vRW1), "64", v(vRW0))
    k("v_xor_b32", v(vRX0), v(vT), v(vG)); k("v_lshlrev_b32", v(vRX0), "4", v(vRX0))
    k("v_lshl_add_u32", v(vRX0), v(vI), "7", v(vRX0)); k("v_add_u32", v(vRX0), s(sXL), v(vRX0)); k("v_xor_b32", v(vRX1), "64", v(vRX0))
    k("v_lshrrev_b32", v(vT), "2", v(TID)); k("v_lshlrev_b32", v(vTS), "4", v(vT))
    k("v_cmp_gt_u32", "vcc", "40", v(vT)); k("v_and_b32", v(vT2), "3", v(TID)); k("v_cmp_eq_u32", s(sMK, 2), "3", v(vT2))
    k("s_and_b64", "vcc", "vcc", s(sMK, 2)); k("v_mov_b32", v(vCB), str(OOB)); k("v_cndmask_b32", v(vTS), v(vCB), v(vTS), "vcc")
    k("s_lshl_b32", s(sA2), s(sJ), "4"); k("s_add_u32", s(sA2), s(sA2), s(sC)); k("s_mul_i32", s(sA3), s(sA2), "640"); k("s_add_u32", s(sA3), s(sA3), str(WS_TS))
    k("v_mul_u32_u24", v(vCB), str(4 * 336), v(vT2)); k("v_min_u32", v(vT), "39", v(vT)); k("v_lshl_add_u32", v(vCB), v(vT), "3", v(vCB))
    k("v_add_u32", v(vCB), str(L_E), v(vCB))
    k("v_lshrrev_b32", v(vT), "3", v(TID)); k("s_mov_b32", s(sT), "163840")
    k("v_and_b32", v(vHS), "7", v(LANE)); k("v_lshlrev_b32", v(vHS), "4", v(vHS)); k("v_mad_u32_u24", v(vHS), v(vT), s(sT), v(vHS))
    k("s_mul_i32", s(sHB), s(sC), "10240"); k("s_mul_i32", s(sT), s(sJ), "640"); k("s_add_u32", s(sHB), s(sHB), s(sT)); k("s_add_u32", s(sHB), s(sHB), str(WS_HH))
    k("s_lshl_b32", s(sT), s(sW), "2"); k("v_add_u32", v(vEA), s(sT), v(vG)); k("v_mul_u32_u24", v(vEA), "336", v(vEA))
    k("v_lshl_add_u32", v(vEA), v(vI), "2", v(vEA)); k("v_add_u32", v(vEA), str(L_E), v(vEA))
    k("s_waitcnt", "vmcnt(%d)" % vm.n_after("par"))
    ZR, ZI, T0, T1, T2, QF = 166, 167, 188, 190, 192, 168
    for r in range(PC, PC + 3): k("v_lshlrev_b32", v(r), "16", v(r))
    lam_calc(k, PC, PC + 1, PC + 2, ZR, ZI, T0)
    cexp(k, T2, ZR, ZI, T0)
    k("v_lshrrev_b32", v(T1), "2", v(TID)); k("v_lshlrev_b32", v(T1), "3", v(T1)); k("v_add_u32", v(T1), str(L_LT), v(T1))
    k("ds_write_b64", v(T1), v(T2, 2))
    for dst, n in ((L8, 8.0), (L32, 32.0), (L64, 64.0)):
        k("v_mul_f32", v(T1), f32(n), v(ZR)); k("v_mul_f32", v(T1 + 1), f32(n), v(ZI)); cexp(k, dst, T1, T1 + 1, T0)
    run(x_items(1)); run(x_items(2))
    st.mark(2)
    first = {}
    def mfma(fx, fw, t, tau):
        acc = v(ACC + 8 * t + 4 * tau, 4)
        cc = acc if first.get((t, tau)) else "0"
        first[(t, tau)] = True
        k(M16, acc, v(fx + 4 * tau, 4), v(fw + 4 * t, 4), cc)
    FWB = FW1[0]
    fs = {0: 1, 1: 2, 3: 3, 5: 4, 7: 5} if WJIT else {0: 1, 1: 2, 3: 3, 5: 5}
    ce = {0: 1, 2: 2, 4: 3, 6: 4, 8: 5} if WJIT else {0: 1, 2: 2, 4: 3, 6: 5}
    for c in range(10):
        k("s_waitcnt", "vmcnt(%d) lgkmcnt(0)" % vm.n_after(*(["x%d" % c] + (["w%d" % ((c + 1) // 2)] if c in (3, 5, 7) else []))))
        if CST and c % 2 == 0: st.mark(7 + c // 2 if c < 8 else 2)
        wo, xo, p = (c % 8) * 10240 - (40960 if c in (6, 7) else 0), (c % 3) * 4096, c & 1
        m1 = [(n >> 1, n & 1) for n in range(10)] if c > 0 else []
        def M1():
            if m1: mfma(FX1[1 - p], FWB, *m1.pop(0))
        if c == 0:
            flag_set(k, 1, FT); flag_wait(k, "G_W0", 0, 1, FT)
        elif c in ce:
            M1(); flag_wait(k, "G_W%d" % c, 0, ce[c], FT, pre=True)
        if c in (6, 8): k("v_add_u32" if c == 6 else "v_subrev_u32", v(vRW0), "40960", v(vRW0))
        rA = [(v(FX0 + 4 * tau, 4), vRX0, xo + tau * 2048) for tau in range(2)] + [(v(FW0 + 4 * t, 4), vRW0, wo + t * 1024) for t in range(5)] \
           + [(v(FX1[p] + 4 * tau, 4), vRX1, xo + tau * 2048) for tau in range(2)]
        for d, ad, off in rA:
            M1(); k("ds_read_b128", d, v(ad), m="offset:%d" % off)
        if c in fs and c > 0: flag_set(k, fs[c], vT)
        while m1: M1()
        if c in (6, 8): k("v_add_u32" if c == 6 else "v_subrev_u32", v(vRW1), "40960", v(vRW1))
        items = []
        if c + 3 < 10:
            if WJIT:
                if c in (0, 2, 4): items += w_items(c // 2 + 2)
            elif c < 3: items += w_items(c + 2)
        xit = x_items(c + 3) if c + 3 < 10 else []
        if c == 7: items.append(("d", lambda: (non_load(k, 194), vm.issue("ck"))))
        extra = 1 if (c in fs and c > 0) else 0
        k("s_waitcnt", "lgkmcnt(%d)" % (2 + extra))
        rB = [(v(FWB + 4 * t, 4), vRW1, wo + t * 1024) for t in range(5)]
        for n in range(10):
            mfma(FX0, FW0, n >> 1, n & 1)
            if n < 5:
                d, ad, off = rB[n]; k("ds_read_b128", d, v(ad), m="offset:%d" % off)
            if n == 5:
                k("s_waitcnt", "lgkmcnt(5)")
                items += xit
            while items:
                kind, f = items.pop(0); f()
                if kind == "d": break
        run(items)
        if c + 1 in ce: flag_read(k, 0, FT)
    k("s_waitcnt", "lgkmcnt(0)")
    k("v_lshrrev_b32", v(vT), "1", v(vI)); k("v_lshlrev_b32", v(vT), "3", v(vT)); k("v_add_u32", v(vT), str(L_LT), v(vT))
    for t in range(5): k("ds_read_b64", v(LR + 2 * t, 2), v(vT), m="offset:%d" % (t * 64))
    for n in range(10): mfma(FX1[1], FWB, n >> 1, n & 1)
    k("v_not_b32", v(vT2), v(vI)); k("v_lshlrev_b32", v(vT2), "31", v(vT2))
    k("s_waitcnt", "lgkmcnt(0)")
    for t in range(5): k("v_xor_b32", v(LR + 2 * t + 1), v(vT2), v(LR + 2 * t + 1))
    st.mark(3)
    if P1ONLY:
        st.mark(15, True); st.flush(); k("s_endpgm"); return
    SW = "quad_perm:[1,0,3,2]" + DPPM
    for n in range(1, 8):
        for t in range(5): k("v_fmac_f32", v(ACC + 8 * t + n), v(LR + 2 * t), v(ACC + 8 * t + n - 1))
        for t in range(5): k("v_fmac_f32_dpp", v(ACC + 8 * t + n), v(ACC + 8 * t + n - 1), v(LR + 2 * t + 1), m=SW)
    for t in range(5): k("ds_write_b32", v(vEA), v(ACC + 8 * t + 7), m="offset:%d" % (t * 64))
    k("s_waitcnt", "vmcnt(0) lgkmcnt(0)")
    flag_set(k, 6, FT)
    non_wait(k, "G_NON", 194)
    flag_wait(k, "G_E", 0, 6, FT)
    for n in range(4): k("ds_read_b64", v(E0 + 2 * n, 2), v(vCB), m="offset:%d" % (n * 336))
    k("s_mov_b32", s(sMK), "0x11111111"); k("s_mov_b32", s(sMK + 1), "0x11111111")
    k("s_mov_b32", s(sA0), "0x33333333"); k("s_mov_b32", s(sA1), "0x33333333")
    Q_, SH, Q1, Q2 = 176, 178, 180, 182
    k("v_mov_b32", v(185), s(sNON)); k("v_mov_b32", v(187), s(sNON))
    k("s_waitcnt", "lgkmcnt(0)")
    cmac(k, Q1, L8, E0, E0 + 2); cmac(k, Q2, L8, Q1, E0 + 4); cmac(k, Q_, L8, Q2, E0 + 6)
    for e in range(2): k("v_mov_b32_dpp", v(SH + e), v(Q_ + e), m="quad_perm:[0,0,1,2]" + DPPM)
    for e in range(2): k("v_cndmask_b32", v(SH + e), v(SH + e), "0", s(sMK, 2))
    cmac(k, Q_, L32, SH, Q_)
    for e in range(2): k("v_mov_b32_dpp", v(SH + e), v(Q_ + e), m="quad_perm:[0,1,0,1]" + DPPM)
    for e in range(2): k("v_cndmask_b32", v(SH + e), v(SH + e), "0", s(sA0, 2))
    cmac(k, Q_, L64, SH, Q_)
    k("v_mov_b32", v(184), v(Q_)); k("v_mov_b32", v(186), v(Q_ + 1))
    k("buffer_store_dwordx4", v(184, 4), v(vTS), s(WS, 4), s(sA3), m="offen sc0 sc1")
    st.mark(4)
    for e in range(2): k("v_mov_b32_dpp", v(XE + e), v(Q_ + e), m="quad_perm:[0,0,1,2]" + DPPM)
    for e in range(2): k("v_cndmask_b32", v(XE + e), v(XE + e), "0", s(sMK, 2))
    vLW = 226
    k("s_mul_i32", s(sT), s(sW), "10816"); k("s_add_u32", s(sT), s(sT), str(L_LF))
    k("v_mul_u32_u24", v(vLW), str(8 * 336), v(vG)); k("v_lshl_add_u32", v(vLW), v(vI), "2", v(vLW)); k("v_add_u32", v(vLW), s(sT), v(vLW))
    for q in range(1, 4): k("v_add_u32", v(vLW + q), str(q * 672), v(vLW))
    k("v_and_b32", v(QF), "3", v(TID)); k("v_cvt_f32_u32", v(QF + 1), v(QF))
    for e in range(2):
        k("v_fma_f32", v(QF + 6), "2.0", v(QF + 1), "1.0" if e == 0 else "2.0")
        k("v_mul_f32", v(T1), v(QF + 6), v(ZR)); k("v_mul_f32", v(T1 + 1), v(QF + 6), v(ZI)); cexp(k, PW2 + 2 * e, T1, T1 + 1, T0)
    k("v_lshlrev_b32", v(QF), "2", v(QF)); k("v_sub_u32", v(QF + 2), s(sC), v(QF))
    k("v_mul_u32_u24", v(QF + 3), "640", v(QF))
    k("v_lshrrev_b32", v(QF + 4), "2", v(TID)); k("v_lshl_add_u32", v(QF + 3), v(QF + 4), "4", v(QF + 3))
    k("v_cmp_gt_u32", "vcc", "40", v(QF + 4)); k("v_cndmask_b32", v(QF + 2), "0", v(QF + 2), "vcc")
    k("v_mov_b32", v(QF + 4), str(OOB))
    for n in range(4):
        k("v_cmp_le_i32", "vcc", str(n + 1), v(QF + 2)); k("v_cndmask_b32", v(vGA + n), v(QF + 4), v(QF + 3), "vcc")
    cc_addr(k)
    cp_setup(k)
    cps = [f for n in range(5) for f in cp_items(k, 0, n)]
    assert sum(NC) == 25
    cn_poll(k, sCC, 5)
    for q in range(4):
        for t in range(5):
            k("ds_write2_b32", v(vLW + q), v(ACC + 8 * t + 2 * q), v(ACC + 8 * t + 2 * q + 1), m="offset0:%d offset1:%d" % (16 * t, 84 + 16 * t))
        k("s_waitcnt", "lgkmcnt(5)")
    k("v_and_b32", v(vT), "3", v(TID)); k("v_mul_u32_u24", v(vT), "640", v(vT))
    k("v_lshrrev_b32", v(vT2), "2", v(TID)); k("v_cmp_gt_u32", "vcc", "40", v(vT2)); k("v_lshl_add_u32", v(vT), v(vT2), "3", v(vT))
    k("s_and_saveexec_b64", s(sMK, 2), "vcc")
    for e in range(2): k("ds_write_b64", v(vT), v(PW2 + 2 * e, 2), m="offset:%d" % (L_PT + 320 * e))
    k("s_mov_b64", "exec", s(sMK, 2))
    k("s_waitcnt", "lgkmcnt(0)")
    flag_set(k, 7, FT)
    k("s_mul_i32", s(sA2), s(sJ), "10240"); k("s_add_u32", s(sA2), s(sA2), str(WS_TS))
    def ld_T():
        for n in range(4): k("buffer_load_dwordx4", v(TG + 4 * n, 4), v(vGA + n), s(WS, 4), s(sA2), m="offen offset:%d sc1" % (n * 640))
    def ck_T():
        for n in range(4):
            k("v_xor_b32", v(TG + 4 * n + 1), v(TG + 4 * n + 1), v(EXP + n)); k("v_xor_b32", v(TG + 4 * n + 3), v(TG + 4 * n + 3), v(EXP + n))
        k("v_or3_b32", v(vT), v(TG + 1), v(TG + 3), v(TG + 5)); k("v_or3_b32", v(vT2), v(TG + 7), v(TG + 9), v(TG + 11))
        k("v_or3_b32", v(vT), v(TG + 13), v(TG + 15), v(vT)); k("v_or_b32", v(vT), v(vT), v(vT2))
        k("v_cmp_ne_u32", "vcc", "0", v(vT))
    k("s_waitcnt", "vmcnt(0)")
    k("v_cmp_gt_u32", "vcc", "20", v(vCK)); k("s_and_b64", s(sMK, 2), "vcc", "31")
    k("s_mov_b32", s(sXL), s(sMK))
    e0 = cps[:NC[0]]; cps = cps[NC[0]:]
    k("s_cmp_lg_u32", s(sXL), "0"); k("s_cbranch_scc1", "G_N0")
    for f in e0: f()
    k.label("G_N0")
    ld_T()
    k("v_mul_f32", v(QF + 1), f32(32.0), v(QF + 1))
    k("v_mul_f32", v(T1), v(QF + 1), v(ZR)); k("v_mul_f32", v(T1 + 1), v(QF + 1), v(ZI)); cexp(k, L32Q, T1, T1 + 1, T0)
    for n in range(4):
        k("v_subrev_u32", v(QF + 5), str(n + 1), v(QF + 2))
        k("v_max_i32", v(QF + 5), "0", v(QF + 5)); k("v_cvt_f32_i32", v(QF + 5), v(QF + 5)); k("v_mul_f32", v(QF + 5), f32(128.0), v(QF + 5))
        k("v_mul_f32", v(T1), v(QF + 5), v(ZR)); k("v_mul_f32", v(T1 + 1), v(QF + 5), v(ZI)); cexp(k, WGT + 2 * n, T1, T1 + 1, T0)
    EXP = 226
    k("s_mov_b32", s(sT), str(OOB))
    for n in range(4):
        k("v_cmp_gt_u32", "vcc", s(sT), v(vGA + n)); k("v_cndmask_b32", v(EXP + n), "0", v(185), "vcc")
    vLR_, vPR, vCR = 222, 223, 12
    k("v_lshrrev_b32", v(vT), "3", v(TID))
    k("v_and_b32", v(vT2), "3", v(LANE))
    k("v_mul_u32_u24", v(vLR_), "10816", v(vT2)); k("v_mov_b32", v(vCR), "336"); k("v_mad_u32_u24", v(vLR_), v(vT), v(vCR), v(vLR_))
    k("v_bfe_u32", v(vPR), v(LANE), "2", "1"); k("v_lshlrev_b32", v(vPR), "5", v(vPR))
    k("v_add_u32", v(vLR_), v(vLR_), v(vPR)); k("v_add_u32", v(vLR_), str(L_LF), v(vLR_))
    k("v_lshl_add_u32", v(vT2), v(vT2), "2", s(sW))
    k("v_mad_u32_u24", v(vCR), v(vT2), v(vCR), v(vPR))
    k("v_and_b32", v(vT), "7", v(vT)); k("v_mul_u32_u24", v(vT), "320", v(vT)); k("v_add_u32", v(vPR), v(vPR), v(vT))
    flag_wait(k, "G_L", 0, 7, FT)
    LOC, PWR = 116, 156
    for t in range(5):
        for e in range(2): k("ds_read_b128", v(LOC + 8 * t + 4 * e, 4), v(vLR_), m="offset:%d" % (t * 64 + 16 * e))
    k("s_waitcnt", "lgkmcnt(4)")
    for t in range(5):
        for e in range(2): k("ds_read_b128", v(PWR + 8 * t + 4 * e, 4), v(vPR), m="offset:%d" % (L_PT + t * 64 + 16 * e))
    st.mark(5)
    k("s_waitcnt", "vmcnt(0) lgkmcnt(0)")
    ck_T()
    spin_check(k, "G_S1", ld_T, ck_T, sleep=4)
    early = cps[:NC[1]]; cps = cps[NC[1]:]
    k("s_cmp_lg_u32", s(sXL), "0"); k("s_cbranch_scc1", "G_NE")
    for f in early: f()
    k.label("G_NE")
    if not CST: st.mark(7)
    HI = 224
    for n in range(4): k("v_mov_b32", v(TG + 4 * n + 1), v(TG + 4 * n + 2))
    cmul(k, HI, WGT, TG)
    for n in range(1, 4): cmac(k, HI, WGT + 2 * n, TG + 4 * n, HI)
    for qp in ("[1,0,3,2]", "[2,3,0,1]"):
        for e in range(2): k("v_add_f32_dpp", v(HI + e), v(HI + e), v(HI + e), m="quad_perm:" + qp + DPPM)
    cmac(k, XE, L32Q, HI, XE)
    cmac(k, E0, L8, XE, E0); cmac(k, E0 + 2, L8, E0, E0 + 2); cmac(k, E0 + 4, L8, E0 + 2, E0 + 4)
    k("v_lshrrev_b32", v(vT2), "2", v(TID)); k("v_cmp_gt_u32", "vcc", "40", v(vT2))
    k("s_and_saveexec_b64", s(sMK, 2), "vcc")
    for n, r in enumerate((XE, E0, E0 + 2, E0 + 4)):
        k("ds_write_b64", v(vCB), v(r, 2), m="offset:%d" % (L_CR - L_E + n * 336))
    k("s_mov_b64", "exec", s(sMK, 2))
    k("s_waitcnt", "lgkmcnt(0)")
    flag_set(k, 8, FT)
    flag_wait(k, "G_C", 0, 8, FT)
    if not CST: st.mark(8)
    CRY = 196
    for t in range(5):
        for e in range(2): k("ds_read_b128", v(CRY + 8 * t + 4 * e, 4), v(vCR), m="offset:%d" % (L_CR + t * 64 + 16 * e))
    for t in range(5):
        k("s_waitcnt", "lgkmcnt(%d)" % (8 - 2 * t))
        for c in range(4): cmac(k, LOC + 8 * t + 2 * c, PWR + 8 * t + 2 * c, CRY + 8 * t + 2 * c, LOC + 8 * t + 2 * c)
        for c in range(4): k("v_cvt_pk_bf16_f32", v(CRY + 8 * t + c), v(LOC + 8 * t + 2 * c), v(LOC + 8 * t + 2 * c + 1))
        k("buffer_store_dwordx4", v(CRY + 8 * t, 4), v(vHS), s(WS, 4), s(sHB), m="offen offset:%d sc0 sc1" % (t * 128))
    st.mark(6)
    k("s_lshl_b32", s(sA4), s(sW), "3"); k("s_lshr_b32", s(sT), s(sJ), "1"); k("s_add_u32", s(sA4), s(sA4), s(sT)); cn_addr(k, sA4)
    n_late = 3
    dsk_loads(k, 0, VM())
    mid = cps[:NC[2]]; cps = cps[NC[2]:]
    k("s_cmp_lg_u32", s(sXL), "0"); k("s_cbranch_scc1", "G_NM")
    for f in mid: f()
    k.label("G_NM")
    flag_wait(k, "G_XA", 1, 1, 176)
    xd_loads(k, 0)
    def stage_cf():
        k("s_cmp_eq_u32", s(sXL), "0"); k("s_cbranch_scc1", "G_NL")
        cn_poll(k, sCC, 5); k("s_waitcnt", "vmcnt(0)")
        cn_wait(k, "G_CC", sCC, "20", 5)
        for f in e0 + early + mid: f()
        k.label("G_NL")
        for f in cps: f()
    gemm3(k, st, 0, n_late, stage_cf)

def f_stream(k, st):
    vm = VM()
    GC, GS, OP, P0, P1, P2 = 16, 48, 80, 112, 128, 144
    FC, FS, FN, F2C, F2S, F2N, WR, WI = 160, 168, 176, 184, 192, 200, 208, 224
    vSG, vSR, vSI, vMR, vMI = 12, 13, 14, 15, 244
    FT = 236
    k("s_lshr_b32", s(sA1), s(sW), "1"); k("s_and_b32", s(sA2), s(sW), "1")
    k("s_mul_i32", s(sA3), s(sSLO), "1280"); k("s_mul_i32", s(sT), s(sA2), str(32 * 40960)); k("s_add_u32", s(sA3), s(sA3), s(sT))
    k("s_lshl_b32", s(sT), s(sA1), "8"); k("s_add_u32", s(sA3), s(sA3), s(sT))
    k("s_lshl_b32", s(sT), s(sJ8), "5"); k("s_add_u32", s(sA3), s(sA3), s(sT))
    k("s_lshl_b32", s(sA4), s(sW), "10"); k("s_add_u32", s(sA4), s(sA4), str(L_AR))
    vAO, vPP, vPO, vZ = 160, 161, 162, 163
    k("s_mov_b32", s(sT), "40960")
    k("v_lshrrev_b32", v(vT), "1", v(LANE)); k("v_and_b32", v(vAO), "1", v(LANE)); k("v_lshlrev_b32", v(vAO), "4", v(vAO))
    k("v_mad_u32_u24", v(vAO), v(vT), s(sT), v(vAO))
    k("s_min_u32", s(sT), "s2", "199")
    k("s_mul_i32", s(sA5), s(sT), "205"); k("s_lshr_b32", s(sA5), s(sA5), "10")
    k("s_mul_i32", s(sT2), s(sA5), "5"); k("s_sub_u32", s(sA6), s(sT), s(sT2)); k("s_lshl_b32", s(sA6), s(sA6), "2"); k("s_add_u32", s(sA6), s(sA6), s(sW))
    k("v_and_b32", v(vPP), "7", v(vI)); k("v_lshl_add_u32", v(vPP), v(vG), "3", v(vPP))
    k("s_lshl_b32", s(sT), s(sA6), "5"); k("v_add_lshl_u32", v(vPP), s(sT), v(vPP), "1")
    k("v_mul_u32_u24", v(vPO), "1280", v(vI)); k("v_lshl_add_u32", v(vPO), v(vG), "4", v(vPO))
    k("s_mul_i32", s(sT), s(sA5), "20480"); k("s_lshl_b32", s(sT2), s(sA6), "6"); k("s_add_u32", s(sT), s(sT), s(sT2))
    k("v_add_u32", v(vPO), s(sT), v(vPO))
    k("v_mov_b32", v(vZ), "0")
    k("s_waitcnt", "lgkmcnt(0)")
    k("s_mov_b32", s(sKW), s(sKW0))
    st.mark(0, True); st.mark(1)
    srd(k, WS, pWS, WS_SIZE); srd(k, SA, pX, 0 if ABL & 1 else 2621440)
    k("s_cmp_lg_u32", s(sW), "3"); k("s_cbranch_scc1", "F_NZ")
    k("s_cmp_ge_u32", "s2", "8"); k("s_cbranch_scc1", "F_NZ")
    k("v_lshlrev_b32", v(vT), "7", v(LANE))
    k("s_lshl_b32", s(sO), "s2", "13"); k("s_add_u32", s(sO), s(sO), str(WS_CN))
    k("buffer_store_dword", v(vZ), v(vT), s(WS, 4), s(sO), m="offen sc0 sc1")
    k("s_cmp_lg_u32", "s2", "0"); k("s_cbranch_scc1", "F_NZ")
    k("s_memrealtime", s(sMK, 2)); k("s_waitcnt", "lgkmcnt(0)")
    k("s_or_b32", s(sT), s(sMK), "1"); k("v_mov_b32", v(vT), s(sT))
    k("global_store_dword", v(vZ), v(vT), s(pDBG, 2), m="sc0 sc1")
    k.label("F_NZ")
    k("s_cmp_ge_u32", s(sW), "2"); k("s_cbranch_scc1", "F_A2")
    k("s_add_u32", "m0", s(sA4), "8192"); k("s_add_u32", s(sO), s(sA3), "1024")
    k("buffer_load_dwordx4", v(vAO), s(SA, 4), s(sO), m="offen lds")
    k.label("F_A2")
    k("s_mov_b32", "m0", s(sA4)); k("s_add_u32", s(sO), s(sA3), "512")
    k("buffer_load_dwordx4", v(vAO), s(SA, 4), s(sA3), m="offen lds"); vm.issue("A")
    k("s_add_u32", "m0", s(sA4), "4096"); k("s_nop", "0")
    k("buffer_load_dwordx4", v(vAO), s(SA, 4), s(sO), m="offen lds"); vm.issue("A")
    PP, PIN = 164, 168
    L_WS = 131072
    sKD, sOD, sOM, sWS = 68, 69, 70, 71
    def batch2():
        srd(k, SC, pWR, 1314816); srd(k, SD, pWI, 1314816)
        vWV = 137
        k("v_cmp_gt_u32", "vcc", "42", v(LANE)); k("v_mov_b32", v(vWV), str(OOB)); k("v_cndmask_b32", v(vWV), v(vWV), v(vF), "vcc")
        def w_rows(kadd, lbase, so):
            k("s_add_u32", s(sT), s(sKD), str(kadd)); k("s_sub_u32", s(sT2), "2048", s(sT)); k("s_and_b32", s(sT2), s(sT2), "2047")
            for r_, (src, dst) in enumerate(((sT, so), (sT2, so + 1))):
                k("s_mul_i32", s(src), s(src), "642"); k("s_and_b32", s(dst), s(src), "15"); k("s_sub_u32", s(src), s(src), s(dst))
                for mt_, sr in enumerate((SC, SD)):
                    k("s_add_u32", "m0", lbase, str(r_ * 1024 + mt_ * 2048)); k("s_nop", "0")
                    k("buffer_load_dwordx4", v(vWV), s(sr, 4), s(src), m="offen lds")
        k("s_lshl_b32", s(sKD), s(sW), "3"); k("s_and_b32", s(sT), "s2", "7"); k("s_add_u32", s(sKD), s(sKD), s(sT))
        k("s_mul_i32", s(sWL), s(sKD), "81920"); k("s_lshl_b32", s(sT), s(sIDX), "9"); k("s_add_u32", s(sWL), s(sWL), s(sT)); k("s_add_u32", s(sWL), s(sWL), str(WS_WP))
        k("s_mov_b32", s(72), s(sKD))
        k("s_lshl_b32", s(sT), s(sIDX), "6"); k("s_add_u32", s(sKD), s(sKD), s(sT))
        k("s_lshl_b32", s(sWS), s(sW), "12"); k("s_add_u32", s(sWS), s(sWS), str(L_WS))
        k("s_setprio", "3")
        k("s_cmp_lg_u32", s(72), "0"); k("s_cbranch_scc1", "F_WB0")
        k("s_mov_b32", s(sXB), str(L_WS + 16384))
        w_rows(32, s(sXB), 74)
        k.label("F_WB0")
        w_rows(0, s(sWS), sOD)
        for _ in range(4): vm.issue("wr")
        k("s_setprio", "0")
    k("s_setprio", "3")
    if CPF:
        k("s_cmp_lg_u32", s(sW), "2"); k("s_cbranch_scc1", "F_NPF")
        k("s_getpc_b64", s(sA0, 2))
        k.items.append(("raw", "F_PC:"))
        k("s_sub_u32", s(sA0), s(sA0), "F_PC-" + KNAME); k("s_subb_u32", s(sA1), s(sA1), "0")
        k("s_lshl_b32", s(sT), s(sIDX), "4"); k("v_add_lshl_u32", v(vT), s(sT), v(vI), "7")
        k("s_mov_b32", s(sT), "W_END-" + KNAME); k("v_min_u32", v(vT), s(sT), v(vT))
        k("global_load_dword", v(177), v(vT), s(sA0, 2))
        k.label("F_NPF")
    k("s_barrier")
    for n, ptr in enumerate((pLR, pLI, pLD)):
        k("global_load_ushort", v(PP + n), v(vPP), s(ptr, 2)); vm.issue("pc")
    k("global_load_dwordx4", v(PIN, 4), v(vPO), s(pCR, 2)); vm.issue("pc")
    k("global_load_dwordx4", v(PIN + 4, 4), v(vPO), s(pCI, 2)); vm.issue("pc")
    dsk_loads(k, 1, vm)
    k("s_setprio", "0")
    k("s_mul_i32", s(sT), s(sIDX), "52"); k("s_lshr_b32", s(sT), s(sT), "8")
    k("s_mul_i32", s(sT2), s(sT), "5"); k("s_sub_u32", s(sQ), s(sIDX), s(sT2))
    k("s_and_b32", s(sM), "s2", "7"); k("s_lshl_b32", s(sT), s(sT), "3"); k("s_add_u32", s(sM), s(sM), s(sT))
    k("s_mul_i32", s(sU), s(sM), "5"); k("s_add_u32", s(sU), s(sU), s(sQ))
    k("s_sub_u32", s(sT), s(sU), "3"); k("s_cmp_lt_u32", s(sT), "2"); k("s_cselect_b32", s(sM), "32", s(sM))
    k("s_cmp_le_u32", "s2", "160"); k("s_cselect_b32", s(sISA), "1", "0")
    FA, TM, TW1, TW2, vMF, vBS = 180, 188, 204, 206, 208, 209
    k("v_lshrrev_b32", v(vT), "1", v(vI))
    k("s_lshl_b32", s(sT), s(sW), "3"); k("v_add_u32", v(vMF), s(sT), v(vT))
    k("v_and_b32", v(vT2), "1", v(vI))
    k("v_cvt_f32_u32", v(vBS), v(vT2)); k("v_mul_f32", v(vBS), f32(0.25), v(vBS))
    k("v_lshl_add_u32", v(vT2), v(vMF), "1", v(vT2)); k("v_cmp_eq_u32", "vcc", "1", v(vT2))
    k("v_cndmask_b32", v(vMF), v(vMF), "32", "vcc"); k("v_cndmask_b32", v(vBS), v(vBS), "0", "vcc")
    k("v_cvt_f32_u32", v(vMF), v(vMF)); k("v_mul_f32", v(vMF), f32(1 / 64), v(vMF))
    k("v_cvt_f32_u32", v(vT2), v(vG)); k("v_mul_f32", v(vT2), "4.0", v(vT2)); k("v_fmac_f32", v(vBS), v(vMF), v(vT2))
    for ks in range(2):
        for e in range(8): k("v_fmamk_f32", v(TM + 8 * ks + e), v(vMF), f32(32 * ks + 16 * (e >> 2) + (e & 3)), v(vBS))
    for e in range(16): k("v_cos_f32", v(TM + e), v(TM + e))
    for e in range(8): k("v_cvt_pk_bf16_f32", v(FA + e), v(TM + 2 * e), v(TM + 2 * e + 1))
    k("s_lshl_b32", s(sT), s(sJ8), "4")
    k("v_add_u32", v(vT2), s(sT), v(vI)); k("v_cvt_f32_u32", v(vT2), v(vT2))
    k("v_mul_f32", v(TW1), f32(0.2), v(vT2)); k("v_mul_f32", v(TW2), f32(0.4), v(vT2))
    k("v_sin_f32", v(TW1 + 1), v(TW1)); k("v_sin_f32", v(TW2 + 1), v(TW2))
    k("v_cos_f32", v(TW1), v(TW1)); k("v_cos_f32", v(TW2), v(TW2))
    vSEL, vUO, vRA = 210, 211, 212
    k("v_and_b32", v(vT2), "1", v(vI)); k("v_cmp_eq_u32", "vcc", "1", v(vT2))
    k("v_mov_b32", v(vSEL), "0x05040100"); k("v_mov_b32", v(vT), "0x03020706"); k("v_cndmask_b32", v(vSEL), v(vSEL), v(vT), "vcc")
    k("v_mul_u32_u24", v(vUO), "10", v(vG)); k("v_lshlrev_b32", v(vUO), "14", v(vUO))
    k("v_lshl_add_u32", v(vUO), v(vT2), "5", v(vUO))
    k("v_bfe_u32", v(vT), v(vI), "2", "1"); k("v_lshl_add_u32", v(vUO), v(vT), "4", v(vUO))
    k("v_lshrrev_b32", v(vT), "3", v(vI)); k("v_lshl_add_u32", v(vUO), v(vT), "3", v(vUO))
    k("v_and_b32", v(vT), "2", v(vI)); k("v_lshl_add_u32", v(vUO), v(vT), "1", v(vUO))
    k("s_mul_i32", s(sA3), s(sW), str(8 * 81920)); k("s_lshl_b32", s(sT), s(sJ8), "11"); k("s_add_u32", s(sA3), s(sA3), s(sT))
    k("s_lshl_b32", s(sT), s(sSLO), "6"); k("s_add_u32", s(sA3), s(sA3), s(sT))
    k("v_lshlrev_b32", v(vRA), "3", v(LANE)); k("v_add_u32", v(vRA), str(L_AR), v(vRA))
    vN0, vSTP, vB2, vH4, TMP = 250, 251, 255, 245, 216
    k("s_lshl_b32", s(sT), s(sW), "5"); k("v_add_u32", v(vN0), s(sT), v(vL5))
    k("v_cvt_f32_u32", v(vSTP), v(vN0)); k("v_mul_f32", v(vSTP), f32(1 / 128), v(vSTP))
    k("v_cvt_f32_u32", v(vH4), v(vH)); k("v_mul_f32", v(vH4), "4.0", v(vH4)); k("v_mul_f32", v(vB2), v(vSTP), v(vH4))
    gen16(k, vSTP, vB2, GC, GS, None, TMP)
    vODD, vMC, vMS, vM64 = TMP, TMP + 1, TMP + 2, TMP + 3
    k("v_bfe_i32", v(vODD), v(vN0), "0", "1"); k("v_and_b32", v(vM64), "0x80008000", v(vODD))
    k("v_bfe_i32", v(vMS), v(vN0), "1", "1"); k("v_and_b32", v(vMS), "0x80008000", v(vMS))
    k("v_xor_b32", v(vMC), v(vMS), v(vM64))
    for r in range(8):
        k("v_bfi_b32", v(GC + 8 + r), v(vODD), v(GS + r), v(GC + r)); k("v_bfi_b32", v(GS + 8 + r), v(vODD), v(GC + r), v(GS + r))
    for r in range(8):
        k("v_xor_b32", v(GC + 8 + r), v(vMC), v(GC + 8 + r)); k("v_xor_b32", v(GS + 8 + r), v(vMS), v(GS + 8 + r))
    for r in range(16):
        k("v_xor_b32", v(GC + 16 + r), v(vM64), v(GC + r)); k("v_xor_b32", v(GS + 16 + r), v(vM64), v(GS + r))
    st.mark(2)
    k("s_waitcnt", "vmcnt(%d)" % vm.n_after("A"))
    flag_set(k, 1, FT)
    k("s_cmp_lg_u32", s(sW), "3"); k("s_cbranch_scc1", "F_NP")
    k("s_cmp_ge_u32", "s2", "8"); k("s_cbranch_scc1", "F_NP")
    k("v_mov_b32", v(vT), "1"); k("s_mov_b64", "exec", "1"); k("s_setprio", "3")
    k("global_atomic_add", v(vZ), v(vT), s(pDBG, 2), m="offset:4 sc1")
    k("s_mov_b64", "exec", "-1"); k("s_setprio", "0")
    k.label("F_NP")
    flag_wait(k, "F_A", 1, 1, FT)
    XT, AC, UO = 80, 120, 140
    for dh in range(5):
        for ks in range(2):
            for hf in range(2):
                k("ds_read_b64_tr_b16", v(XT + 8 * dh + 4 * ks + 2 * hf, 2), v(vRA), m="offset:%d" % (dh * 2048 + ks * 1024 + hf * 512))
        if dh == 2: k("s_waitcnt", "lgkmcnt(4)")
    xd_loads(k, 1)
    k("s_waitcnt", "lgkmcnt(2)")
    for ks in range(2):
        for dh in range(5):
            k(M16, v(AC + 4 * dh, 4), v(FA + 4 * ks, 4), v(XT + 8 * dh + 4 * ks, 4), "0" if ks == 0 else v(AC + 4 * dh, 4))
    k("s_cmp_eq_u32", s(sW), "0"); k("s_cselect_b32", s(sMK), "0xffff", "0"); k("s_mov_b32", s(sMK + 1), "0")
    for vv in range(2):
        T = lambda dh: v(AC + 4 * dh + 2 * vv, 2)
        b = XT + 20 * vv
        S1, D1, S2, D2, A1, A2, B1, B2, U0, Z = [b + 2 * i for i in range(10)]
        k("v_pk_add_f32", P(S1), T(1), T(4)); k("v_pk_add_f32", P(D1), T(1), T(4), m="neg_lo:[0,1] neg_hi:[0,1]")
        k("v_pk_add_f32", P(S2), T(2), T(3)); k("v_pk_add_f32", P(D2), T(2), T(3), m="neg_lo:[0,1] neg_hi:[0,1]")
        k("v_pk_add_f32", P(U0), T(0), P(S1))
        k("v_pk_fma_f32", P(A1), P(S1), s(sC1, 2), T(0)); k("v_pk_fma_f32", P(A2), P(S1), s(sC2, 2), T(0))
        k("v_pk_mul_f32", P(B1), P(D1), s(sN1, 2)); k("v_pk_mul_f32", P(B2), P(D1), s(sN2, 2))
        k("v_pk_add_f32", P(U0), P(U0), P(S2))
        k("v_pk_fma_f32", P(A1), P(S2), s(sC2, 2), P(A1)); k("v_pk_fma_f32", P(A2), P(S2), s(sC1, 2), P(A2))
        k("v_pk_fma_f32", P(B1), P(D2), s(sN2, 2), P(B1)); k("v_pk_fma_f32", P(B2), P(D2), s(sN1, 2), P(B2), m="neg_lo:[1,0,0] neg_hi:[1,0,0]")
        swadd(k, S1, A1, B1, False)
        swadd(k, D1, A1, B1, True)
        swadd(k, S2, A2, B2, False)
        swadd(k, D2, A2, B2, True)
        if vv == 0:
            sp = s(sMK, 2)
            k("v_cndmask_b32", v(S1), v(S1), v(A1), sp); k("v_cndmask_b32", v(S1 + 1), v(S1 + 1), "-" + v(B1), sp)
            k("v_cndmask_b32", v(D1), v(D1), v(A1 + 1), sp); k("v_cndmask_b32", v(D1 + 1), v(D1 + 1), v(B1 + 1), sp)
            k("v_cndmask_b32", v(S2), v(S2), v(A2 + 1), sp); k("v_cndmask_b32", v(S2 + 1), v(S2 + 1), "-" + v(B2 + 1), sp)
            k("v_cndmask_b32", v(D2), v(D2), v(A2), sp); k("v_cndmask_b32", v(D2 + 1), v(D2 + 1), v(B2), sp)
        k("v_cvt_pk_bf16_f32", v(UO + 5 * vv), v(U0), v(U0 + 1))
        for q, src, tw, cj, dst in ((1, D2, TW1, False, A1), (2, S1, TW2, False, A2), (3, D1, TW2, True, B1), (4, S2, TW1, True, B2)):
            k("v_pk_mul_f32", P(dst), P(src), P(tw), m="op_sel:[0,0] op_sel_hi:[1,0]")
            k("v_pk_fma_f32", P(dst), P(src), P(tw), P(dst), m="op_sel:[1,1,0] op_sel_hi:[0,1,1] " + ("neg_lo:[0,1,0]" if cj else "neg_hi:[0,1,0]"))
        for q, dst in ((1, A1), (2, A2), (3, B1), (4, B2)):
            k("v_cvt_pk_bf16_f32", v(UO + 5 * vv + q), v(dst), v(dst + 1))
    for n in range(10): k("v_mov_b32_dpp", v(XT + n), v(UO + n), m="quad_perm:[1,0,3,2]" + DPPM)
    for n in range(10): k("v_perm_b32", v(UO + n), v(XT + n), v(UO + n), v(vSEL))
    st.mark(3)
    k("v_mov_b32", v(139), v(vUO))
    k("s_waitcnt", "vmcnt(%d)" % vm.n_after("pc"))
    for r in range(PP, PP + 3): k("v_lshlrev_b32", v(r), "16", v(r))
    lam_calc(k, PP, PP + 1, PP + 2, 80, 81, 82)
    cexp(k, 84, 80, 81, 82)
    k("v_add_f32", v(84), "-1.0", v(84))
    k("v_mul_f32", v(80), v(PP), v(PP)); k("v_fmac_f32", v(80), v(PP + 1), v(PP + 1)); k("v_rcp_f32", v(80), v(80))
    k("v_mul_f32", v(86), v(84), v(PP)); k("v_fmac_f32", v(86), v(85), v(PP + 1))
    k("v_mul_f32", v(87), v(85), v(PP)); k("v_fma_f32", v(87), "-" + v(84), v(PP + 1), v(87))
    k("v_add_f32", v(80), v(80), v(80))
    k("v_mul_f32", v(86), v(86), v(80)); k("v_mul_f32", v(87), v(87), v(80))
    KK, POUT = 88, 104
    for c in range(8):
        for e in range(2): k("v_mov_b32_dpp", v(KK + 2 * c + e), v(86 + e), m="row_newbcast:%d" % c + DPPM)
    for c in range(8):
        t = 112 + 4 * (c & 3)
        for e in range(2):
            src = PIN + 4 * e + (c >> 1)
            if c & 1: k("v_and_b32", v(t + e), "0xffff0000", v(src))
            else: k("v_lshlrev_b32", v(t + e), "16", v(src))
        k("v_pk_mul_f32", v(t + 2, 2), v(t, 2), v(KK + 2 * c, 2), m="op_sel:[0,0] op_sel_hi:[1,0] neg_hi:[1,0]")
        k("v_pk_fma_f32", v(t + 2, 2), v(t, 2), v(KK + 2 * c, 2), v(t + 2, 2), m="op_sel:[1,1,0] op_sel_hi:[0,1,1] neg_lo:[1,0,0] neg_hi:[1,0,0]")
        k("v_cvt_pk_bf16_f32", v(POUT + c), v(t + 2), v(t + 3))
    k("v_lshlrev_b32", v(138), "9", v(vG)); k("v_lshl_add_u32", v(138), v(vI), "4", v(138))
    k("s_and_b32", s(sXL), s(sA5), "7"); k("s_mul_i32", s(sXL), s(sXL), "5"); k("s_lshr_b32", s(sT), s(sA5), "3"); k("s_add_u32", s(sXL), s(sXL), s(sT))
    k("s_mul_i32", s(sXL), s(sXL), "40960"); k("s_lshl_b32", s(sT), s(sA6), "11"); k("s_add_u32", s(sXL), s(sXL), s(sT)); k("s_add_u32", s(sXL), s(sXL), str(WS_CP))
    k("s_and_b32", s(sA2), s(sA5), "7"); k("s_mul_i32", s(sA2), s(sA2), "5"); k("s_lshr_b32", s(sT), s(sA6), "2"); k("s_add_u32", s(sA2), s(sA2), s(sT)); k("s_add_u32", s(sA2), s(sA2), str(CC0)); cn_addr(k, sA2)
    k("s_cmp_lt_u32", "s2", "200"); k("s_cselect_b32", s(sXL), s(sXL), str(OOB)); k("s_cselect_b32", s(sA2), s(sA2), str(OOB))
    st.mark(4)
    sCS = 48
    k("s_mov_b32", s(sCS), s(sXL))
    if EP_M: flag_wait(k, "F_GM", 0, EP_M, 132, sleep=2)
    batch2()
    k("s_setprio", "3")
    non_load(k, 134)
    for vv in range(2):
        for q in range(5):
            k("s_add_u32", s(sO), s(sA3), str(WS_UU + vv * 81920 + q * 16384))
            k("buffer_store_dword", v(UO + 5 * vv + q), v(139), s(WS, 4), s(sO), m="offen sc0 sc1")
    for e in range(2):
        k("buffer_store_dwordx4", v(POUT + 4 * e, 4), v(138), s(WS, 4), s(sCS), m="offen offset:%d sc0 sc1" % (e * 256))
    k("s_setprio", "0")
    k("v_cvt_f32_u32", v(vSTP), v(vL5)); k("v_mul_f32", v(vSTP), f32(1 / 32), v(vSTP))
    k("v_cvt_f32_u32", v(vT), s(sM)); k("v_fmamk_f32", v(vT), v(vT), f32(1 / 64), v(vH4)); k("v_mul_f32", v(vB2), v(vSTP), v(vT))
    gen16(k, vSTP, vB2, F2C, F2S, F2N, TMP)
    k("v_lshlrev_b32", v(vT2), "6", v(vL5)); k("v_add_u32", v(vT2), s(sM), v(vT2))
    k("v_cvt_f32_u32", v(vSTP), v(vT2)); k("v_mul_f32", v(vSTP), f32(1 / 2048), v(vSTP)); k("v_mul_f32", v(vB2), v(vSTP), v(vH4))
    gen16(k, vSTP, vB2, FC, FS, FN, 220)
    k("s_and_b32", s(sA4), "s2", "7"); k("s_lshl_b32", s(sA4), s(sA4), "3"); k("s_add_u32", s(sA4), s(sA4), s(sIDX)); k("s_sub_u32", s(sA4), s(sA4), "24")
    k("s_lshl_b32", s(sA4), s(sA4), "2"); k("s_add_u32", s(sA4), s(sA4), s(sW)); k("s_lshl_b32", s(sA4), s(sA4), "3")
    k("s_lshl_b32", s(sA0), s(sW), "12")
    k("s_lshl_b32", s(sA1), s(sW), "2"); k("s_lshr_b32", s(sT), s(sJ8), "1"); k("s_add_u32", s(sA1), s(sA1), s(sT)); k("s_add_u32", s(sA1), s(sA1), str(CU0)); cn_addr(k, sA1)
    vUW = 153
    k("v_bfe_u32", v(154), v(LANE), "1", "1"); k("v_lshlrev_b32", v(vUW), "10", v(154))
    k("v_and_b32", v(vT2), "1", v(LANE)); k("v_lshl_add_u32", v(vUW), v(vT2), "9", v(vUW))
    k("v_lshrrev_b32", v(vT2), "2", v(LANE)); k("v_lshl_add_u32", v(vUW), v(vT2), "4", v(vUW))
    k("v_add_u32", v(vUW), s(sA0), v(vUW))
    FT = 132
    sFU = 40
    k("s_mul_i32", s(sFU), s(sU), "205"); k("s_lshr_b32", s(sFU), s(sFU), "13"); k("s_and_b32", s(sFU), s(sFU), "3")
    k("s_lshl_b32", s(sFU), s(sFU), "2"); k("s_add_u32", s(sFU), s(sFU), s(sW)); k("s_add_u32", s(sFU), s(sFU), str(CU0))
    k("s_and_b32", s(sT), s(sU), "3"); cn_addr(k, sFU, sT)
    k("s_waitcnt", "vmcnt(0)")
    non_wait(k, "F_NON", 134)
    k("s_setprio", "3")
    cn_add(k, sA1, 156); cn_add(k, sA2, 158)
    k("s_setprio", "0")
    st.mark(5)
    WO, WX = 208, 218
    def w_perm(lb, so, qs, out):
        AD_, SG_, RE_, IM_ = 80, 90, 112, 122
        k("s_add_u32", s(sT), s(so), lb); k("s_add_u32", s(sT2), s(so + 1), lb); k("s_add_u32", s(sT2), s(sT2), str(1024 + 1280))
        k("v_mov_b32", v(100), s(sT2)); k("v_mul_u32_u24", v(101), "20", v(LANE)); k("v_bfrev_b32", v(103), "1")
        j_ = 0
        for q in qs:
            for e in range(2):
                k("v_add_u32", v(vT), str(256 * q + 10 * e), v(101)); k("v_subrev_u32", v(vT2), "1280", v(vT)); k("v_min_u32", v(vT), v(vT), v(vT2))
                k("v_cmp_lt_u32", "vcc", "640", v(vT))
                k("v_sub_u32", v(vT2), v(100), v(vT)); k("v_add_u32", v(102), s(sT), v(vT))
                k("v_cndmask_b32", v(AD_ + j_), v(102), v(vT2), "vcc"); k("v_cndmask_b32", v(SG_ + j_), "0", v(103), "vcc")
                if q == 0 and e == 0: k("v_add_u32", v(104), v(100), v(vT))
                k("ds_read_u16", v(RE_ + j_), v(AD_ + j_)); k("ds_read_u16", v(IM_ + j_), v(AD_ + j_), m="offset:2048")
                j_ += 1
                if j_ == 6: k("s_waitcnt", "lgkmcnt(2)")
        k("v_subrev_u32", v(104), "1280", v(104)); k("v_min_u32", v(104), v(104), v(100))
        k("ds_read_u16", v(105), v(104)); k("ds_read_u16", v(106), v(104), m="offset:2048")
        k("s_waitcnt", "lgkmcnt(0)")
        j_ = 0
        for q in qs:
            for e in range(2):
                k("v_lshl_or_b32", v(out(q) + e), v(IM_ + j_), "16", v(RE_ + j_)); k("v_xor_b32", v(out(q) + e), v(SG_ + j_), v(out(q) + e))
                j_ += 1
        for r_ in (RE_, IM_, 105, 106): k("v_lshlrev_b32", v(r_), "16", v(r_))
        k("v_add_f32", v(105), v(RE_), v(105)); k("v_sub_f32", v(106), v(IM_), v(106))
        k("v_mul_f32", v(105), "0.5", v(105)); k("v_mul_f32", v(106), "0.5", v(106)); k("v_cvt_pk_bf16_f32", v(105), v(105), v(106))
        k("v_cmp_eq_u32", "vcc", "0", v(vL5)); k("v_cndmask_b32", v(out(0)), v(out(0)), v(105), "vcc")
    w_perm(s(sWS), sOD, (0, 1, 2, 3, 4), lambda q: WO + 2 * q)
    k("s_cmp_lg_u32", s(72), "0"); k("s_cbranch_scc1", "F_WB1")
    w_perm(s(sXB), 74, (0, 3, 4), lambda q: WX if q == 0 else WO + 2 * q)
    k.label("F_WB1")
    if EP_W: flag_wait(k, "F_G", 0, EP_W, FT, sleep=2)
    k("s_setprio", "3")
    k("v_lshlrev_b32", v(vT), "3", v(LANE))
    for q in range(5):
        k("s_add_u32", s(sO), s(sWL), str(q * 16384))
        k("buffer_store_dwordx2", v(WO + 2 * q, 2), v(vT), s(WS, 4), s(sO), m="offen sc0 sc1")
    k("s_add_u32", s(sO), s(sWL), str(160 * 16384)); k("s_cmp_eq_u32", s(72), "0"); k("s_cselect_b32", s(sO), s(sO), str(OOB))
    k("buffer_store_dwordx2", v(WX, 2), v(vT), s(WS, 4), s(sO), m="offen sc0 sc1")
    k("s_cmp_eq_u32", s(sISA), "0"); k("s_cselect_b32", s(sFU), str(OOB), s(sFU))
    cn_poll(k, sFU)
    k("s_lshl_b32", s(sA2), s(72), "7"); k("s_add_u32", s(sA2), s(sA2), str(WS_CN + 120 * 512))
    k("v_mov_b32", v(156), "1")
    k("s_waitcnt", "vmcnt(0)")
    k("s_mov_b64", "exec", "1"); k("buffer_atomic_add", v(156), v(vCA), s(WS, 4), s(sA2), m="offen sc1"); k("s_mov_b64", "exec", "-1")
    st.mark(6)
    k("s_cmp_eq_u32", s(sISA), "0"); k("s_cbranch_scc1", "F_NOA")
    cn_wait(k, "F_FU", sFU, "64", sleep=4)
    UL = P0
    k("s_lshl_b32", s(sO), s(sU), "14"); k("s_cmp_eq_u32", s(sU), "160"); k("s_cselect_b32", s(sO), "0", s(sO))
    k("s_add_u32", s(sO), s(sO), s(sA0)); k("s_add_u32", s(sO), s(sO), str(WS_UU))
    for n in range(4): k("buffer_load_dwordx4", v(UL + 4 * n, 4), v(vF), s(WS, 4), s(sO), m="offen offset:%d sc1" % (n * 1024))
    k("s_setprio", "0")
    flag_wait(k, "F_G4", 0, 4, FT, sleep=2)
    k("s_waitcnt", "vmcnt(0)")
    k("s_cmp_lg_u32", s(sQ), "0"); k("s_cbranch_scc1", "F_NSU")
    k("s_and_b32", s(sT), s(sM), "31"); k("s_cmp_lg_u32", s(sT), "0"); k("s_cbranch_scc1", "F_NSU")
    k("s_lshr_b32", s(sT), s(sM), "5")
    k("v_cmp_ne_u32", "vcc", s(sT), v(154))
    for r in range(16): k("v_cndmask_b32", v(UL + r), v(UL + r), "0", "vcc")
    k("s_lshl_b32", s(sT), s(sT), "10"); k("v_xor_b32", v(vUW), s(sT), v(vUW))
    k.label("F_NSU")
    for n in range(4): k("ds_write_b128", v(vUW), v(UL + 4 * n, 4), m="offset:%d" % (L_UI + (n >> 1) * 2048 + (n & 1) * 256))
    k("s_waitcnt", "lgkmcnt(0)")
    flag_set(k, 3, FT); flag_wait(k, "F_U", 1, 3, FT)
    st.mark(7)
    k("v_lshlrev_b32", v(250), "2", v(vL5)); k("v_lshl_add_u32", v(250), v(vH), "11", v(250))
    k("s_lshl_b32", s(sA5), s(sU), "14"); k("s_lshl_b32", s(sT), s(sW), "7"); k("s_add_u32", s(sA5), s(sA5), s(sT)); k("s_add_u32", s(sA5), s(sA5), str(WS_WP))
    sFW = 41
    k("s_mul_i32", s(sFW), s(sU), "205"); k("s_lshr_b32", s(sFW), s(sFW), "10"); k("s_and_b32", s(sFW), s(sFW), "31")
    k("s_lshl_b32", s(sFW), s(sFW), "7"); k("s_add_u32", s(sFW), s(sFW), str(WS_CN + 120 * 512))
    k("s_setprio", "3"); cn_poll(k, sFW); k("s_setprio", "0")
    def wck():
        k("s_waitcnt", "vmcnt(0)"); cn_wait(k, "F_FW", sFW, "32", sleep=2); k("s_setprio", "3")
    def wl(rho):
        if rho and rho % 4 == 0: k("s_add_u32", s(sA5), s(sA5), "4096")
        k("buffer_load_dword", v(WI + rho), v(250), s(WS, 4), s(sA5), m="offen offset:%d sc1" % ((rho & 3) * 512))
    def big_stage(base, first_is_A, items):
        def rd(ks):
            for pl in range(2):
                k("ds_read_b128", v(OP + 8 * (ks & 3) + 4 * pl, 4), v(vF), m="offset:%d" % (base + ks * 2048 + pl * 1024))
        for ks in range(4): rd(ks)
        for ks in range(8):
            out = min(7, ks + 3) - ks
            k("s_waitcnt", "lgkmcnt(%d)" % (2 * out))
            re, im = v(OP + 8 * (ks & 3), 4), v(OP + 8 * (ks & 3) + 4, 4)
            gc, gs = v(GC + 4 * ks, 4), v(GS + 4 * ks, 4)
            z = ks == 0
            if first_is_A: seq = [(P0, re, gc, z), (P1, im, gc, z), (P2, re, gs, z), (P0, im, gs, False)]
            else: seq = [(P0, re, gc, z), (P1, im, gc, z), (P2, im, gs, z), (P1, re, gs, False)]
            for (d, a_, b_, zz) in seq:
                k(M32, v(d, 16), a_, b_, "0" if zz else v(d, 16))
                if items: items.pop(0)()
            if ks + 4 < 8: rd(ks + 4)
    big_stage(L_UI, True, [(lambda: None)] * 15 + [wck] + [(lambda r=r: wl(r)) for r in range(16)])
    k("s_setprio", "0")
    cc_addr(k); cn_poll(k, sCC, 5)
    VR, VI, YR, YI = 80, 88, 96, 104
    for r in range(0, 16, 2): k("v_pk_add_f32", v(P1 + r, 2), v(P1 + r, 2), v(P2 + r, 2), m="neg_lo:[0,1] neg_hi:[0,1]")
    for r in range(8): k("v_cvt_pk_bf16_f32", v(VI + r), v(P1 + 2 * r), v(P1 + 2 * r + 1))
    for r in range(8): k("v_cvt_pk_bf16_f32", v(VR + r), v(P0 + 2 * r), v(P0 + 2 * r + 1))
    for q in range(2):
        k(M32, v(P0, 16), v(FS + 4 * q, 4), v(VI + 4 * q, 4), "0" if q == 0 else v(P0, 16))
        k(M32, v(P1, 16), v(FC + 4 * q, 4), v(VI + 4 * q, 4), "0" if q == 0 else v(P1, 16))
    for q in range(2):
        k(M32, v(P0, 16), v(FC + 4 * q, 4), v(VR + 4 * q, 4), v(P0, 16))
        k(M32, v(P1, 16), v(FN + 4 * q, 4), v(VR + 4 * q, 4), v(P1, 16))
    k("s_waitcnt", "vmcnt(0)")
    st.mark(8)
    for r in range(16):
        k("v_lshlrev_b32", v(WR + r), "16", v(WI + r)); k("v_and_b32", v(WI + r), "0xffff0000", v(WI + r))
    for r in range(0, 16, 2):
        k("v_pk_mul_f32", v(P2 + r, 2), v(P0 + r, 2), v(WR + r, 2)); k("v_pk_mul_f32", v(P0 + r, 2), v(P0 + r, 2), v(WI + r, 2))
    for r in range(0, 16, 2):
        k("v_pk_fma_f32", v(P2 + r, 2), v(P1 + r, 2), v(WI + r, 2), v(P2 + r, 2), m="neg_lo:[1,0,0] neg_hi:[1,0,0]")
        k("v_pk_fma_f32", v(P0 + r, 2), v(P1 + r, 2), v(WR + r, 2), v(P0 + r, 2))
    for r in range(8): k("v_cvt_pk_bf16_f32", v(YR + r), v(P2 + 2 * r), v(P2 + 2 * r + 1))
    for r in range(8): k("v_cvt_pk_bf16_f32", v(YI + r), v(P0 + 2 * r), v(P0 + 2 * r + 1))
    for q in range(2):
        k(M32, v(P0, 16), v(YR + 4 * q, 4), v(F2C + 4 * q, 4), "0" if q == 0 else v(P0, 16))
        k(M32, v(P1, 16), v(YR + 4 * q, 4), v(F2S + 4 * q, 4), "0" if q == 0 else v(P1, 16))
    for q in range(2):
        k(M32, v(P0, 16), v(YI + 4 * q, 4), v(F2N + 4 * q, 4), v(P0, 16))
        k(M32, v(P1, 16), v(YI + 4 * q, 4), v(F2C + 4 * q, 4), v(P1, 16))
    vEW = 12
    flag_wait(k, "F_GX", 0, 6, 144, sleep=2)
    k("v_add_u32", v(vEW), s(sA0), v(vF))
    for r in range(8): k("v_cvt_pk_bf16_f32", v(VR + r), v(P0 + 2 * r), v(P0 + 2 * r + 1))
    for q in range(2): k("ds_write_b128", v(vEW), v(VR + 4 * q, 4), m="offset:%d" % (L_EX + q * 2048))
    for r in range(8): k("v_cvt_pk_bf16_f32", v(VI + r), v(P1 + 2 * r), v(P1 + 2 * r + 1))
    for q in range(2): k("ds_write_b128", v(vEW), v(VI + 4 * q, 4), m="offset:%d" % (L_EX + q * 2048 + 1024))
    k("s_waitcnt", "lgkmcnt(0)")
    FT = 144
    flag_set(k, 4, FT)
    flag_wait(k, "F_X", 1, 4, FT)
    st.mark(9)
    big_stage(L_EX, False, [])
    k("v_lshlrev_b32", v(vT), "2", v(vL5)); k("v_lshl_add_u32", v(vT), v(vH), "11", v(vT))
    k("s_lshl_b32", s(sO), s(sU), "14"); k("s_lshl_b32", s(sT), s(sW), "7"); k("s_add_u32", s(sO), s(sO), s(sT)); k("s_add_u32", s(sO), s(sO), str(WS_UP))
    for r in range(0, 16, 2): k("v_pk_add_f32", v(P0 + r, 2), v(P0 + r, 2), v(P2 + r, 2), m="neg_lo:[0,1] neg_hi:[0,1]")
    k("s_setprio", "3")
    for jj in range(4):
        if jj: k("s_add_u32", s(sO), s(sO), "4096")
        for r in range(4):
            k("v_cvt_pk_bf16_f32", v(P2 + 4 * jj + r), v(P0 + 4 * jj + r), v(P1 + 4 * jj + r))
            k("buffer_store_dword", v(P2 + 4 * jj + r), v(vT), s(WS, 4), s(sO), m="offen offset:%d sc0 sc1" % (r * 512))
    k("s_setprio", "0")
    cn_wait(k, "F_FC", sCC, "20", 5)
    cp_setup(k)
    for n in range(NF1): ld_cp(k, 1, n)
    k("s_mul_i32", s(sA4), s(sU), "205"); k("s_lshr_b32", s(sA4), s(sA4), "12"); k("s_and_b32", s(sA4), s(sA4), "7")
    k("s_lshl_b32", s(sA4), s(sA4), "2"); k("s_add_u32", s(sA4), s(sA4), s(sW)); k("s_add_u32", s(sA4), s(sA4), str(CP0)); cn_addr(k, sA4)
    k("s_branch", "F_J")
    k.label("F_NOA")
    k("s_setprio", "0")
    cc_addr(k)
    k("s_cmp_lt_u32", s(sIDX), "24"); k("s_cbranch_scc1", "F_NOG")
    Wt, XX, GA = 40, 60, 100
    k("v_lshlrev_b32", v(vT), "4", v(vI))
    for n in range(5): k("global_load_dwordx4", v(Wt + 4 * n, 4), v(vT), s(pGW, 2), m="offset:%d" % (n * 256))
    k("v_mul_u32_u24", v(vT2), "1280", v(vG)); k("v_add_u32", v(vT2), v(vT2), v(vT))
    k("s_mul_i32", s(sO), s(sA4), "1280")
    for it in range(2):
        if it: k("s_add_u32", s(sO), s(sO), "5120")
        for n in range(5): k("buffer_load_dwordx4", v(XX + 20 * it + 4 * n, 4), v(vT2), s(SA, 4), s(sO), m="offen offset:%d" % (n * 256))
    for it in range(2): k("v_mov_b32", v(GA + 2 * it), "0"); k("v_mov_b32", v(GA + 2 * it + 1), s(sNON))
    for it in range(2):
        k("s_waitcnt", "vmcnt(%d)" % (5 - 5 * it))
        for r in range(20): k("v_dot2c_f32_bf16", v(GA + 2 * it), v(XX + 20 * it + r), v(Wt + r))
    for sh in (8, 4, 2, 1):
        for it in range(2): k("v_add_f32_dpp", v(GA + 2 * it), v(GA + 2 * it), v(GA + 2 * it), m="row_ror:%d" % sh + DPPM)
    for it in range(2): k("v_mul_f32", v(GA + 2 * it), f32(-LOG2E), v(GA + 2 * it))
    for it in range(2): k("v_exp_f32", v(GA + 2 * it), v(GA + 2 * it))
    for it in range(2): k("v_add_f32", v(GA + 2 * it), "1.0", v(GA + 2 * it))
    for it in range(2): k("v_rcp_f32", v(GA + 2 * it), v(GA + 2 * it))
    k("v_lshlrev_b32", v(vT), "3", v(vG)); k("s_lshl_b32", s(sO), s(sA4), "3"); k("s_add_u32", s(sO), s(sO), str(WS_GG))
    for it in range(2): k("buffer_store_dwordx2", v(GA + 2 * it, 2), v(vT), s(WS, 4), s(sO), m="offen offset:%d sc0 sc1" % (32 * it))
    k.label("F_NOG")
    flag_wait(k, "F_G6", 0, 6, 144, sleep=2)
    cn_poll(k, sCC, 5); k("s_waitcnt", "vmcnt(0)")
    cn_wait(k, "F_FC2", sCC, "20", 5)
    cp_setup(k)
    for n in range(5): ld_cp(k, 1, n)
    st.mark(7)
    k("s_mov_b32", s(sA4), str(OOB))
    flag_wait(k, "F_G8", 0, 8, 144, sleep=2)
    k.label("F_J")
    st.mark(10)
    def fetch_cf():
        k("s_cmp_gt_u32", "s2", "160"); k("s_cbranch_scc1", "F_NCF")
        for n in range(NF1, 5): ld_cp(k, 1, n)
        k.label("F_NCF")
    gemm3(k, st, 1, 5 * NF1, fetch_cf)

def gemm3(k, st, role, n_late, cf_hook):
    R = "GF"[role]
    vm = VM()
    HV, XB, O0, O1, AD = (116, 176, 196, 216, 236) if role == 0 else (36, 96, 116, 136, 156)
    OTH = [O0, O1]
    vHL, vMX, vRW, vRW2 = AD, AD + 1, AD + 2, AD + 3
    EF, TA, vTR, vRR, vXO, GS_, G1 = XB, XB + 8, XB + 13, XB + 14, XB + 15, XB + 16, XB + 18
    GV = XB + 10
    own = (0, 1, 2) if role == 0 else (3, 4)
    oth = (3, 4) if role == 0 else (0, 1, 2)
    hreg = lambda f: HV + 4 * (f % 15)
    k("v_bfe_u32", v(vHL), v(LANE), "2", "2"); k("v_mul_u32_u24", v(vHL), "10240", v(vHL))
    k("v_lshl_add_u32", v(vHL), v(vG), "6", v(vHL)); k("v_and_b32", v(vT), "3", v(LANE)); k("v_lshl_add_u32", v(vHL), v(vT), "4", v(vHL))
    sHA, sRD = 36, 44
    k("s_mul_i32", s(sA0), s(sSLO), "163840"); k("s_mul_i32", s(sT), s(sKW), "1280"); k("s_add_u32", s(sA0), s(sA0), s(sT)); k("s_add_u32", s(sA0), s(sA0), str(WS_HH))
    k("s_mul_i32", s(sT), s(sJ8), "86"); k("s_lshr_b32", s(sT), s(sT), "8"); k("s_mul_i32", s(sT), s(sT), "3"); k("s_sub_u32", s(sA2), s(sJ8), s(sT))
    def ld_h(f, track=True):
        p_, kk = divmod(f, 5)
        k("buffer_load_dwordx4", v(hreg(f), 4), v(vHL), s(WS, 4), s(sHA + p_), m="offen offset:%d sc1" % (kk * 256))
        if track: vm.issue("h%d" % f)
    for p_ in range(4):
        if p_ < 3:
            k("s_add_u32", s(sT), s(sA2), str(p_)); k("s_cmp_ge_u32", s(sT), "3"); k("s_cselect_b32", s(sT2), "3", "0"); k("s_sub_u32", s(sT), s(sT), s(sT2))
            k("s_add_u32", s(sT2), s(sT), s(sW)); k("s_add_u32", s(sT2), s(sT2), "1"); k("s_and_b32", s(sT2), s(sT2), "3")
        else:
            k("s_mov_b32", s(sT2), s(sW))
        k("s_mul_i32", s(sHA + p_), s(sT2), "40960"); k("s_add_u32", s(sHA + p_), s(sHA + p_), s(sA0))
        k("s_sub_u32", s(sT), s(sKW), s(sT2)); k("s_sub_u32", s(sT), s(sT), "1"); k("s_and_b32", s(sT), s(sT), "7"); k("s_lshl_b32", s(sT), s(sT), "10")
        k("s_mul_i32", s(sRD + 2 * p_), s(sT2), "35840")
        k("s_xor_b32", s(sRD + 2 * p_ + 1), s(sT), "4096"); k("s_add_u32", s(sRD + 2 * p_ + 1), s(sRD + 2 * p_ + 1), s(sRD + 2 * p_))
        k("s_add_u32", s(sRD + 2 * p_), s(sRD + 2 * p_), s(sT))
    ZR = [12, 13, 7, 8, 9, vMX]
    GV = 14
    vU, vU2, vGO, vFH = 0, XB + 19, 255, XB + 17
    sUB, sRB = 52, 53
    k("v_lshlrev_b32", v(vU2), "2", v(vI))
    k("s_lshl_b32", s(sT), s(sKW), "2"); k("v_add_u32", v(vT), s(sT), v(vG))
    k("s_mov_b32", s(sT), "81920"); k("v_mad_u32_u24", v(vU), v(vT), s(sT), v(vU2))
    k("v_lshlrev_b32", v(vXO), "4", v(vG)); k("v_mad_u32_u24", v(vXO), v(vI), s(sT), v(vXO))
    k("v_lshlrev_b32", v(vGO), "8", v(vI))
    sFH, sFP, sPT = 54, 55, 56
    k("s_lshr_b32", s(sFH), s(sSLO), "3"); k("s_lshl_b32", s(sFH), s(sFH), "3"); k("s_add_u32", s(sFH), s(sFH), s(sKW))
    k("s_and_b32", s(sT), s(sJ8), "3"); cn_addr(k, sFH, sT)
    k("s_lshl_b32", s(sFP), s(sKW), "2"); k("s_lshr_b32", s(sT), s(sJ8), "1"); k("s_add_u32", s(sFP), s(sFP), s(sT)); k("s_add_u32", s(sFP), s(sFP), str(CP0))
    k("s_lshr_b32", s(sT), "s2", "6"); cn_addr(k, sFP, sT)
    k("s_cmp_eq_u32", s(sKW), "0"); k("s_cselect_b32", s(sPT), "21", "20")
    k("s_lshl_b32", s(sUB), s(sSLO), "9"); k("s_lshl_b32", s(sT), s(sJ8), "6"); k("s_add_u32", s(sUB), s(sUB), s(sT)); k("s_add_u32", s(sUB), s(sUB), str(WS_UP))
    k("s_lshl_b32", s(sRB), s(sW), "9"); k("s_add_u32", s(sRB), s(sRB), s(sSLO))
    TM = O1
    k("s_lshl_b32", s(sT), s(sW), "4")
    k("v_add_u32", v(vT), s(sT), v(vI)); k("v_cvt_f32_u32", v(vT), v(vT)); k("v_mul_f32", v(vT), f32(1 / 64), v(vT))
    k("v_cvt_f32_u32", v(vT2), v(vG)); k("v_mul_f32", v(vT2), "4.0", v(vT2)); k("v_mul_f32", v(vT2), v(vT2), v(vT))
    for e in range(8): k("v_fmamk_f32", v(TM + e), v(vT), f32(16 * (e >> 2) + (e & 3)), v(vT2))
    for e in range(8): k("v_cos_f32", v(TM + 8 + e), v(TM + e))
    for e in range(8): k("v_sin_f32", v(TM + e), v(TM + e))
    for e in range(8): k("v_cvt_pk_bf16_f32", v(EF + e), v(TM + 8 + e), "-" + v(TM + e))
    k("v_lshlrev_b32", v(vT), "31", v(vI)); k("v_or_b32", v(vT), "0x3f003f00", v(vT))
    k("v_cmp_eq_u32", "vcc", "0", v(vG)); k("v_cndmask_b32", v(EF), v(EF), v(vT), "vcc")
    k("v_add_u32", v(vT2), s(sJ8), v(vI)); k("v_mul_u32_u24", v(vT2), "3", v(vT2))
    k("v_mul_u32_u24", v(TM), "205", v(vT2)); k("v_lshrrev_b32", v(TM), "10", v(TM)); k("v_mul_u32_u24", v(TM), "5", v(TM))
    k("v_sub_u32", v(vT2), v(vT2), v(TM)); k("v_mul_u32_u24", v(TA), "2304", v(vT2))
    for e in range(1, 5):
        k("v_add_u32", v(TA + e), "4608", v(TA + e - 1)); k("v_subrev_u32", v(TM), "11520", v(TA + e)); k("v_min_u32", v(TA + e), v(TA + e), v(TM))
    k("v_mul_u32_u24", v(vT), "144", v(vI)); k("v_lshl_add_u32", v(vT2), v(vG), "2", v(vT))
    k("s_lshl_b32", s(sT), s(sKW), "4"); k("s_add_u32", s(sT), s(sT), str(L_TP)); k("v_add_u32", v(vT2), s(sT), v(vT2))
    for e in range(5): k("v_add_u32", v(TA + e), v(TA + e), v(vT2))
    k("v_lshl_add_u32", v(vTR), v(vG), "4", v(vT)); k("v_add_u32", v(vTR), str(L_TP), v(vTR))
    k("s_mul_i32", s(sT), s(sW), "35840"); k("v_add_u32", v(vRR), s(sT), v(vF))
    srd(k, SA, pOUT, 5242880)
    def ld_U(track=True):
        for q in range(5):
            k("s_add_u32", s(sO), s(sUB), str(q * 16384))
            k("buffer_load_dword", v(ZR[q]), v(vU), s(WS, 4), s(sO), m="offen sc1")
            if track: vm.issue("U")
        if role == 0:
            k("s_add_u32", s(sO), s(sUB), str(160 * 16384)); k("s_cmp_eq_u32", s(sKW), "0"); k("s_cselect_b32", s(sO), s(sO), str(OOB))
            k("buffer_load_dword", v(ZR[5]), v(vU2), s(WS, 4), s(sO), m="offen sc1")
            if track: vm.issue("U")
        ld_g()
        if track: vm.issue("U")
    def ld_g():
        k("s_lshl_b32", s(sO), s(sRB), "3"); k("s_add_u32", s(sO), s(sO), str(WS_GG))
        k("buffer_load_dwordx2", v(GV, 2), v(vGO), s(WS, 4), s(sO), m="offen sc1")
    def red_w(acc, n):
        k("ds_write_b128", v(vRW if n < 3 else vRW2), v(acc + 4 * n, 4), m="offset:%d" % (L_RED + n * 7168))
    def red_addr(p_):
        k("v_add_u32", v(vRW), s(sRD + 2 * p_), v(vF)); k("v_add_u32", v(vRW2), s(sRD + 2 * p_ + 1), v(vF))
    def slot(p_, acc, cinit, order, extra=None):
        for kk in range(5):
            f = 5 * p_ + kk
            k("s_waitcnt", "vmcnt(%d)" % vm.n_after("h%d" % f))
            for idx, n in enumerate(order):
                cc = (cinit(n) if kk == 0 else v(acc + 4 * n, 4))
                k(M16, v(acc + 4 * n, 4), v(cpreg(role, n, kk), 4), v(hreg(f), 4), cc)
                if idx == 2 and extra: extra(kk)
    nat = (0, 1, 2, 3, 4)
    if role == 0:
        k("s_cmp_lg_u32", s(sXL), "0"); k("s_cbranch_scc1", "G_DW")
        k("s_waitcnt", "vmcnt(%d)" % (n_late + NC[2])); k("s_branch", "G_DW2")
        k.label("G_DW")
    k("s_waitcnt", "vmcnt(%d)" % n_late)
    if role == 0: k.label("G_DW2")
    k("s_setprio", "3")
    cn_add(k, sA4, vMX)
    k("s_setprio", "0")
    cf_hook()
    cn_poll(k, sFH); k("s_waitcnt", "vmcnt(0)")
    cn_wait(k, R + "_FH", sFH, "32", sleep=4)
    if role == 0 and not CST: st.mark(9)
    for f in range(10): ld_h(f)
    k("s_waitcnt", "lgkmcnt(0)")
    st.mark(11)
    slot(0, O0, lambda n: "0", nat, lambda kk: ld_h(10 + kk))
    cn_poll(k, sFP); vm.issue("fp")
    for kk in range(5): ld_h(15 + kk)
    red_addr(0)
    k("s_barrier")
    slot(1, O1, lambda n: "0", nat, lambda kk: red_w(O0, kk))
    red_addr(1)
    slot(2, O0, lambda n: "0", nat, lambda kk: red_w(O1, kk))
    k("s_waitcnt", "vmcnt(%d)" % vm.n_after("fp"))
    cn_wait(k, R + "_FP", sFP, s(sPT), sleep=2)
    ld_U()
    red_addr(2)
    for n in range(5): red_w(O0, n)
    st.mark(12)
    INB = HV + 48
    IN_ = {n: INB + 4 * i_ for i_, n in enumerate(own)}
    for i_, n in enumerate(own):
        for hf in range(2):
            t = O1
            k("v_lshlrev_b32", v(t), "16", v(XP + 2 * i_ + hf)); k("v_and_b32", v(t + 1), "0xffff0000", v(XP + 2 * i_ + hf))
            k("v_lshlrev_b32", v(t + 2), "16", v(DP + 2 * i_ + hf)); k("v_and_b32", v(t + 3), "0xffff0000", v(DP + 2 * i_ + hf))
            k("v_pk_mul_f32", v(IN_[n] + 2 * hf, 2), v(t, 2), v(t + 2, 2))
    red_addr(3)
    k("s_waitcnt", "lgkmcnt(0)"); k("s_barrier")
    AA = XP
    RB = [HV + 20, O0]
    srcs = (0, 1, 2, 4, 5, 6)
    TF = O0 + 24 if False else None
    def rd6(i_):
        for j_, src in enumerate(srcs):
            k("ds_read_b128", v(RB[i_ & 1] + 4 * j_, 4), v(vRR), m="offset:%d" % (L_RED + own[i_] * 7168 + src * 1024))
    def sum6(i_):
        r = RB[i_ & 1]; o = IN_[own[i_]]
        for hf in (0, 2):
            k("v_pk_add_f32", v(r + hf, 2), v(r + hf, 2), v(r + 4 + hf, 2)); k("v_pk_add_f32", v(r + 8 + hf, 2), v(r + 8 + hf, 2), v(r + 12 + hf, 2))
            k("v_pk_add_f32", v(r + 16 + hf, 2), v(r + 16 + hf, 2), v(r + 20 + hf, 2))
        for hf in (0, 2):
            k("v_pk_add_f32", v(r + hf, 2), v(r + hf, 2), v(r + 8 + hf, 2)); k("v_pk_add_f32", v(o + hf, 2), v(o + hf, 2), v(r + 16 + hf, 2))
        for hf in (0, 2): k("v_pk_add_f32", v(o + hf, 2), v(o + hf, 2), v(r + hf, 2))
    rd6(0); rd6(1)
    k("s_waitcnt", "lgkmcnt(6)"); sum6(0)
    if len(own) == 3:
        rd6(2); k("s_waitcnt", "lgkmcnt(6)"); sum6(1)
        k("s_waitcnt", "lgkmcnt(0)"); sum6(2)
    else:
        k("s_waitcnt", "lgkmcnt(0)"); sum6(1)
    st.mark(13)
    slot(3, O1, lambda n: (v(IN_[n], 4) if n in IN_ else "0"), oth + own)
    TM = HV + 20
    k("s_waitcnt", "vmcnt(0)")
    for n in oth: red_w(O1, n)
    L = [TM + 2 * q for q in range(5)]
    S1, D1, S2, D2, A1, A2, B1, B2, T0 = [TM + 10 + 2 * i for i in range(9)]
    for q in range(5):
        k("v_lshlrev_b32", v(L[q]), "16", v(ZR[q])); k("v_and_b32", v(L[q] + 1), "0xffff0000", v(ZR[q]))
    k("v_pk_add_f32", P(S1), P(L[1]), P(L[4])); k("v_pk_add_f32", P(D1), P(L[1]), P(L[4]), m="neg_lo:[0,1] neg_hi:[0,1]")
    k("v_pk_add_f32", P(S2), P(L[2]), P(L[3])); k("v_pk_add_f32", P(D2), P(L[2]), P(L[3]), m="neg_lo:[0,1] neg_hi:[0,1]")
    if role == 0:
        k("s_cmp_lg_u32", s(sW), "0"); k("s_cbranch_scc1", "G_NSP3")
        k("s_mov_b64", "exec", "0xffff")
        k("v_lshlrev_b32", v(L[0] + 1), "16", v(ZR[5]))
        for (S_, D_, x_, y_) in ((S1, D1, L[1], L[4]), (S2, D2, L[2], L[3])):
            k("v_add_f32", v(S_), v(x_), v(x_)); k("v_add_f32", v(S_ + 1), v(y_), v(y_))
            k("v_add_f32", v(D_), v(y_ + 1), v(y_ + 1)); k("v_add_f32", v(D_ + 1), v(x_ + 1), v(x_ + 1))
        k("s_mov_b64", "exec", "-1")
        k.label("G_NSP3")
    k("v_pk_add_f32", P(T0), P(L[0]), P(S1))
    k("v_pk_fma_f32", P(A1), P(S1), s(sC1, 2), P(L[0])); k("v_pk_fma_f32", P(A2), P(S1), s(sC2, 2), P(L[0]))
    k("v_pk_mul_f32", P(B1), P(D1), s(sN1, 2)); k("v_pk_mul_f32", P(B2), P(D1), s(sN2, 2))
    k("v_pk_add_f32", P(T0), P(T0), P(S2))
    k("v_pk_fma_f32", P(A1), P(S2), s(sC2, 2), P(A1)); k("v_pk_fma_f32", P(A2), P(S2), s(sC1, 2), P(A2))
    k("v_pk_fma_f32", P(B1), P(D2), s(sN2, 2), P(B1)); k("v_pk_fma_f32", P(B2), P(D2), s(sN1, 2), P(B2), m="neg_lo:[1,0,0] neg_hi:[1,0,0]")
    swadd(k, S1, A1, B1, True); swadd(k, D1, A1, B1, False); swadd(k, S2, A2, B2, True); swadd(k, D2, A2, B2, False)
    for e, r in enumerate((T0, S1, S2, D2, D1)):
        k("v_cvt_pk_bf16_f32", v(L[e]), v(r), v(r + 1))
        k("ds_write_b32", v(TA + e), v(L[e]))
    k("v_cmp_ne_u32", "vcc", s(sNON), v(GV + 1))
    spin_check(k, R + "_GT", ld_g, lambda: k("v_cmp_ne_u32", "vcc", s(sNON), v(GV + 1)))
    k("v_mul_f32", v(GS_), f32(2.0 / (2048 * 640)), v(GV)); k("v_sub_f32", v(G1), "1.0", v(GV))
    k("s_mul_i32", s(sO), s(sRB), "2560"); k("s_lshl_b32", s(sT), s(sJ8), "6"); k("s_add_u32", s(sO), s(sO), s(sT))
    k("s_waitcnt", "lgkmcnt(0)"); k("s_barrier")
    TF = HV + 20
    for i_, n in enumerate(own):
        for q in range(2): k("ds_read_b128", v(TF + 8 * i_ + 4 * q, 4), v(vTR), m="offset:%d" % (n * 2304 + 64 * q))
    for i_, n in enumerate(own):
        k("ds_read_b128", v(O0 + 4 * i_, 4), v(vRR), m="offset:%d" % (L_RED + n * 7168 + 3 * 1024))
    k("s_waitcnt", "lgkmcnt(%d)" % len(own))
    for q in range(2):
        for i_, n in enumerate(own):
            k(M16, v(AA + 4 * i_, 4), v(TF + 8 * i_ + 4 * q, 4), v(EF + 4 * q, 4), "0" if q == 0 else v(AA + 4 * i_, 4))
    for i_, n in enumerate(own):
        for hf in (0, 2): k("v_pk_mul_f32", v(AA + 4 * i_ + hf, 2), v(AA + 4 * i_ + hf, 2), v(GS_, 2), m="op_sel_hi:[1,0]")
    for i_, n in enumerate(own):
        o = O1 + 4 * n
        k("s_waitcnt", "lgkmcnt(%d)" % (len(own) - 1 - i_))
        for hf in (0, 2): k("v_pk_add_f32", v(o + hf, 2), v(o + hf, 2), v(O0 + 4 * i_ + hf, 2))
        for hf in (0, 2): k("v_pk_fma_f32", v(o + hf, 2), v(o + hf, 2), v(G1, 2), v(AA + 4 * i_ + hf, 2), m="op_sel_hi:[1,0,1]")
        k("buffer_store_dwordx4", v(o, 4), v(vXO), s(SA, 4), s(sO), m="offen offset:%d" % (n * 512))
    st.mark(14)
    if STAMP: k("s_waitcnt", "vmcnt(0)")
    st.mark(15, True)
    st.flush()
    if SPINK:
        k("s_waitcnt", "vmcnt(0)")
        k("s_memrealtime", s(98, 2)); k("s_waitcnt", "lgkmcnt(0)")
        k("s_sub_u32", s(97), s(98), s(100)); k("s_min_u32", s(97), s(97), "20000"); k("s_mul_i32", s(97), s(97), str(SPINK))
        k.label(R + "_SPIN")
        k("s_memrealtime", s(100, 2)); k("s_waitcnt", "lgkmcnt(0)")
        k("s_sub_u32", s(96), s(100), s(98)); k("s_cmp_lt_u32", s(96), s(97)); k("s_cbranch_scc1", R + "_SPIN")
    k("s_endpgm")

def gen_w():
    k = Kern(KNAME)
    st = Stamps(k, WS, sKW, 3); st.lane = "v1"
    k("s_cmp_ge_u32", "s2", "256"); k("s_cbranch_scc1", "W_END")
    if SPINK: k("s_memrealtime", s(100, 2))
    k("s_load_dwordx16", s(36, 16), s(0, 2), "0")
    k("s_load_dwordx16", s(52, 16), s(0, 2), "64")
    k("v_lshrrev_b32", v(vT), "6", "v0"); k("v_and_b32", v(LANE), "63", "v0")
    k("v_readfirstlane_b32", s(sKW0), v(vT))
    k("v_lshrrev_b32", v(vG), "4", v(LANE)); k("v_and_b32", v(vI), "15", v(LANE))
    k("v_lshlrev_b32", v(vF), "4", v(LANE)); k("v_and_b32", v(vL5), "31", v(LANE)); k("v_lshrrev_b32", v(vH), "5", v(LANE))
    k("v_lshlrev_b32", v(vFL), "2", v(vT)); k("v_add_u32", v(vFL), str(L_FL), v(vFL))
    k("v_mov_b32", v(vCA + 1), str(L_FL)); k("v_mov_b32", v(vCA), "0")
    k("v_mov_b32", v(vT2), "0"); k("ds_write_b32", v(vFL), v(vT2))
    k("v_and_b32", v(TID), "255", "v0")
    k("s_and_b32", s(sW), s(sKW0), "3")
    k("s_lshr_b32", s(sIDX), "s2", "3")
    k("s_lshr_b32", s(sA0), "s2", "6")
    k("s_and_b32", s(sJ8), s(sIDX), "7")
    k("s_bfe_u32", s(sC), "s2", "0x20001"); k("s_lshl_b32", s(sC), s(sC), "2"); k("s_add_u32", s(sC), s(sC), s(sA0))
    k("s_and_b32", s(sJ), "s2", "1"); k("s_lshl_b32", s(sJ), s(sJ), "3"); k("s_add_u32", s(sJ), s(sJ), s(sJ8))
    k("s_and_b32", s(sSLO), "s2", "7"); k("s_lshl_b32", s(sSLO), s(sSLO), "2"); k("s_add_u32", s(sSLO), s(sSLO), s(sA0))
    radix_consts(k)
    k("s_cmp_ge_u32", s(sKW0), "4"); k("s_cbranch_scc1", "W_F")
    g_stream(k, st)
    k.label("W_F")
    f_stream(k, st)
    k.label("W_END")
    k("s_endpgm")
    return k

HDR = open("gated_mix__spectral_gfnet__ssm_conv_s5__prompt.s.ref").read().split("\n")
HDR = [l for l in HDR if l.startswith(";") and "@launch" not in l and "Override" not in l and "grid=ceil" not in l]
if __name__ == "__main__":
    import sys
    k = gen_w()
    txt = build_file(HDR, [k], [])
    lines = txt.split("\n")
    i = lines.index('.amdgcn_target "amdgcn-amd-amdhsa--gfx950"')
    lines.insert(i, "; @launch grid=(256,1,1) block=(512,1,1) lds=%d" % LDS_TOTAL)
    open(sys.argv[1] if len(sys.argv) > 1 else "y.s", "w").write("\n".join(lines))
    print("maxv", k.maxv, "maxa", k.maxa, "maxs", k.maxs, "instrs", len(k.items))
```
